```python
import torch

def _softmax(x, axis=-1):
    return torch.softmax(x, dim=axis)

def _gelu(x):
    return torch.nn.functional.gelu(x, approximate='tanh')

def _silu(x):
    return torch.nn.functional.silu(x)

def _sigmoid(x):
    return torch.sigmoid(x)

def _layernorm(x, axis=-1, eps=1e-05):
    m = x.mean(dim=axis, keepdim=True)
    v = x.var(dim=axis, keepdim=True, unbiased=False)
    return (x - m) / torch.sqrt(v + eps)

def _scatter_add(tgt, idx, src, axis=0):
    return tgt.clone().index_add_(axis, idx, src)

def _segment_sum(src, seg, n):
    out = torch.zeros((n,) + src.shape[1:], dtype=src.dtype)
    return out.index_add_(0, seg, src)

def _pad(x, pw):
    flat = tuple((v for pair in reversed(pw) for v in pair))
    return torch.nn.functional.pad(x, flat)
kernel_name = 'sequential_preLN__linear_kernel_hedgehog__mixer_gmlp__prompt'

def setup_inputs():

    _w = lambda a: (lambda t: t.to(torch.bfloat16) if t.is_floating_point() else t)(torch.as_tensor(a))

    def _A_setup():
        B, S, D, H = (1, 2048, 576, 32)
        Dh = D // H
        return {'x': _w((lambda *s: torch.randn(*s, dtype=torch.bfloat16) * 0.05)(B, S, D)), 'wqkv': _w((lambda *s: torch.randn(*s, dtype=torch.bfloat16) * 0.2)(D, 3 * D)), 'w_phi': _w((lambda *s: torch.randn(*s, dtype=torch.bfloat16) * 0.2)(H, Dh, Dh) * Dh ** (-0.5)), 'wo': _w((lambda *s: torch.randn(*s, dtype=torch.bfloat16) * 0.05)(D, D))}
    _A_in = _A_setup()

    def _B_setup():
        B, S, D, F = (1, 2048, 576, 4608)
        Fh = F // 2
        return {'x': _w((lambda *s: torch.randn(*s, dtype=torch.bfloat16) * 0.05)(B, S, D)), 'w_in': _w((lambda *s: torch.randn(*s, dtype=torch.bfloat16) * 0.4)(D, 2 * Fh)), 'w_sp': _w(0.01 * (lambda *s: torch.randn(*s, dtype=torch.bfloat16) * 0.4)(S, S)), 'b_sp': _w(1.0 + 0.01 * (lambda *s: torch.randn(*s, dtype=torch.bfloat16) * 0.05)(S)), 'w_out': _w((lambda *s: torch.randn(*s, dtype=torch.bfloat16) * 0.05)(Fh, D))}
    _B_in = _B_setup()
    return {'A_x': _A_in['x'], 'A_wqkv': _A_in['wqkv'], 'A_w_phi': _A_in['w_phi'], 'A_wo': _A_in['wo'], 'B_x': _B_in['x'], 'B_w_in': _B_in['w_in'], 'B_w_sp': _B_in['w_sp'], 'B_b_sp': _B_in['b_sp'], 'B_w_out': _B_in['w_out']}

def reference(A_x, A_wqkv, A_w_phi, A_wo, B_x, B_w_in, B_w_sp, B_b_sp, B_w_out):

    def _A_ref(x, wqkv, w_phi, wo):
        B, S, D = x.shape
        H = 32
        Dh = D // H
        qkv = (lambda x, *d: x.permute(*d))((x @ wqkv).reshape(B, S, 3, H, Dh), 2, 0, 3, 1, 4)
        q, k, v = (qkv[0], qkv[1], qkv[2])
        pq = torch.einsum('bhsd,hdf->bhsf', q, w_phi)
        pk = torch.einsum('bhsd,hdf->bhsf', k, w_phi)
        phi_q = torch.concatenate([_softmax(pq, axis=-1), _softmax(-pq, axis=-1)], axis=-1)
        phi_k = torch.concatenate([_softmax(pk, axis=-1), _softmax(-pk, axis=-1)], axis=-1)
        kv = torch.einsum('bhsf,bhsd->bhfd', phi_k, v)
        z = torch.einsum('bhsf->bhf', phi_k)
        num = torch.einsum('bhqf,bhfd->bhqd', phi_q, kv)
        den = torch.einsum('bhqf,bhf->bhq', phi_q, z)[..., None] + 1e-06
        o = num / den
        return (lambda x, *d: x.permute(*d))(o, 0, 2, 1, 3).reshape(B, S, D) @ wo

    def _B_ref(x, w_in, w_sp, b_sp, w_out):
        B, S, D = x.shape
        F = w_in.shape[-1]
        Fh = F // 2
        z = _gelu(torch.einsum('bsd,df->bsf', x, w_in))
        z1 = z[..., :Fh].clone()
        z2 = _layernorm(z[..., Fh:], axis=-1)
        g = torch.einsum('ts,bsf->btf', w_sp, z2) + b_sp[None, :, None]
        return torch.einsum('bsf,fd->bsd', z1 * g, w_out)
    x = A_x
    h = x + _A_ref(_layernorm(x, axis=-1), A_wqkv, A_w_phi, A_wo)
    h2 = h + _B_ref(_layernorm(h, axis=-1), B_w_in, B_w_sp, B_b_sp, B_w_out)
    return h2
```

```python
import sys, os
EXP = os.environ.get('EXP','')

NAME = "sequential_preLN__linear_kernel_hedgehog__mixer_gmlp__prompt"

PHIQ_OFF, PHIQ_SZ = 0x0000000, 128 * 32 * 1152
KVP_OFF, KVP_SZ = 0x0600000, 8 * 32 * 4 * 6 * 1024
KVT_OFF, KVT_SZ = 0x0C00000, 32 * 4608
H_OFF, H_SZ = 0x0D00000, 2048 * 576 * 2
Z1_OFF, Z_SZ = 0x1000000, 2048 * 2304 * 2
Z2_OFF = 0x1A00000
Z2N_OFF = 0x2400000
ST_OFF, ST_SZ = 0x2E00000, 2048 * 16 * 2 * 4
U_OFF = 0x3000000
HST_OFF, HST_SZ = 0x3A00000, 2048 * 8 * 8
CS_OFF, CS_SZ = 0x3B00000, 4608 * 4

P_X, P_WQKV, P_WPHI, P_WO, P_BX, P_WIN, P_WSP, P_BSP = 4, 6, 8, 10, 12, 14, 16, 18
P_WOUT, P_OUT, P_DBG, P_WS = 20, 22, 24, 26
S_A, S_B, S_C, S_O, S_E, S_F = 28, 32, 36, 40, 44, 48


class G:
    def __init__(self):
        self.L = []

    def e(self, s):
        self.L.append("    " + s)

    def lab(self, s):
        self.L.append(s + ":")

    def c(self, s):
        self.L.append("    ; " + s)

    def text(self):
        return "\n".join(self.L) + "\n"


def srd(g, sd, ptr, off, size):
    if off:
        g.e(f"s_add_u32 s{sd}, s{ptr}, {off}")
        g.e(f"s_addc_u32 s{sd+1}, s{ptr+1}, 0")
        g.e(f"s_and_b32 s{sd+1}, s{sd+1}, 0xffff")
    else:
        g.e(f"s_mov_b32 s{sd}, s{ptr}")
        g.e(f"s_and_b32 s{sd+1}, s{ptr+1}, 0xffff")
    g.e(f"s_mov_b32 s{sd+2}, {size}")
    g.e(f"s_mov_b32 s{sd+3}, 0x00020000")


def prologue(g, kname, nwg):
    g.L.append(f".globl {kname}")
    g.L.append(".p2align 8")
    g.L.append(f".type {kname},@function")
    g.lab(kname)
    g.e(f"s_cmp_ge_u32 s2, {nwg}")
    g.e(f"s_cbranch_scc1 {kname}_end")
    g.e("s_load_dwordx16 s[4:19], s[0:1], 0")
    g.e("s_load_dwordx8 s[20:27], s[0:1], 64")
    if 'stamp' in EXP:
        g.e("s_memrealtime s[96:97]")
        g.e("s_mov_b32 s92, 0")
        g.e("s_mov_b32 s94, 0")


STAMP_OFF = 0x3F00000
def epilogue(g, kname):
    if 'stamp' in EXP:
        idx = int(kname[1]) if kname[1].isdigit() else 6
        g.e("s_waitcnt vmcnt(0) lgkmcnt(0)")
        g.e("s_memrealtime s[98:99]")
        srd(g, S_F, P_WS, STAMP_OFF + idx * 16384, 16384)
        g.e("s_waitcnt lgkmcnt(0)")
        g.e("v_mov_b32 v2, s96")
        g.e("v_mov_b32 v3, s98")
        g.e("v_mov_b32 v4, s92")
        g.e("v_mov_b32 v5, s94")
        g.e("s_lshl_b32 s96, s2, 4")
        g.e("v_mov_b32 v6, s96")
        g.e("v_cmp_eq_u32 vcc, 0, v0")
        g.e("s_and_saveexec_b64 s[96:97], vcc")
        g.e(f"buffer_store_dwordx4 v[2:5], v6, s[{S_F}:{S_F+3}], 0 offen")
    g.lab(f"{kname}_end")
    g.e("s_endpgm")


def descriptor(kname, vgpr, agpr=0, sgpr=100):
    acc = (vgpr + 3) // 4 * 4
    tot = acc + agpr if agpr else vgpr
    return f""".p2align 6
.amdhsa_kernel {kname}
  .amdhsa_next_free_vgpr {tot}
  .amdhsa_next_free_sgpr {sgpr}
  .amdhsa_accum_offset {acc}
  .amdhsa_group_segment_fixed_size 0
  .amdhsa_kernarg_size 96
  .amdhsa_user_sgpr_count 2
  .amdhsa_user_sgpr_kernarg_segment_ptr 1
  .amdhsa_system_sgpr_workgroup_id_x 1
.end_amdhsa_kernel
"""


def swap23(r):
    return (r & 3) | ((r & 4) << 1) | ((r & 8) >> 1)


S_WAVE = 52
S_WB = 53
S_KB = 54
S_KA = 55
S_LOOP = 56
S_M0 = 57
S_N0 = 58
S_WA = 59
S_T = 60
S_J = 70
S_ROT = 71
S_ROLE = 72


class Gemm:
    def __init__(self, g, MT, NT, BN, NS, ldb, a_mode, vbase, lds_base=0):
        self.g = g
        self.MT, self.NT, self.BN, self.NS = MT, NT, BN, NS
        self.ldb = ldb
        self.a_mode = a_mode
        self.S = BN * 2
        self.CPR = BN // 8
        self.STAGE = 64 * self.S
        self.ASTAGE = 4 * MT * 16 * 128 if a_mode == 'lds' else 0
        self.a_base = lds_base
        self.b_base = lds_base + NS * self.ASTAGE
        nch = 16 * self.CPR
        self.nfull = nch // 64
        self.half = (nch % 64) // 32
        assert nch % 32 == 0
        self.D = self.nfull + self.half
        self.DA = 2 * MT if a_mode == 'lds' else 0
        v = vbase
        self.vDma = v; v += self.D
        self.vBaddr = v; v += NS
        if a_mode == 'lds':
            self.vDmaA = v; v += self.DA
            self.vAaddr = v; v += 2
        v = (v + 3) // 4 * 4
        self.vB = [v, v + NT * 4]; v += 2 * NT * 4
        if a_mode == 'lds':
            self.vA = [v, v + MT * 4]; v += 2 * MT * 4
        self.G = (0 if 'nob' in EXP else self.D) + (0 if 'noa' in EXP else self.DA)
        self.vend = v
        self.rotw = 1
        self.lds_bytes = NS * (self.STAGE + self.ASTAGE)

    def setup(self, vlane, vt0, colmap=None, col0_sgpr=None):
        g = self.g
        t0, t1, t2, t3 = vt0, vt0 + 1, vt0 + 2, vt0 + 3
        magic = (65536 + self.CPR - 1) // self.CPR
        for c in range(self.D * 64):
            assert (c * magic) >> 16 == c // self.CPR
        g.e(f"s_mul_i32 s{S_WB}, s{S_WAVE}, {16*self.S}")
        g.e(f"s_add_u32 s{S_WB}, s{S_WB}, {self.b_base}")
        g.e(f"s_lshl_b32 s{S_T}, s{S_WAVE}, 4")
        for q in range(self.D):
            g.e(f"v_add_u32 v{t0}, {q*64}, v{vlane}")
            g.e(f"v_mul_u32_u24 v{t1}, {magic}, v{t0}")
            g.e(f"v_lshrrev_b32 v{t1}, 16, v{t1}")
            g.e(f"v_mul_u32_u24 v{t2}, {self.CPR}, v{t1}")
            g.e(f"v_sub_u32 v{t0}, v{t0}, v{t2}")
            g.e(f"v_and_b32 v{t2}, 3, v{t1}")
            g.e(f"v_and_b32 v{t3}, 4, v{t1}")
            g.e(f"v_lshl_or_b32 v{t2}, v{t3}, 1, v{t2}")
            g.e(f"v_and_b32 v{t3}, 8, v{t1}")
            g.e(f"v_lshrrev_b32 v{t3}, 1, v{t3}")
            g.e(f"v_or_b32 v{t2}, v{t2}, v{t3}")
            g.e(f"v_add_u32 v{t2}, s{S_T}, v{t2}")
            g.e(f"s_mov_b32 s{S_T+1}, {self.ldb}")
            g.e(f"v_mul_lo_u32 v{t2}, v{t2}, s{S_T+1}")
            if colmap is None:
                g.e(f"v_lshlrev_b32 v{t0}, 4, v{t0}")
            else:
                colmap(g, t0, t1, t3)
            g.e(f"v_add_u32 v{self.vDma+q}, v{t2}, v{t0}")
            if col0_sgpr is not None:
                g.e(f"v_add_u32 v{self.vDma+q}, s{col0_sgpr}, v{self.vDma+q}")
        g.e(f"v_lshrrev_b32 v{t0}, 5, v{vlane}")
        g.e(f"v_lshlrev_b32 v{t0}, 4, v{t0}")
        g.e(f"v_bfe_u32 v{t1}, v{vlane}, 4, 1")
        g.e(f"v_lshl_or_b32 v{t0}, v{t1}, 2, v{t0}")
        g.e(f"v_bfe_u32 v{t1}, v{vlane}, 2, 2")
        g.e(f"v_add_u32 v{t0}, v{t0}, v{t1}")
        g.e(f"v_mul_u32_u24 v{t0}, {self.S}, v{t0}")
        g.e(f"v_and_b32 v{t1}, 3, v{vlane}")
        g.e(f"v_lshl_add_u32 v{t0}, v{t1}, 3, v{t0}")
        for s in range(self.NS):
            g.e(f"v_add_u32 v{self.vBaddr+s}, {self.b_base + s*self.STAGE}, v{t0}")

    def setup_a(self, vlane, vt0, lda, srow0):
        g = self.g
        t0, t1, t2 = vt0, vt0 + 1, vt0 + 2
        g.e(f"s_mul_i32 s{S_WA}, s{S_WAVE}, {self.MT*16*128}")
        if self.a_base:
            g.e(f"s_add_u32 s{S_WA}, s{S_WA}, {self.a_base}")
        g.e(f"v_lshrrev_b32 v{t0}, 3, v{vlane}")
        g.e(f"v_and_b32 v{t1}, 7, v{vlane}")
        g.e(f"v_xor_b32 v{t1}, v{t1}, v{t0}")
        g.e(f"v_add_u32 v{t0}, s{srow0}, v{t0}")
        g.e(f"s_mov_b32 s{S_T}, {lda}")
        g.e(f"v_mul_lo_u32 v{t0}, v{t0}, s{S_T}")
        g.e(f"v_lshl_add_u32 v{t0}, v{t1}, 4, v{t0}")
        for q in range(self.DA):
            g.e(f"v_add_u32 v{self.vDmaA+q}, {8*q*lda}, v{t0}")
        g.e(f"v_and_b32 v{t0}, 15, v{vlane}")
        g.e(f"v_lshrrev_b32 v{t1}, 4, v{vlane}")
        g.e(f"v_and_b32 v{t2}, 7, v{vlane}")
        g.e(f"v_xor_b32 v{t1}, v{t1}, v{t2}")
        g.e(f"v_lshlrev_b32 v{t1}, 4, v{t1}")
        g.e(f"v_lshl_add_u32 v{t0}, v{t0}, 7, v{t1}")
        g.e(f"v_add_u32 v{self.vAaddr}, s{S_WA}, v{t0}")
        g.e(f"v_xor_b32 v{self.vAaddr+1}, 64, v{self.vAaddr}")

    def dma_items(self, slot):
        items = []
        if self.a_mode == 'lds' and 'noa' not in EXP:
            for q in range(self.DA):
                pre = [f"s_add_u32 m0, s{S_WA}, {slot*self.ASTAGE + q*1024}"]
                main = [f"buffer_load_dwordx4 v{self.vDmaA+q}, s[{S_A}:{S_A+3}], s{S_KA} offen lds"]
                items.append((pre, main))
        if 'nob' not in EXP:
            for q in range(self.D):
                pre = [f"s_add_u32 m0, s{S_WB}, {slot*self.STAGE + q*1024}"]
                main = [f"buffer_load_dwordx4 v{self.vDma+q}, s[{S_B}:{S_B+3}], s{S_KB} offen lds"]
                if q == self.nfull:
                    main = ["s_mov_b32 exec_hi, 0"] + main + ["s_mov_b32 exec_hi, -1"]
                if q == self.D - 1:
                    main += self.next_k()
                items.append((pre, main))
        return items

    def next_k(self):
        W = self.rotw
        if W == 0:
            return []
        if W <= 1:
            return [f"s_add_u32 s{S_KB}, s{S_KB}, {64*self.ldb}", f"s_add_u32 s{S_KA}, s{S_KA}, 128"]
        return [f"s_add_u32 s{S_J}, s{S_J}, 1",
                f"s_add_u32 s{S_KA}, s{S_J}, s{S_ROT}",
                f"s_and_b32 s{S_KA}, s{S_KA}, {W-1}",
                f"s_and_b32 s{S_KB}, s{S_J}, {(~(W-1)) & 0xffff}",
                f"s_or_b32 s{S_KA}, s{S_KA}, s{S_KB}",
                f"s_mul_i32 s{S_KB}, s{S_KA}, {64*self.ldb}",
                f"s_lshl_b32 s{S_KA}, s{S_KA}, 7"]

    def init_k(self):
        g = self.g
        g.e(f"s_mov_b32 s{S_J}, 0")
        g.e(f"s_and_b32 s{S_KA}, s{S_ROT}, {max(self.rotw-1,0)}")
        g.e(f"s_mul_i32 s{S_KB}, s{S_KA}, {64*self.ldb}")
        g.e(f"s_lshl_b32 s{S_KA}, s{S_KA}, 7")

    def issue(self, slot):
        for pre, main in self.dma_items(slot):
            for x in pre:
                self.g.e(x)
            self.g.e("s_nop 0")
            for x in main:
                self.g.e(x)

    def reads(self, slot, ks, dst):
        out = []
        if 'nord' in EXP:
            return out
        if self.a_mode == 'lds':
            for mt in range(self.MT):
                r = self.vA[dst] + mt * 4
                out.append(f"ds_read_b128 v[{r}:{r+3}], v{self.vAaddr+ks} offset:{slot*self.ASTAGE + mt*2048}")
        for nt in range(self.NT):
            for half in range(2):
                r = self.vB[dst] + nt * 4 + half * 2
                off = (32 * ks + 8 * half) * self.S + 32 * nt
                out.append(f"ds_read_b64_tr_b16 v[{r}:{r+1}], v{self.vBaddr+slot} offset:{off}")
        return out

    def phase(self, cur, afr, acc, rd, dma=None, first=0):
        g = self.g
        rd = list(rd)
        dma = list(dma or [])
        mf = [(mt, nt) for nt in range(self.NT) for mt in range(self.MT)]
        n = len(mf)
        pos = {}
        if dma:
            gap = max(2, (n - 1) // len(dma))
            for j, it in enumerate(dma):
                p = min(j * gap + first, n - 2)
                pos.setdefault(p, []).append(('pre', it))
        pend = []
        for i, (mt, nt) in enumerate(mf):
            for _ in range(2):
                if rd:
                    g.e(rd.pop(0))
            b = self.vB[cur] + nt * 4
            a = afr(mt)
            c = acc(mt, nt)
            if 'nomf' not in EXP:
                g.e(f"v_mfma_f32_16x16x32_bf16 {c}, v[{b}:{b+3}], v[{a}:{a+3}], {c}")
            for it in pend:
                for x in it[1]:
                    g.e(x)
            pend = []
            todo = pos.get(i, [])
            for k_, (_, it) in enumerate(todo):
                if k_ > 0:
                    g.e("s_nop 0")
                    for x in pend[0][1]:
                        g.e(x)
                    pend = []
                for x in it[0]:
                    g.e(x)
                pend.append(it)
        for it in pend:
            g.e("s_nop 0")
            for x in it[1]:
                g.e(x)
        for x in rd:
            g.e(x)


def unpack_lo(g, d, s):
    g.e(f"v_lshlrev_b32 v{d}, 16, v{s}")


def unpack_hi(g, d, s):
    g.e(f"v_and_b32 v{d}, 0xffff0000, v{s}")


def gemm_global_kernel(kname, kind):
    g = G()
    if kind == 'k4':
        MT, NT, BN, NS, KT = 2, 9, 144, int(os.environ.get('NS4','4')), 32
        lda, ldb = 4096, 288
        nwg = 256
    else:
        MT, NT, BN, NS, KT = 1, 5, 80, 4, 36
        lda, ldb = 4608, 1152
        nwg = 256
    if 'NWG' in os.environ: nwg = int(os.environ['NWG'])
    prologue(g, kname, nwg)
    g.e("v_and_b32 v1, 63, v0")
    g.e("v_lshrrev_b32 v2, 6, v0")
    g.e("s_nop 0")
    g.e(f"v_readfirstlane_b32 s{S_ROLE}, v2")
    g.e(f"s_and_b32 s{S_WAVE}, s{S_ROLE}, 3")
    g.e(f"s_lshr_b32 s{S_ROLE}, s{S_ROLE}, 2")
    g.e(f"s_and_b32 s{S_T}, s2, 7")
    g.e(f"s_lshr_b32 s{S_T+1}, s2, 3")
    if kind == 'k4':
        g.e(f"s_lshr_b32 s{S_M0}, s{S_T}, 1")
        g.e(f"s_lshl_b32 s{S_M0}, s{S_M0}, 2")
        g.e(f"s_and_b32 s{S_T+2}, s{S_T+1}, 3")
        g.e(f"s_add_u32 s{S_M0}, s{S_M0}, s{S_T+2}")
        g.e(f"s_lshl_b32 s{S_M0}, s{S_M0}, 7")
        g.e(f"s_and_b32 s{S_N0}, s{S_T}, 1")
        g.e(f"s_lshl_b32 s{S_N0}, s{S_N0}, 3")
        g.e(f"s_lshr_b32 s{S_T+2}, s{S_T+1}, 2")
        g.e(f"s_add_u32 s{S_N0}, s{S_N0}, s{S_T+2}")
        g.e(f"s_mul_i32 s{S_N0}, s{S_N0}, 144")
        g.e(f"s_and_b32 s{S_ROT}, s{S_T+1}, 3")
        g.e(f"s_lshl_b32 s{S_ROT}, s{S_ROT}, 1")
        g.e(f"s_add_u32 s{S_ROT}, s{S_ROT}, s{S_T+2}")
        if int(os.environ.get('ROTW', '8')) > 8:
            g.e(f"s_mul_i32 s{S_ROT}, s{S_ROT}, {int(os.environ.get('ROTW', '8'))//8}")
    else:
        g.e(f"s_lshl_b32 s{S_M0}, s{S_T}, 2")
        g.e(f"s_lshr_b32 s{S_T+2}, s{S_T+1}, 3")
        g.e(f"s_add_u32 s{S_M0}, s{S_M0}, s{S_T+2}")
        g.e(f"s_lshl_b32 s{S_M0}, s{S_M0}, 6")
        g.e(f"s_and_b32 s{S_N0}, s{S_T+1}, 7")
        g.e(f"s_mul_i32 s{S_N0}, s{S_N0}, 72")
        g.e(f"s_lshr_b32 s{S_ROT}, s{S_T+1}, 1")
        g.e(f"s_add_u32 s{S_ROT}, s{S_ROT}, s{S_T+2}")
    if 'same' in EXP:
        g.e(f"s_mov_b32 s{S_M0}, 0")
        g.e(f"s_mov_b32 s{S_N0}, 0")
    g.e("s_waitcnt lgkmcnt(0)")
    if kind == 'k4':
        srd(g, S_A, P_WSP, 0, 2048 * 2048 * 2)
        srd(g, S_B, P_WS, Z2N_OFF, Z_SZ)
        srd(g, S_C, P_WS, Z1_OFF, Z_SZ)
        srd(g, S_O, P_WS, U_OFF, Z_SZ)
        srd(g, S_E, P_BSP, 0, 4096)
    else:
        srd(g, S_A, P_WS, U_OFF, Z_SZ)
        srd(g, S_B, P_WOUT, 0, 2304 * 576 * 2)
        srd(g, S_C, P_WS, H_OFF, H_SZ)
        srd(g, S_O, P_OUT, 0, H_SZ)
    NACC = MT * NT * 4
    vacc = 8
    gm = Gemm(g, MT, NT, BN, NS, ldb, 'lds', vacc + NACC)
    g.e(f"s_mul_i32 s{S_T+3}, s{S_WAVE}, {16*MT}")
    g.e(f"s_add_u32 s{S_T+3}, s{S_T+3}, s{S_M0}")
    g.e(f"s_lshl_b32 s{S_T+4}, s{S_N0}, 1")
    if kind == 'k4':
        g.e(f"s_mul_i32 s{S_T+5}, s{S_N0}, 4096")
        gm.setup(1, 2, col0_sgpr=S_T + 5)
    else:
        gm.setup(1, 2, col0_sgpr=S_T + 4)
    gm.setup_a(1, 2, lda, S_T + 3)
    gm.rotw = int(os.environ.get('ROTW', '8'))
    if kind == 'k5': gm.rotw = min(gm.rotw, 4)
    gm.init_k()
    g.e(f"s_cmp_eq_u32 s{S_ROLE}, 0")
    g.e(f"s_cbranch_scc1 {kname}_comp")
    for j in range(NS):
        gm.issue(j)
    g.e(f"s_waitcnt vmcnt({(NS-1)*gm.G})")
    g.e("s_barrier")
    g.e(f"s_mov_b32 s{S_LOOP}, {KT//NS}")
    g.lab(f"{kname}_lloop")
    for s in range(NS):
        g.e(f"s_waitcnt vmcnt({(NS-2)*gm.G})")
        g.e("s_barrier")
        gm.issue(s)
    g.e(f"s_sub_u32 s{S_LOOP}, s{S_LOOP}, 1")
    g.e(f"s_cmp_lg_u32 s{S_LOOP}, 0")
    g.e(f"s_cbranch_scc1 {kname}_lloop")
    g.e("s_waitcnt vmcnt(0)")
    if kind == 'k4':
        g.e("s_barrier")
    g.e(f"s_branch {kname}_end")
    g.lab(f"{kname}_comp")
    for i in range(NACC):
        g.e(f"v_mov_b32 v{vacc+i}, 0")
    acc = lambda mt, nt: f"v[{vacc+(mt*NT+nt)*4}:{vacc+(mt*NT+nt)*4+3}]"
    g.e("s_barrier")
    for x in gm.reads(0, 0, 0):
        g.e(x)
    if 'stamp' in EXP:
        g.e("s_memrealtime s[92:93]")
    g.e(f"s_mov_b32 s{S_LOOP}, {KT//NS}")
    g.lab(f"{kname}_loop")
    for s in range(NS):
        g.e("s_waitcnt lgkmcnt(0)")
        gm.phase(0, lambda mt: gm.vA[0] + mt * 4, acc, gm.reads(s, 1, 1))
        g.e(f"s_waitcnt lgkmcnt(0)")
        g.e("s_barrier")
        gm.phase(1, lambda mt: gm.vA[1] + mt * 4, acc, gm.reads((s + 1) % NS, 0, 0))
    g.e(f"s_sub_u32 s{S_LOOP}, s{S_LOOP}, 1")
    g.e(f"s_cmp_lg_u32 s{S_LOOP}, 0")
    g.e(f"s_cbranch_scc1 {kname}_loop")
    g.e("s_waitcnt vmcnt(0) lgkmcnt(0)")
    if 'stamp' in EXP:
        g.e("s_memrealtime s[94:95]")
    vt = gm.vB[0]
    voff = vt
    vtmp = vt + 4
    ldc = 4608 if kind == 'k4' else 1152
    g.e(f"v_and_b32 v{vtmp}, 15, v1")
    g.e(f"v_add_u32 v{vtmp}, s{S_T+3}, v{vtmp}")
    g.e(f"s_mov_b32 s{S_T}, {ldc}")
    g.e(f"v_mul_lo_u32 v{vtmp+1}, v{vtmp}, s{S_T}")
    g.e(f"v_lshrrev_b32 v{vtmp+2}, 4, v1")
    g.e(f"v_lshl_add_u32 v{vtmp+1}, v{vtmp+2}, 3, v{vtmp+1}")
    g.e(f"v_add_u32 v{vtmp+1}, s{S_T+4}, v{vtmp+1}")
    for mt in range(MT):
        g.e(f"v_add_u32 v{voff+mt}, {16*mt*ldc}, v{vtmp+1}")
    if kind == 'k4':
        vb = vtmp + 4
        for mt in range(MT):
            g.e(f"v_add_u32 v{vtmp+3}, {16*mt}, v{vtmp}")
            g.e(f"v_lshlrev_b32 v{vtmp+3}, 1, v{vtmp+3}")
            g.e(f"buffer_load_ushort v{vb+mt}, v{vtmp+3}, s[{S_E}:{S_E+3}], 0 offen")
        vq = vb + MT
        vz = (vq + 9 + 3) // 4 * 4
        w = vz + 36
        g.e(f"s_mul_i32 s{S_T}, s{S_T+3}, 4608")
        g.e(f"s_add_u32 s{S_T}, s{S_T}, s{S_T+4}")
        for q in range(9):
            g.e(f"v_add_u32 v{w}, {q*64}, v1")
            g.e(f"v_mul_u32_u24 v{w+1}, 3641, v{w}")
            g.e(f"v_lshrrev_b32 v{w+1}, 16, v{w+1}")
            g.e(f"v_mul_u32_u24 v{w+2}, 18, v{w+1}")
            g.e(f"v_sub_u32 v{w}, v{w}, v{w+2}")
            g.e(f"v_mul_u32_u24 v{w+1}, 4608, v{w+1}")
            g.e(f"v_lshl_add_u32 v{w}, v{w}, 4, v{w+1}")
            g.e(f"v_add_u32 v{vq+q}, s{S_T}, v{w}")
            g.e(f"buffer_load_dwordx4 v[{vz+4*q}:{vz+4*q+3}], v{vq+q}, s[{S_C}:{S_C+3}], 0 offen")
        g.e("s_barrier")
        g.e(f"s_mul_i32 s{S_T+1}, s{S_WAVE}, 9216")
        g.e(f"v_and_b32 v{w}, 15, v1")
        g.e(f"v_mul_u32_u24 v{w}, 288, v{w}")
        g.e(f"v_lshrrev_b32 v{w+1}, 4, v1")
        g.e(f"v_lshl_add_u32 v{w}, v{w+1}, 3, v{w}")
        g.e(f"v_add_u32 v{voff}, s{S_T+1}, v{w}")
        g.e(f"v_lshlrev_b32 v{w}, 4, v1")
        g.e(f"v_add_u32 v{voff+1}, s{S_T+1}, v{w}")
        g.e("s_waitcnt vmcnt(9)")
        for mt in range(MT):
            g.e(f"v_lshlrev_b32 v{vb+mt}, 16, v{vb+mt}")
        for mt in range(MT):
            for nt in range(NT):
                a = vacc + (mt * NT + nt) * 4
                for p in range(2):
                    g.e(f"v_cvt_pk_bf16_f32 v{w}, v{a+2*p}, v{a+2*p+1}")
                    unpack_lo(g, w + 1, w)
                    unpack_hi(g, w + 2, w)
                    g.e(f"v_add_f32 v{w+1}, v{w+1}, v{vb+mt}")
                    g.e(f"v_add_f32 v{w+2}, v{w+2}, v{vb+mt}")
                    g.e(f"v_cvt_pk_bf16_f32 v{a+p}, v{w+1}, v{w+2}")
                g.e(f"ds_write_b64 v{voff}, v[{a}:{a+1}] offset:{mt*16*288 + nt*32}")
        g.e("s_waitcnt lgkmcnt(0)")
        for q in range(9):
            g.e(f"ds_read_b128 v[{vacc+4*q}:{vacc+4*q+3}], v{voff+1} offset:{q*1024}")
        for q in range(9):
            g.e(f"s_waitcnt vmcnt({8-q}) lgkmcnt({8-q})") if q == 0 else g.e(f"s_waitcnt lgkmcnt({8-q})")
            if q == 0:
                g.e("s_waitcnt vmcnt(0)")
            for d in range(4):
                gq = vacc + 4 * q + d
                z = vz + 4 * q + d
                unpack_lo(g, w + 1, gq)
                unpack_hi(g, w + 2, gq)
                unpack_lo(g, w + 3, z)
                unpack_hi(g, w + 4, z)
                g.e(f"v_mul_f32 v{w+1}, v{w+1}, v{w+3}")
                g.e(f"v_mul_f32 v{w+2}, v{w+2}, v{w+4}")
                g.e(f"v_cvt_pk_bf16_f32 v{z}, v{w+1}, v{w+2}")
            g.e(f"buffer_store_dwordx4 v[{vz+4*q}:{vz+4*q+3}], v{vq+q}, s[{S_O}:{S_O+3}], 0 offen")
        vmax = w + 5
    else:
        vz = (vtmp + 6) // 2 * 2
        vlast = vtmp + 4
        for mt in range(MT):
            for nt in range(NT):
                r = vz + (mt * NT + nt) * 2
                g.e(f"buffer_load_dwordx2 v[{r}:{r+1}], v{voff+mt}, s[{S_C}:{S_C+3}], 0 offen offset:{nt*32}")
        g.e(f"v_cmp_gt_u32 vcc, 32, v1")
        g.e(f"v_mov_b32 v{vtmp+3}, 0x40000000")
        g.e(f"v_cndmask_b32 v{vlast}, v{vtmp+3}, v{voff}, vcc")
        w = vz + MT * NT * 2
        g.e("s_waitcnt vmcnt(0)")
        for mt in range(MT):
            for nt in range(NT):
                a = vacc + (mt * NT + nt) * 4
                z = vz + (mt * NT + nt) * 2
                for p in range(2):
                    g.e(f"v_cvt_pk_bf16_f32 v{w}, v{a+2*p}, v{a+2*p+1}")
                    unpack_lo(g, w + 1, w)
                    unpack_hi(g, w + 2, w)
                    unpack_lo(g, w + 3, z + p)
                    unpack_hi(g, w + 4, z + p)
                    g.e(f"v_add_f32 v{w+1}, v{w+1}, v{w+3}")
                    g.e(f"v_add_f32 v{w+2}, v{w+2}, v{w+4}")
                    g.e(f"v_cvt_pk_bf16_f32 v{z+p}, v{w+1}, v{w+2}")
                vo = vlast if nt == NT - 1 else voff + mt
                g.e(f"buffer_store_dwordx2 v[{z}:{z+1}], v{vo}, s[{S_O}:{S_O+3}], 0 offen offset:{nt*32}")
        vmax = w + 5
    epilogue(g, kname)
    vmax = max(vmax, gm.vend)
    assert vmax <= 256, vmax
    return g.text(), descriptor(kname, vmax), gm.lds_bytes


def wave_setup(g):
    g.e("v_and_b32 v1, 63, v0")
    g.e("v_lshrrev_b32 v2, 6, v0")
    g.e("s_nop 0")
    g.e(f"v_readfirstlane_b32 s{S_ROLE}, v2")
    g.e(f"s_and_b32 s{S_WAVE}, s{S_ROLE}, 3")
    g.e(f"s_lshr_b32 s{S_ROLE}, s{S_ROLE}, 2")


def xor_reduce(g, vals, vtmp, vaddr16, vaddr32):
    for va in (vaddr16, vaddr32):
        for i, v in enumerate(vals):
            g.e(f"ds_bpermute_b32 v{vtmp+i}, v{va}, v{v}")
        g.e("s_waitcnt lgkmcnt(0)")
        for i, v in enumerate(vals):
            g.e(f"v_add_f32 v{v}, v{v}, v{vtmp+i}")


def bf16_round(g, v, t):
    g.e(f"v_cvt_pk_bf16_f32 v{t}, v{v}, v{v}")
    g.e(f"v_lshlrev_b32 v{v}, 16, v{t}")


def ln_from_sums(g, vs, vq, n, vm, vr, t):
    g.e(f"v_mul_f32 v{vm}, {1.0/n!r}, v{vs}")
    g.e(f"v_mul_f32 v{vr}, {1.0/n!r}, v{vq}")
    g.e(f"v_fma_f32 v{vr}, -v{vm}, v{vm}, v{vr}")
    g.e(f"v_max_f32 v{vr}, 0, v{vr}")
    bf16_round(g, vm, t)
    bf16_round(g, vr, t)
    g.e(f"v_add_f32 v{vr}, 0x3727c5ac, v{vr}")
    bf16_round(g, vr, t)
    g.e(f"v_sqrt_f32 v{vr}, v{vr}")
    g.e("s_nop 0")
    bf16_round(g, vr, t)
    g.e(f"v_rcp_f32 v{vr}, v{vr}")
    g.e("s_nop 0")


GK1 = -2.0 * 1.4426950408889634 * 0.7978845608028654
GK2 = GK1 * 0.044715


def gelu_pair(g, x0, x1, vk1, vk2, t):
    g.e(f"v_mul_f32 v{t}, v{x0}, v{x0}")
    g.e(f"v_mul_f32 v{t+1}, v{x1}, v{x1}")
    g.e(f"v_fma_f32 v{t}, v{t}, v{vk2}, v{vk1}")
    g.e(f"v_fma_f32 v{t+1}, v{t+1}, v{vk2}, v{vk1}")
    g.e(f"v_mul_f32 v{t}, v{t}, v{x0}")
    g.e(f"v_mul_f32 v{t+1}, v{t+1}, v{x1}")
    g.e(f"v_exp_f32 v{t}, v{t}")
    g.e(f"v_exp_f32 v{t+1}, v{t+1}")
    g.e(f"v_add_f32 v{t}, 1.0, v{t}")
    g.e(f"v_add_f32 v{t+1}, 1.0, v{t+1}")
    g.e(f"v_rcp_f32 v{t}, v{t}")
    g.e(f"v_rcp_f32 v{t+1}, v{t+1}")
    g.e(f"v_mul_f32 v{x0}, v{x0}, v{t}")
    g.e(f"v_mul_f32 v{x1}, v{x1}, v{t+1}")


import struct
def fhex(x):
    return "0x%08x" % struct.unpack("<I", struct.pack("<f", x))[0]


def k3_kernel():
    kname = "k3_kernel"
    g = G()
    MT, NT, BN, NS = 2, 9, 144, 3
    lda, ldb = 1152, 9216
    prologue(g, kname, 256)
    wave_setup(g)
    g.e(f"s_and_b32 s{S_T}, s2, 7")
    g.e(f"s_lshr_b32 s{S_T+1}, s2, 3")
    g.e(f"s_lshr_b32 s{S_M0}, s{S_T}, 1")
    g.e(f"s_lshl_b32 s{S_M0}, s{S_M0}, 2")
    g.e(f"s_and_b32 s{S_T+2}, s{S_T+1}, 3")
    g.e(f"s_add_u32 s{S_M0}, s{S_M0}, s{S_T+2}")
    g.e(f"s_lshl_b32 s{S_M0}, s{S_M0}, 7")
    S_P = S_T + 5
    g.e(f"s_and_b32 s{S_P}, s{S_T}, 1")
    g.e(f"s_lshl_b32 s{S_P}, s{S_P}, 3")
    g.e(f"s_lshr_b32 s{S_T+2}, s{S_T+1}, 2")
    g.e(f"s_add_u32 s{S_P}, s{S_P}, s{S_T+2}")
    g.e(f"s_mul_i32 s{S_N0}, s{S_P}, 288")
    g.e("s_waitcnt lgkmcnt(0)")
    srd(g, S_A, P_WS, H_OFF, H_SZ)
    srd(g, S_B, P_WIN, 0, 576 * 4608 * 2)
    srd(g, S_C, P_WS, CS_OFF, CS_SZ)
    srd(g, S_E, P_WS, HST_OFF, HST_SZ)
    srd(g, S_F, P_WS, ST_OFF, ST_SZ)
    g.e(f"s_cmp_ge_u32 s{S_P}, 8")
    g.e(f"s_mov_b32 s{S_T+1}, {Z1_OFF}")
    g.e(f"s_cselect_b32 s{S_T}, {Z2_OFF}, s{S_T+1}")
    g.e(f"s_add_u32 s{S_O}, s{P_WS}, s{S_T}")
    g.e(f"s_addc_u32 s{S_O+1}, s{P_WS+1}, 0")
    g.e(f"s_and_b32 s{S_O+1}, s{S_O+1}, 0xffff")
    g.e(f"s_mov_b32 s{S_O+2}, {Z_SZ}")
    g.e(f"s_mov_b32 s{S_O+3}, 0x00020000")
    NACC = MT * NT * 4
    vacc = 8
    gm = Gemm(g, MT, NT, BN, NS, ldb, 'lds', vacc + NACC)
    gm.rotw = 0
    S_WR = S_T + 3
    S_CB = S_T + 4
    g.e(f"s_mul_i32 s{S_WR}, s{S_WAVE}, {16*MT}")
    g.e(f"s_add_u32 s{S_WR}, s{S_WR}, s{S_M0}")
    g.e(f"s_lshl_b32 s{S_CB}, s{S_N0}, 1")
    gm.setup(1, 2, col0_sgpr=S_CB)
    gm.setup_a(1, 2, lda, S_WR)
    T = 18
    SCR = gm.lds_bytes
    lds_total = SCR + 4 * 9216
    g.e(f"s_cmp_eq_u32 s{S_ROLE}, 0")
    g.e(f"s_cbranch_scc1 {kname}_comp")
    def grp(i):
        t, ks = i // 9, i % 9
        g.e(f"s_mov_b32 s{S_KA}, {ks*128}")
        g.e(f"s_mov_b32 s{S_KB}, {ks*64*ldb + t*288}")
        gm.issue(i % NS)
    for j in range(NS):
        grp(j)
    g.e(f"s_waitcnt vmcnt({(NS-1)*gm.G})")
    g.e("s_barrier")
    for i in range(T):
        last = min(i + NS - 1, T - 1)
        g.e(f"s_waitcnt vmcnt({max(last-(i+1),0)*gm.G})")
        g.e("s_barrier")
        if i + NS < T:
            grp(i + NS)
    g.e(f"s_branch {kname}_end")
    g.lab(f"{kname}_comp")
    v = (gm.vend + 3) // 4 * 4
    vCS = v; v += 36
    vM = v; v += 2
    vR = v; v += 2
    vK = v; v += 2
    vP16, vP32, vWr, vRd = 2, 3, 4, 5
    vq = v; v += 9
    v = (v + 1) // 2 * 2
    vS = v; v += 4
    vCo = 6
    w = (v + 1) // 2 * 2
    assert w + 10 <= 256, w
    g.e(f"v_and_b32 v{w}, 15, v1")
    g.e(f"v_add_u32 v{w}, s{S_WR}, v{w}")
    g.e(f"v_mul_u32_u24 v{vCo}, 64, v{w}")
    for mt in range(MT):
        for i in range(4):
            g.e(f"buffer_load_dwordx4 v[{vacc+mt*24+4*i}:{vacc+mt*24+4*i+3}], v{vCo}, s[{S_E}:{S_E+3}], 0 offen offset:{mt*16*64 + 16*i}")
    g.e(f"v_lshrrev_b32 v{w}, 4, v1")
    g.e(f"v_lshlrev_b32 v{w}, 4, v{w}")
    g.e(f"s_lshl_b32 s{S_T}, s{S_N0}, 2")
    g.e(f"v_add_u32 v{vCo}, s{S_T}, v{w}")
    for nt in range(NT):
        g.e(f"buffer_load_dwordx4 v[{vCS+4*nt}:{vCS+4*nt+3}], v{vCo}, s[{S_C}:{S_C+3}], 0 offen offset:{nt*64}")
    g.e(f"v_mov_b32 v{vK}, {fhex(GK1)}")
    g.e(f"v_mov_b32 v{vK+1}, {fhex(GK2)}")
    g.e(f"v_xor_b32 v{vP16}, 16, v1")
    g.e(f"v_lshlrev_b32 v{vP16}, 2, v{vP16}")
    g.e(f"v_xor_b32 v{vP32}, 32, v1")
    g.e(f"v_lshlrev_b32 v{vP32}, 2, v{vP32}")
    g.e(f"s_and_b32 s{S_T}, s{S_P}, 7")
    g.e(f"s_mul_i32 s{S_T}, s{S_T}, 576")
    g.e(f"s_mul_i32 s{S_T+1}, s{S_WR}, 4608")
    g.e(f"s_add_u32 s{S_T}, s{S_T}, s{S_T+1}")
    for q in range(9):
        g.e(f"v_add_u32 v{w}, {q*64}, v1")
        g.e(f"v_mul_u32_u24 v{w+1}, 3641, v{w}")
        g.e(f"v_lshrrev_b32 v{w+1}, 16, v{w+1}")
        g.e(f"v_mul_u32_u24 v{w+2}, 18, v{w+1}")
        g.e(f"v_sub_u32 v{w}, v{w}, v{w+2}")
        g.e(f"v_mul_u32_u24 v{w+1}, 4608, v{w+1}")
        g.e(f"v_lshl_add_u32 v{w}, v{w}, 4, v{w+1}")
        g.e(f"v_add_u32 v{vq+q}, s{S_T}, v{w}")
    g.e(f"s_mul_i32 s{S_T+1}, s{S_WAVE}, 9216")
    g.e(f"s_add_u32 s{S_T+1}, s{S_T+1}, {SCR}")
    g.e(f"v_and_b32 v{w}, 15, v1")
    g.e(f"v_mul_u32_u24 v{w}, 288, v{w}")
    g.e(f"v_lshrrev_b32 v{w+1}, 4, v1")
    g.e(f"v_lshl_add_u32 v{w}, v{w+1}, 3, v{w}")
    g.e(f"v_add_u32 v{vWr}, s{S_T+1}, v{w}")
    g.e(f"v_lshlrev_b32 v{w}, 4, v1")
    g.e(f"v_add_u32 v{vRd}, s{S_T+1}, v{w}")
    g.e("s_waitcnt vmcnt(9)")
    for mt in range(MT):
        b = vacc + mt * 24
        for i in range(1, 8):
            g.e(f"v_add_f32 v{b}, v{b}, v{b+2*i}")
            g.e(f"v_add_f32 v{b+1}, v{b+1}, v{b+2*i+1}")
        ln_from_sums(g, b, b + 1, 576, vM + mt, vR + mt, w)
        g.e(f"v_sub_f32 v{vM+mt}, 0, v{vM+mt}")
    for i in range(NACC):
        g.e(f"v_mov_b32 v{vacc+i}, 0")
    acc = lambda mt, nt: f"v[{vacc+(mt*NT+nt)*4}:{vacc+(mt*NT+nt)*4+3}]"
    g.e("s_barrier")
    for x in gm.reads(0, 0, 0):
        g.e(x)
    if 'stamp' in EXP:
        g.e("s_memrealtime s[92:93]")
    for i in range(T):
        s = i % NS
        g.e("s_waitcnt lgkmcnt(0)")
        gm.phase(0, lambda mt: gm.vA[0] + mt * 4, acc, gm.reads(s, 1, 1))
        g.e(f"s_waitcnt lgkmcnt(0)")
        g.e("s_barrier")
        gm.phase(1, lambda mt: gm.vA[1] + mt * 4, acc, gm.reads((s + 1) % NS, 0, 0) if i + 1 < T else [])
        if i % 9 == 8:
            t = i // 9
            g.e("s_nop 7")
            g.e("s_nop 1")
            if t == 1:
                g.e("s_waitcnt vmcnt(9)")
            for k_ in range(4):
                g.e(f"v_mov_b32 v{vS+k_}, 0")
            for mt in range(MT):
                for nt in range(NT):
                    a = vacc + (mt * NT + nt) * 4
                    for r in range(4):
                        g.e(f"v_fma_f32 v{a+r}, v{vM+mt}, v{vCS+4*nt+r}, v{a+r}")
                    for r in range(4):
                        g.e(f"v_mul_f32 v{a+r}, v{a+r}, v{vR+mt}")
                    for p_ in range(2):
                        g.e(f"v_cvt_pk_bf16_f32 v{w+8}, v{a+2*p_}, v{a+2*p_+1}")
                        unpack_lo(g, w + 4, w + 8)
                        unpack_hi(g, w + 5, w + 8)
                        gelu_pair(g, w + 4, w + 5, vK, vK + 1, w)
                        g.e(f"v_cvt_pk_bf16_f32 v{a+p_}, v{w+4}, v{w+5}")
                        unpack_lo(g, w + 4, a + p_)
                        unpack_hi(g, w + 5, a + p_)
                        g.e(f"v_add_f32 v{vS+2*mt}, v{vS+2*mt}, v{w+4}")
                        g.e(f"v_fmac_f32 v{vS+2*mt+1}, v{w+4}, v{w+4}")
                        g.e(f"v_add_f32 v{vS+2*mt}, v{vS+2*mt}, v{w+5}")
                        g.e(f"v_fmac_f32 v{vS+2*mt+1}, v{w+5}, v{w+5}")
                    g.e(f"ds_write_b64 v{vWr}, v[{a}:{a+1}] offset:{mt*16*288 + nt*32}")
            if t == 0:
                for nt in range(NT):
                    g.e(f"buffer_load_dwordx4 v[{vCS+4*nt}:{vCS+4*nt+3}], v{vCo}, s[{S_C}:{S_C+3}], 0 offen offset:{nt*64+576}")
            g.e("s_waitcnt lgkmcnt(0)")
            for q in range(9):
                g.e(f"ds_read_b128 v[{vacc+4*q}:{vacc+4*q+3}], v{vRd} offset:{q*1024}")
            for q in range(9):
                g.e(f"s_waitcnt lgkmcnt({8-q})")
                g.e(f"buffer_store_dwordx4 v[{vacc+4*q}:{vacc+4*q+3}], v{vq+q}, s[{S_O}:{S_O+3}], 0 offen offset:{t*288}")
            g.e(f"s_cmp_lt_u32 s{S_P}, 8")
            g.e(f"s_cbranch_scc1 {kname}_nost{t}")
            xor_reduce(g, [vS, vS + 1, vS + 2, vS + 3], w, vP16, vP32)
            g.e(f"s_sub_u32 s{S_T}, s{S_P}, 8")
            g.e(f"s_lshl_b32 s{S_T}, s{S_T}, 4")
            g.e(f"s_add_u32 s{S_T}, s{S_T}, {t*8}")
            g.e(f"v_and_b32 v{w}, 15, v1")
            g.e(f"v_add_u32 v{w}, s{S_WR}, v{w}")
            g.e(f"v_lshlrev_b32 v{w}, 7, v{w}")
            g.e(f"v_add_u32 v{w}, s{S_T}, v{w}")
            g.e("v_cmp_gt_u32 vcc, 16, v1")
            g.e(f"s_and_saveexec_b64 s[{S_T+6}:{S_T+7}], vcc")
            for mt in range(MT):
                g.e(f"buffer_store_dwordx2 v[{vS+2*mt}:{vS+2*mt+1}], v{w}, s[{S_F}:{S_F+3}], 0 offen offset:{mt*16*128}")
            g.e(f"s_mov_b64 exec, s[{S_T+6}:{S_T+7}]")
            g.lab(f"{kname}_nost{t}")
            if t == 0:
                g.e("s_nop 1")
                for k_ in range(NACC):
                    g.e(f"v_mov_b32 v{vacc+k_}, 0")
    if 'stamp' in EXP:
        g.e("s_memrealtime s[94:95]")
    epilogue(g, kname)
    return g.text(), descriptor(kname, 256), lds_total


def kn_kernel():
    kname = "kn_kernel"
    g = G()
    prologue(g, kname, 256)
    g.e("v_and_b32 v1, 63, v0")
    g.e("v_lshrrev_b32 v2, 6, v0")
    g.e("s_nop 0")
    g.e(f"v_readfirstlane_b32 s{S_WAVE}, v2")
    g.e("s_waitcnt lgkmcnt(0)")
    srd(g, S_A, P_WS, Z2_OFF, Z_SZ)
    srd(g, S_O, P_WS, Z2N_OFF, Z_SZ)
    srd(g, S_F, P_WS, ST_OFF, ST_SZ)
    g.e(f"s_lshl_b32 s{S_M0}, s2, 3")
    g.e(f"s_lshl_b32 s{S_T}, s{S_WAVE}, 1")
    g.e(f"s_add_u32 s{S_M0}, s{S_M0}, s{S_T}")
    for q in range(5):
        g.e(f"v_add_u32 v2, {q*64}, v1")
        g.e(f"v_lshlrev_b32 v{10+q}, 4, v2")
        g.e(f"v_mul_u32_u24 v3, 3641, v2")
        g.e(f"v_lshrrev_b32 v3, 16, v3")
        g.e(f"v_mul_u32_u24 v4, 18, v3")
        g.e(f"v_sub_u32 v2, v2, v4")
        g.e(f"s_mov_b32 s{S_T}, 589824")
        g.e(f"v_mul_lo_u32 v3, v3, s{S_T}")
        g.e(f"v_lshl_add_u32 v{15+q}, v2, 4, v3")
    g.e("v_cmp_gt_u32 vcc, 32, v1")
    g.e("v_mov_b32 v2, 0x40000000")
    g.e("v_cndmask_b32 v14, v2, v14, vcc")
    g.e("v_cndmask_b32 v19, v2, v19, vcc")
    g.e("v_and_b32 v2, 15, v1")
    g.e("v_lshlrev_b32 v2, 3, v2")
    for rr in range(2):
        g.e(f"s_add_u32 s{S_T}, s{S_M0}, {rr}")
        g.e(f"s_mul_i32 s{S_T+1}, s{S_T}, 4608")
        g.e(f"s_lshl_b32 s{S_T+2}, s{S_T}, 7")
        g.e(f"buffer_load_dwordx2 v[{20+rr*2}:{21+rr*2}], v2, s[{S_F}:{S_F+3}], s{S_T+2} offen")
        for q in range(5):
            r = 24 + rr * 20 + q * 4
            g.e(f"buffer_load_dwordx4 v[{r}:{r+3}], v{10+q}, s[{S_A}:{S_A+3}], s{S_T+1} offen")
    for rr in range(2):
        g.e(f"s_waitcnt vmcnt({11 - rr*6})")
        a = 20 + rr * 2
        for sw in (0x041F, 0x081F, 0x101F, 0x201F):
            g.e(f"ds_swizzle_b32 v4, v{a} offset:{sw}")
            g.e(f"ds_swizzle_b32 v5, v{a+1} offset:{sw}")
            g.e("s_waitcnt lgkmcnt(0)")
            g.e(f"v_add_f32 v{a}, v{a}, v4")
            g.e(f"v_add_f32 v{a+1}, v{a+1}, v5")
        ln_from_sums(g, a, a + 1, 2304, 6 + rr * 2, 7 + rr * 2, 4)
    for rr in range(2):
        g.e(f"s_waitcnt vmcnt({5 - rr*5})")
        g.e(f"s_add_u32 s{S_T}, s{S_M0}, {rr}")
        g.e(f"s_mul_i32 s{S_T+1}, s{S_T}, 288")
        vm, vr = 6 + rr * 2, 7 + rr * 2
        for q in range(5):
            r = 24 + rr * 20 + q * 4
            for d in range(4):
                unpack_lo(g, 2, r + d)
                unpack_hi(g, 3, r + d)
                g.e(f"v_sub_f32 v2, v2, v{vm}")
                g.e(f"v_sub_f32 v3, v3, v{vm}")
                g.e(f"v_cvt_pk_bf16_f32 v{r+d}, v2, v3")
                unpack_lo(g, 2, r + d)
                unpack_hi(g, 3, r + d)
                g.e(f"v_mul_f32 v2, v2, v{vr}")
                g.e(f"v_mul_f32 v3, v3, v{vr}")
                g.e(f"v_cvt_pk_bf16_f32 v{r+d}, v2, v3")
            g.e(f"buffer_store_dwordx4 v[{r}:{r+3}], v{15+q}, s[{S_O}:{S_O+3}], s{S_T+1} offen")
    epilogue(g, kname)
    return g.text(), descriptor(kname, 64), 0


def k2_kernel():
    kname = "k2_kernel"
    g = G()
    NS = 4
    prologue(g, kname, 256)
    g.e("v_and_b32 v1, 63, v0")
    g.e("v_lshrrev_b32 v2, 6, v0")
    g.e("s_nop 0")
    g.e(f"v_readfirstlane_b32 s{S_WAVE}, v2")
    g.e(f"s_and_b32 s{S_T}, s2, 7")
    g.e(f"s_lshr_b32 s{S_T+1}, s2, 3")
    g.e(f"s_lshl_b32 s{S_M0}, s{S_T}, 3")
    g.e(f"s_lshr_b32 s{S_T+2}, s{S_T+1}, 2")
    g.e(f"s_add_u32 s{S_M0}, s{S_M0}, s{S_T+2}")
    S_CBI = S_T + 5
    g.e(f"s_and_b32 s{S_CBI}, s{S_T+1}, 3")
    g.e(f"s_mul_i32 s{S_N0}, s{S_CBI}, 144")
    g.e("s_waitcnt lgkmcnt(0)")
    srd(g, S_A, P_WS, PHIQ_OFF, PHIQ_SZ)
    srd(g, S_B, P_WO, 0, 576 * 576 * 2)
    srd(g, S_C, P_WS, KVT_OFF, KVT_SZ)
    srd(g, S_O, P_WS, H_OFF, H_SZ)
    srd(g, S_E, P_X, 0, H_SZ)
    srd(g, S_F, P_WS, HST_OFF, HST_SZ)
    OST = 1168
    OB = 0
    gm = Gemm(g, 1, 5, 144, NS, 1152, 'ext', 8, lds_base=32 * OST)
    gm.rotw = 1
    S_CB = S_T + 4
    g.e(f"s_lshl_b32 s{S_CB}, s{S_N0}, 1")
    gm.setup(1, 2, col0_sgpr=S_CB)
    S_NH = S_T + 6
    g.e(f"s_lshr_b32 s{S_NH}, s{S_WAVE}, 1")
    g.e(f"s_lshl_b32 s{S_T}, s{S_NH}, 7")
    for s_ in range(NS):
        g.e(f"v_add_u32 v{gm.vBaddr+s_}, s{S_T}, v{gm.vBaddr+s_}")
    g.e(f"s_mov_b32 s{S_KA}, 0")
    g.e(f"s_mov_b32 s{S_KB}, 0")
    for j in range(NS):
        gm.issue(j)
    v = (gm.vend + 3) // 4 * 4
    vacc = v; v += 20
    vL16 = v; v += 1
    vL8 = v; v += 1
    vL8k = v; v += 1
    vOW = v; v += 1
    vAr = v; v += 1
    v = (v + 3) // 4 * 4
    vD = v; v += 12
    w = v; v += 12
    vF = v
    assert vF + 120 <= 256
    g.e(f"v_lshlrev_b32 v{vL16}, 4, v1")
    g.e(f"v_and_b32 v{vL8}, 15, v1")
    g.e(f"v_lshlrev_b32 v{vL8}, 3, v{vL8}")
    g.e(f"v_lshlrev_b32 v{vL8k}, 3, v1")
    g.e(f"v_and_b32 v{w}, 15, v1")
    g.e(f"v_mul_u32_u24 v{w}, {OST}, v{w}")
    g.e(f"v_lshrrev_b32 v{w+1}, 4, v1")
    g.e(f"v_lshl_add_u32 v{vOW}, v{w+1}, 3, v{w}")
    g.e(f"s_mul_i32 s{S_T}, s{S_WAVE}, {8*36}")
    g.e(f"v_add_u32 v{vOW}, s{S_T}, v{vOW}")
    g.e(f"v_lshl_add_u32 v{vAr}, v{w+1}, 4, v{w}")
    g.e(f"s_and_b32 s{S_T}, s{S_WAVE}, 1")
    g.e(f"s_mul_i32 s{S_T}, s{S_T}, {16*OST}")
    g.e(f"v_add_u32 v{vAr}, s{S_T}, v{vAr}")
    S_PH = S_T + 7
    S_KV = S_T + 8
    g.e(f"s_mul_i32 s{S_PH}, s{S_M0}, {2*32*1152}")
    g.e(f"s_mul_i32 s{S_T}, s{S_WAVE}, {8*1152}")
    g.e(f"s_add_u32 s{S_PH}, s{S_PH}, s{S_T}")
    g.e(f"s_mul_i32 s{S_KV}, s{S_WAVE}, {8*4608}")
    nload = 0
    for bt in range(2):
        for hh in range(4):
            h = bt * 4 + hh
            b = vF + hh * 30
            for t in range(3):
                g.e(f"buffer_load_dwordx4 v[{b+6*t}:{b+6*t+3}], v{vL16}, s[{S_C}:{S_C+3}], s{S_KV} offen offset:{t*1536}")
                g.e(f"s_add_u32 s{S_T}, s{S_KV}, {t*1536+1024}")
                g.e(f"buffer_load_dwordx2 v[{b+6*t+4}:{b+6*t+5}], v{vL8k}, s[{S_C}:{S_C+3}], s{S_T} offen")
            for mt in range(2):
                g.e(f"s_add_u32 s{S_T}, s{S_PH}, {mt*32*1152}")
                g.e(f"buffer_load_dwordx4 v[{b+18+6*mt}:{b+18+6*mt+3}], v{vL16}, s[{S_A}:{S_A+3}], s{S_T} offen")
                g.e(f"buffer_load_dwordx2 v[{b+18+6*mt+4}:{b+18+6*mt+5}], v{vL8}, s[{S_A}:{S_A+3}], s{S_T} offen offset:1024")
            g.e(f"s_add_u32 s{S_KV}, s{S_KV}, 4608")
            g.e(f"s_add_u32 s{S_PH}, s{S_PH}, 1152")
        for hh in range(4):
            h = bt * 4 + hh
            b = vF + hh * 30
            g.e(f"s_waitcnt vmcnt({(3-hh)*10})")
            for mt in range(2):
                pa, pb = b + 18 + 6 * mt, b + 18 + 6 * mt + 4
                for t in range(3):
                    d = vD + 4 * t
                    g.e(f"v_mfma_f32_16x16x32_bf16 v[{d}:{d+3}], v[{b+6*t}:{b+6*t+3}], v[{pa}:{pa+3}], 0")
                g.e("s_nop 7")
                for t in range(3):
                    d = vD + 4 * t
                    g.e(f"v_mfma_f32_16x16x16_bf16 v[{d}:{d+3}], v[{b+6*t+4}:{b+6*t+5}], v[{pb}:{pb+1}], v[{d}:{d+3}]")
                g.e("s_nop 7")
                g.e("s_nop 1")
                bf16_round(g, vD + 8, w)
                g.e(f"v_add_f32 v{vD+8}, 0x358637bd, v{vD+8}")
                bf16_round(g, vD + 8, w)
                g.e(f"v_rcp_f32 v{vD+8}, v{vD+8}")
                for r in range(6):
                    bf16_round(g, vD + r, w + 1)
                for r in range(6):
                    g.e(f"v_mul_f32 v{vD+r}, v{vD+r}, v{vD+8}")
                g.e(f"v_cvt_pk_bf16_f32 v{w+2}, v{vD}, v{vD+1}")
                g.e(f"v_cvt_pk_bf16_f32 v{w+3}, v{vD+2}, v{vD+3}")
                g.e(f"v_cvt_pk_bf16_f32 v{w+6}, v{vD+4}, v{vD+5}")
                off = mt * 16 * OST + 36 * h
                g.e(f"ds_write_b32 v{vOW}, v{w+2} offset:{off}")
                g.e(f"ds_write_b32 v{vOW}, v{w+3} offset:{off+4}")
                g.e("s_mov_b64 exec, 0xffff")
                g.e(f"ds_write_b32 v{vOW}, v{w+6} offset:{off+32}")
                g.e("s_mov_b64 exec, -1")
    for i in range(20):
        g.e(f"v_mov_b32 v{vacc+i}, 0")
    vX = vF
    vXo = w + 8
    g.e(f"s_and_b32 s{S_T}, s{S_WAVE}, 1")
    g.e(f"s_lshl_b32 s{S_T}, s{S_T}, 4")
    g.e(f"s_lshl_b32 s{S_T+1}, s{S_M0}, 5")
    g.e(f"s_add_u32 s{S_T}, s{S_T}, s{S_T+1}")
    g.e(f"v_and_b32 v{w}, 15, v1")
    g.e(f"v_add_u32 v{w}, s{S_T}, v{w}")
    g.e(f"v_mov_b32 v{w+9}, v{w}")
    g.e(f"v_mul_u32_u24 v{w}, 1152, v{w}")
    g.e(f"v_lshrrev_b32 v{w+1}, 4, v1")
    g.e(f"v_lshl_add_u32 v{w}, v{w+1}, 3, v{w}")
    g.e(f"s_lshl_b32 s{S_T+1}, s{S_NH}, 7")
    g.e(f"s_add_u32 s{S_T+1}, s{S_T+1}, s{S_CB}")
    g.e(f"v_add_u32 v{vXo}, s{S_T+1}, v{w}")
    for nt in range(5):
        g.e(f"buffer_load_dwordx2 v[{vX+2*nt}:{vX+2*nt+1}], v{vXo}, s[{S_E}:{S_E+3}], 0 offen offset:{32*nt}")
    vAf = vX + 12
    acc = lambda mt, nt: f"v[{vacc+nt*4}:{vacc+nt*4+3}]"
    def rd(i, ks, dst):
        r = vAf + dst * 4
        return [f"ds_read_b128 v[{r}:{r+3}], v{vAr} offset:{(i*64+ks*32)*2}"] + gm.reads(i % NS, ks, dst)
    T = 9
    g.e(f"s_waitcnt vmcnt({(NS-1)*gm.D + 5}) lgkmcnt(0)")
    g.e("s_barrier")
    if 'dbgo' in EXP:
        g.e("s_cmp_lg_u32 s2, 0")
        g.e(f"s_cbranch_scc1 {kname}_nodbg")
        srd(g, S_A, P_WS, 0x3C00000, 65536)
        for q in range(37):
            g.e(f"v_lshlrev_b32 v{w}, 2, v0")
            g.e(f"ds_read_b32 v{w+1}, v{w} offset:{q*1024}")
            g.e("s_waitcnt lgkmcnt(0)")
            g.e(f"buffer_store_dword v{w+1}, v{w}, s[{S_A}:{S_A+3}], 0 offen offset:0")
            g.e(f"s_add_u32 s{S_A}, s{S_A}, 1024")
            g.e(f"s_addc_u32 s{S_A+1}, s{S_A+1}, 0")
        g.lab(f"{kname}_nodbg")
    for x in rd(0, 0, 0):
        g.e(x)
    issued = NS
    for i in range(T):
        g.e("s_waitcnt lgkmcnt(0)")
        gm.phase(0, lambda mt: vAf, acc, rd(i, 1, 1))
        if i + 1 < T:
            young = (issued - 1 - (i + 1)) * gm.D + (5 if i + 1 <= NS - 1 else 0)
            g.e(f"s_waitcnt vmcnt({young}) lgkmcnt(0)")
        else:
            g.e("s_waitcnt lgkmcnt(0)")
        g.e("s_barrier")
        if issued < T:
            gm.issue(issued % NS)
            issued += 1
        gm.phase(1, lambda mt: vAf + 4, acc, rd(i + 1, 0, 0) if i + 1 < T else [])
    g.e("s_waitcnt vmcnt(0)")
    g.e("s_nop 7")
    vS = w + 10
    g.e(f"v_mov_b32 v{vS}, 0")
    g.e(f"v_mov_b32 v{vS+1}, 0")
    g.e(f"s_cmp_eq_u32 s{S_NH}, 1")
    g.e(f"s_cselect_b32 s{S_T}, 0, 1.0")
    for nt in range(5):
        a = vacc + 4 * nt
        for p_ in range(2):
            g.e(f"v_cvt_pk_bf16_f32 v{w}, v{a+2*p_}, v{a+2*p_+1}")
            unpack_lo(g, w + 1, w)
            unpack_hi(g, w + 2, w)
            unpack_lo(g, w + 3, vX + 2 * nt + p_)
            unpack_hi(g, w + 4, vX + 2 * nt + p_)
            g.e(f"v_add_f32 v{w+1}, v{w+1}, v{w+3}")
            g.e(f"v_add_f32 v{w+2}, v{w+2}, v{w+4}")
            g.e(f"v_cvt_pk_bf16_f32 v{vX+2*nt+p_}, v{w+1}, v{w+2}")
            unpack_lo(g, w + 1, vX + 2 * nt + p_)
            unpack_hi(g, w + 2, vX + 2 * nt + p_)
            if nt == 0:
                g.e(f"v_mul_f32 v{w+1}, s{S_T}, v{w+1}")
                g.e(f"v_mul_f32 v{w+2}, s{S_T}, v{w+2}")
            g.e(f"v_add_f32 v{vS}, v{vS}, v{w+1}")
            g.e(f"v_fmac_f32 v{vS+1}, v{w+1}, v{w+1}")
            g.e(f"v_add_f32 v{vS}, v{vS}, v{w+2}")
            g.e(f"v_fmac_f32 v{vS+1}, v{w+2}, v{w+2}")
        g.e(f"buffer_store_dwordx2 v[{vX+2*nt}:{vX+2*nt+1}], v{vXo}, s[{S_O}:{S_O+3}], 0 offen offset:{32*nt}")
    g.e(f"v_xor_b32 v{w+2}, 16, v1")
    g.e(f"v_lshlrev_b32 v{w+2}, 2, v{w+2}")
    g.e(f"v_xor_b32 v{w+3}, 32, v1")
    g.e(f"v_lshlrev_b32 v{w+3}, 2, v{w+3}")
    xor_reduce(g, [vS, vS + 1], w, w + 2, w + 3)
    g.e(f"s_lshl_b32 s{S_T}, s{S_CBI}, 1")
    g.e(f"s_add_u32 s{S_T}, s{S_T}, s{S_NH}")
    g.e(f"s_lshl_b32 s{S_T}, s{S_T}, 3")
    g.e(f"v_lshlrev_b32 v{w}, 6, v{w+9}")
    g.e(f"v_add_u32 v{w}, s{S_T}, v{w}")
    g.e("s_mov_b64 exec, 0xffff")
    g.e(f"buffer_store_dwordx2 v[{vS}:{vS+1}], v{w}, s[{S_F}:{S_F+3}], 0 offen")
    g.e("s_mov_b64 exec, -1")
    epilogue(g, kname)
    return g.text(), descriptor(kname, 256), 32 * OST + gm.lds_bytes


LOG2E = 1.4426950408889634


def k1_kernel():
    kname = "k1_kernel"
    g = G()
    MT, NT, BN, NS, T = 1, 14, 240, 3, 9
    prologue(g, kname, 256)
    wave_setup(g)
    S_HG, S_RB = S_T + 5, S_T + 6
    g.e(f"s_and_b32 s{S_HG}, s2, 7")
    g.e(f"s_lshr_b32 s{S_RB}, s2, 3")
    g.e(f"s_lshl_b32 s{S_M0}, s{S_RB}, 6")
    g.e("s_waitcnt lgkmcnt(0)")
    srd(g, S_A, P_X, 0, H_SZ)
    srd(g, S_B, P_WQKV, 0, 576 * 1728 * 2)
    srd(g, S_C, P_WPHI, 0, 32 * 648)
    srd(g, S_O, P_WS, PHIQ_OFF, PHIQ_SZ)
    srd(g, S_E, P_WS, KVP_OFF, KVP_SZ)
    srd(g, S_F, P_WS, KVT_OFF, KVT_SZ)
    vacc = 8
    vcs = vacc + 56
    vone = vcs + 16
    gm = Gemm(g, MT, NT, BN, NS, 3456, 'lds', vone + 4, lds_base=36864)
    gm.rotw = 0
    S_WR, S_CB = S_T + 3, S_T + 4
    g.e(f"s_lshl_b32 s{S_WR}, s{S_WAVE}, 4")
    g.e(f"s_add_u32 s{S_WR}, s{S_WR}, s{S_M0}")
    g.e(f"s_mul_i32 s{S_CB}, s{S_HG}, 144")

    def colmap(g, vc, t1, t3):
        g.e(f"v_subrev_u32 v{t1}, 27, v{vc}")
        g.e(f"v_cmp_le_u32 vcc, 27, v{vc}")
        g.e("s_nop 1")
        g.e(f"v_cndmask_b32 v{vc}, v{vc}, v{t1}, vcc")
        g.e(f"v_mul_u32_u24 v{t1}, 7282, v{vc}")
        g.e(f"v_lshrrev_b32 v{t1}, 16, v{t1}")
        g.e(f"v_mul_u32_u24 v{t3}, 9, v{t1}")
        g.e(f"v_sub_u32 v{vc}, v{vc}, v{t3}")
        g.e(f"v_lshlrev_b32 v{vc}, 4, v{vc}")
        g.e(f"v_mul_u32_u24 v{t1}, 1152, v{t1}")
        g.e(f"v_add_u32 v{vc}, v{vc}, v{t1}")
    for c in range(27):
        assert (c * 7282) >> 16 == c // 9
    gm.setup(1, 2, colmap=colmap, col0_sgpr=S_CB)
    gm.setup_a(1, 2, 1152, S_WR)
    RING = gm.lds_bytes
    QS = 440
    QB = 0
    CSB = QB + 64 * QS
    STB = CSB + 960
    WB = STB + 512
    FLG = WB + 4 * 18 * 80
    assert FLG + 16 <= 36864
    lds_total = 36864 + RING
    KTB = 0
    g.e(f"s_cmp_eq_u32 s{S_ROLE}, 0")
    g.e(f"s_cbranch_scc1 {kname}_comp")
    def grp(i):
        g.e(f"s_mov_b32 s{S_KA}, {i*128}")
        g.e(f"s_mov_b32 s{S_KB}, {i*64*3456}")
        gm.issue(i % NS)
    for j in range(NS):
        grp(j)
    g.e(f"s_waitcnt vmcnt({(NS-1)*gm.G})")
    g.e("s_barrier")
    for i in range(T):
        last = min(i + NS - 1, T - 1)
        g.e(f"s_waitcnt vmcnt({max(last-(i+1),0)*gm.G})")
        g.e("s_barrier")
        if i + NS < T:
            grp(i + NS)
    g.e("s_cmp_ge_u32 s2, 36")
    g.e(f"s_cbranch_scc1 {kname}_end")
    srd(g, S_A, P_WIN, 0, 576 * 4608 * 2)
    srd(g, S_B, P_WS, CS_OFF, CS_SZ)
    g.e(f"s_lshl_b32 s{S_T}, s2, 8")
    g.e(f"s_lshl_b32 s{S_T+1}, s{S_WAVE}, 6")
    g.e(f"s_add_u32 s{S_T}, s{S_T}, s{S_T+1}")
    g.e("v_lshrrev_b32 v2, 2, v1")
    g.e("v_mul_u32_u24 v2, 9216, v2")
    g.e("v_and_b32 v3, 3, v1")
    g.e("v_lshl_add_u32 v2, v3, 4, v2")
    g.e(f"v_add_u32 v2, s{S_T}, v2")
    for i in range(8):
        g.e(f"v_mov_b32 v{8+i}, 0")
    for bt in range(3):
        for q in range(12):
            g.e(f"s_mov_b32 s{S_T+1}, {(bt*12+q)*16*9216}")
            g.e(f"buffer_load_dwordx4 v[{16+4*q}:{19+4*q}], v2, s[{S_A}:{S_A+3}], s{S_T+1} offen")
        for q in range(12):
            g.e(f"s_waitcnt vmcnt({11-q})")
            for d in range(4):
                unpack_lo(g, 4, 16 + 4 * q + d)
                unpack_hi(g, 5, 16 + 4 * q + d)
                g.e(f"v_add_f32 v{8+2*d}, v{8+2*d}, v4")
                g.e(f"v_add_f32 v{9+2*d}, v{9+2*d}, v5")
    for x in (4, 8, 16, 32):
        g.e(f"v_xor_b32 v4, {x}, v1")
        g.e("v_lshlrev_b32 v4, 2, v4")
        for i in range(8):
            g.e(f"ds_bpermute_b32 v{16+i}, v4, v{8+i}")
        g.e("s_waitcnt lgkmcnt(0)")
        for i in range(8):
            g.e(f"v_add_f32 v{8+i}, v{8+i}, v{16+i}")
    g.e(f"s_lshl_b32 s{S_T}, s{S_T}, 1")
    g.e("v_lshlrev_b32 v4, 5, v1")
    g.e(f"v_add_u32 v4, s{S_T}, v4")
    g.e("s_mov_b64 exec, 0xf")
    g.e(f"buffer_store_dwordx4 v[8:11], v4, s[{S_B}:{S_B+3}], 0 offen")
    g.e(f"buffer_store_dwordx4 v[12:15], v4, s[{S_B}:{S_B+3}], 0 offen offset:16")
    g.e(f"s_branch {kname}_end")
    g.lab(f"{kname}_comp")
    vB0 = gm.vB[0]
    g.e(f"v_lshrrev_b32 v2, 4, v1")
    g.e(f"v_add_u32 v2, s{S_WR}, v2")
    g.e(f"v_mul_u32_u24 v2, 1152, v2")
    g.e(f"v_and_b32 v3, 15, v1")
    g.e(f"v_lshl_add_u32 v2, v3, 4, v2")
    for j in range(4):
        for d in range(4):
            g.e(f"v_mov_b32 v{vB0+(j*5+4)*4+d}, 0")
    for j in range(4):
        for q in range(5):
            r = vB0 + (j * 5 + q) * 4
            if q == 4:
                g.e("s_mov_b32 exec_lo, 0x00ff00ff")
                g.e("s_mov_b32 exec_hi, 0x00ff00ff")
            g.e(f"s_mov_b32 s{S_T}, {j*4*1152}")
            g.e(f"buffer_load_dwordx4 v[{r}:{r+3}], v2, s[{S_A}:{S_A+3}], s{S_T} offen offset:{q*256}")
            if q == 4:
                g.e("s_mov_b64 exec, -1")
    g.e(f"s_lshl_b32 s{S_T}, s{S_HG}, 2")
    g.e(f"s_add_u32 s{S_T}, s{S_T}, s{S_WAVE}")
    g.e(f"s_mul_i32 s{S_T+1}, s{S_T}, 648")
    vw = vacc
    for q in range(6):
        g.e(f"v_add_u32 v{vw+6+q}, {q*64}, v1")
        g.e(f"v_lshlrev_b32 v3, 1, v{vw+6+q}")
        g.e(f"buffer_load_ushort v{vw+q}, v3, s[{S_C}:{S_C+3}], s{S_T+1} offen")
    g.e(f"v_mov_b32 v4, 0x3f803f80")
    g.e("s_waitcnt vmcnt(6)")
    for j in range(4):
        g.e(f"v_mov_b32 v{vcs+2*j}, 0")
        g.e(f"v_mov_b32 v{vcs+2*j+1}, 0")
        for q in range(5):
            for d in range(4):
                r = vB0 + (j * 5 + q) * 4 + d
                g.e(f"v_dot2_f32_bf16 v{vcs+2*j}, v{r}, v4, v{vcs+2*j}")
                g.e(f"v_dot2_f32_bf16 v{vcs+2*j+1}, v{r}, v{r}, v{vcs+2*j+1}")
    for sw in (0x041F, 0x081F, 0x101F, 0x201F):
        for i in range(8):
            g.e(f"ds_swizzle_b32 v{vcs+8+i}, v{vcs+i} offset:{sw}")
        g.e("s_waitcnt lgkmcnt(0)")
        for i in range(8):
            g.e(f"v_add_f32 v{vcs+i}, v{vcs+i}, v{vcs+8+i}")
    for j in range(4):
        ln_from_sums(g, vcs + 2 * j, vcs + 2 * j + 1, 576, vcs + 8 + 2 * j, vcs + 9 + 2 * j, 5)
    g.e(f"v_lshrrev_b32 v2, 4, v1")
    g.e(f"v_lshlrev_b32 v2, 3, v2")
    g.e(f"s_lshl_b32 s{S_T+2}, s{S_WAVE}, 7")
    g.e(f"v_add_u32 v2, s{S_T+2}, v2")
    for j in range(4):
        g.e(f"ds_write_b64 v2, v[{vcs+8+2*j}:{vcs+9+2*j}] offset:{STB + j*32}")
    g.e("s_waitcnt vmcnt(0)")
    g.e(f"s_mul_i32 s{S_T+2}, s{S_WAVE}, 1440")
    for q in range(6):
        g.e(f"v_mul_u32_u24 v2, 3641, v{vw+6+q}")
        g.e(f"v_lshrrev_b32 v2, 16, v2")
        g.e(f"v_mul_u32_u24 v3, 18, v2")
        g.e(f"v_sub_u32 v3, v{vw+6+q}, v3")
        g.e(f"v_mul_u32_u24 v2, 80, v2")
        g.e(f"v_lshl_add_u32 v2, v3, 2, v2")
        g.e(f"v_add_u32 v2, s{S_T+2}, v2")
        g.e(f"v_lshlrev_b32 v{vw+q}, 16, v{vw+q}")
        if q == 5:
            g.e("s_mov_b64 exec, 0xf")
        g.e(f"ds_write_b32 v2, v{vw+q} offset:{WB}")
        if q == 5:
            g.e("s_mov_b64 exec, -1")
    for i in range(56 + 16):
        g.e(f"v_mov_b32 v{vacc+i}, 0")
    for i in range(4):
        g.e(f"v_mov_b32 v{vone+i}, 0x3f803f80")
    acc = lambda mt, nt: f"v[{vacc+nt*4}:{vacc+nt*4+3}]"
    g.e("s_waitcnt lgkmcnt(0)")
    g.e("s_barrier")
    for x in gm.reads(0, 0, 0):
        g.e(x)
    if 'stamp' in EXP:
        g.e("s_memrealtime s[92:93]")
    for wv in range(4):
        g.e(f"s_cmp_lg_u32 s{S_WAVE}, {wv}")
        g.e(f"s_cbranch_scc1 {kname}_w{wv}x")
        tiles = [t for t in range(wv, 14, 4)]
        def cs(cur):
            for k_, t in enumerate(tiles):
                b = gm.vB[cur] + t * 4
                c = f"v[{vcs+4*k_}:{vcs+4*k_+3}]"
                g.e(f"v_mfma_f32_16x16x32_bf16 {c}, v[{b}:{b+3}], v[{vone}:{vone+3}], {c}")
        for i in range(T):
            s_ = i % NS
            g.e("s_waitcnt lgkmcnt(0)")
            cs(0)
            gm.phase(0, lambda mt: gm.vA[0], acc, gm.reads(s_, 1, 1))
            g.e(f"s_waitcnt lgkmcnt(0)")
            g.e("s_barrier")
            cs(1)
            gm.phase(1, lambda mt: gm.vA[1], acc, gm.reads((s_ + 1) % NS, 0, 0) if i + 1 < T else [])
        g.e("s_nop 7")
        g.e("s_nop 1")
        g.e("v_lshrrev_b32 v2, 4, v1")
        g.e("v_lshlrev_b32 v2, 4, v2")
        g.e("s_mov_b32 exec_lo, 0x00010001")
        g.e("s_mov_b32 exec_hi, 0x00010001")
        for k_, t in enumerate(tiles):
            g.e(f"ds_write_b128 v2, v[{vcs+4*k_}:{vcs+4*k_+3}] offset:{CSB + 64*t}")
        g.e("s_mov_b64 exec, -1")
        g.e(f"s_branch {kname}_wdone")
        g.lab(f"{kname}_w{wv}x")
    g.lab(f"{kname}_wdone")
    if 'stamp' in EXP:
        g.e("s_memrealtime s[94:95]")
    g.e("s_waitcnt lgkmcnt(0)")
    g.e("s_barrier")
    vC = vB0
    g.e("v_lshrrev_b32 v2, 4, v1")
    g.e("v_lshlrev_b32 v2, 4, v2")
    for t in range(14):
        g.e(f"ds_read_b128 v[{vC+4*t}:{vC+4*t+3}], v2 offset:{CSB + 64*t}")
    g.e("v_and_b32 v3, 15, v1")
    g.e("v_lshlrev_b32 v3, 3, v3")
    g.e(f"s_lshl_b32 s{S_T+2}, s{S_WAVE}, 7")
    g.e(f"v_add_u32 v3, s{S_T+2}, v3")
    g.e(f"ds_read_b64 v[4:5], v3 offset:{STB}")
    g.e("v_and_b32 v3, 15, v1")
    g.e(f"s_lshl_b32 s{S_T+2}, s{S_WAVE}, 4")
    g.e(f"v_add_u32 v3, s{S_T+2}, v3")
    g.e(f"v_mul_u32_u24 v3, {QS}, v3")
    g.e("v_lshrrev_b32 v6, 4, v1")
    g.e("v_lshl_add_u32 v3, v6, 3, v3")
    g.e("s_waitcnt lgkmcnt(0)")
    g.e("v_sub_f32 v4, 0, v4")
    for t in range(14):
        a = vacc + 4 * t
        for r in range(4):
            g.e(f"v_fma_f32 v{a+r}, v4, v{vC+4*t+r}, v{a+r}")
        for r in range(4):
            g.e(f"v_mul_f32 v{a+r}, v{a+r}, v5")
        g.e(f"v_cvt_pk_bf16_f32 v{a}, v{a}, v{a+1}")
        g.e(f"v_cvt_pk_bf16_f32 v{a+1}, v{a+2}, v{a+3}")
        if t < 13:
            g.e(f"ds_write_b64 v3, v[{a}:{a+1}] offset:{QB + 32*t}")
        else:
            g.e("s_mov_b32 exec_hi, 0")
            g.e(f"ds_write_b64 v3, v[{a}:{a+1}] offset:{QB + 32*t}")
            g.e("s_mov_b32 exec_hi, -1")
    g.e("s_waitcnt lgkmcnt(0)")
    g.e("s_barrier")
    vQ, vKk, vV = 8, 17, 26
    vq32, vk32 = 36, 54
    vpq, vpk = 72, 90
    vW = 108
    vE = 128
    vPk = 164
    t0 = 204
    g.e(f"v_mul_u32_u24 v2, {QS}, v1")
    g.e(f"s_mul_i32 s{S_T+2}, s{S_WAVE}, 36")
    g.e(f"v_add_u32 v2, s{S_T+2}, v2")
    for i in range(9):
        g.e(f"ds_read_b32 v{vQ+i}, v2 offset:{QB + 4*i}")
        g.e(f"ds_read_b32 v{vKk+i}, v2 offset:{QB + 144 + 4*i}")
        g.e(f"ds_read_b32 v{vV+i}, v2 offset:{QB + 288 + 4*i}")
    g.e(f"s_mul_i32 s{S_T+2}, s{S_WAVE}, 1440")
    g.e(f"s_add_u32 s{S_T+2}, s{S_T+2}, {WB}")
    g.e(f"v_mov_b32 v3, s{S_T+2}")
    g.e("s_waitcnt lgkmcnt(0)")
    for i in range(9):
        unpack_lo(g, vq32 + 2 * i, vQ + i)
        unpack_hi(g, vq32 + 2 * i + 1, vQ + i)
        unpack_lo(g, vk32 + 2 * i, vKk + i)
        unpack_hi(g, vk32 + 2 * i + 1, vKk + i)
    for d in range(18):
        for c in range(5):
            g.e(f"ds_read_b128 v[{vW+4*c}:{vW+4*c+3}], v3 offset:{d*80 + 16*c}")
        g.e("s_waitcnt lgkmcnt(0)")
        for f in range(18):
            if d == 0:
                g.e(f"v_mul_f32 v{vpq+f}, v{vq32}, v{vW+f}")
                g.e(f"v_mul_f32 v{vpk+f}, v{vk32}, v{vW+f}")
            else:
                g.e(f"v_fmac_f32 v{vpq+f}, v{vq32+d}, v{vW+f}")
                g.e(f"v_fmac_f32 v{vpk+f}, v{vk32+d}, v{vW+f}")

    def softmax_pm(vp, out):
        for i in range(9):
            g.e(f"v_cvt_pk_bf16_f32 v{t0}, v{vp+2*i}, v{vp+2*i+1}")
            unpack_lo(g, vp + 2 * i, t0)
            unpack_hi(g, vp + 2 * i + 1, t0)
        g.e(f"v_max3_f32 v{t0}, v{vp}, v{vp+1}, v{vp+2}")
        g.e(f"v_min3_f32 v{t0+1}, v{vp}, v{vp+1}, v{vp+2}")
        for i in range(3, 18, 2):
            if i + 1 < 18:
                g.e(f"v_max3_f32 v{t0}, v{t0}, v{vp+i}, v{vp+i+1}")
                g.e(f"v_min3_f32 v{t0+1}, v{t0+1}, v{vp+i}, v{vp+i+1}")
            else:
                g.e(f"v_max_f32 v{t0}, v{t0}, v{vp+i}")
                g.e(f"v_min_f32 v{t0+1}, v{t0+1}, v{vp+i}")
        g.e(f"v_mov_b32 v{t0+4}, {fhex(LOG2E)}")
        for i in range(18):
            g.e(f"v_sub_f32 v{out+i}, v{vp+i}, v{t0}")
            g.e(f"v_sub_f32 v{out+18+i}, v{t0+1}, v{vp+i}")
        for i in range(36):
            g.e(f"v_mul_f32 v{out+i}, v{out+i}, v{t0+4}")
        for i in range(36):
            g.e(f"v_exp_f32 v{out+i}, v{out+i}")
        g.e("s_nop 0")
        for half in range(2):
            o = out + 18 * half
            g.e(f"v_add_f32 v{t0+2+half}, v{o}, v{o+1}")
            for i in range(2, 18):
                g.e(f"v_add_f32 v{t0+2+half}, v{t0+2+half}, v{o+i}")
        g.e(f"v_rcp_f32 v{t0+2}, v{t0+2}")
        g.e(f"v_rcp_f32 v{t0+3}, v{t0+3}")
        g.e("s_nop 0")
        for half in range(2):
            for i in range(18):
                g.e(f"v_mul_f32 v{out+18*half+i}, v{out+18*half+i}, v{t0+2+half}")
    softmax_pm(vpq, vE)
    for i in range(18):
        g.e(f"v_cvt_pk_bf16_f32 v{vPk+i}, v{vE+2*i}, v{vE+2*i+1}")
    g.e("v_lshrrev_b32 v2, 4, v1")
    g.e(f"v_mul_u32_u24 v2, {32*1152}, v2")
    g.e("v_and_b32 v3, 15, v1")
    g.e("v_lshl_add_u32 v4, v3, 4, v2")
    g.e("v_lshl_add_u32 v5, v3, 3, v2")
    g.e(f"s_lshl_b32 s{S_T}, s{S_RB}, 7")
    g.e(f"s_lshl_b32 s{S_T+1}, s{S_HG}, 2")
    g.e(f"s_add_u32 s{S_T}, s{S_T}, s{S_T+1}")
    g.e(f"s_add_u32 s{S_T}, s{S_T}, s{S_WAVE}")
    g.e(f"s_mul_i32 s{S_T}, s{S_T}, 1152")
    for gg in range(4):
        g.e(f"buffer_store_dwordx4 v[{vPk+4*gg}:{vPk+4*gg+3}], v4, s[{S_O}:{S_O+3}], s{S_T} offen offset:{gg*256}")
    g.e(f"buffer_store_dwordx2 v[{vPk+16}:{vPk+17}], v5, s[{S_O}:{S_O+3}], s{S_T} offen offset:1024")
    softmax_pm(vpk, vE)
    g.e("s_nop 1")
    vP2 = vpq
    for i in range(18):
        g.e(f"v_cvt_pk_bf16_f32 v{vP2+i}, v{vE+2*i}, v{vE+2*i+1}")
    for i in range(18, 24):
        g.e(f"v_mov_b32 v{vP2+i}, 0")
    for i in range(9):
        g.e(f"v_mov_b32 v{vP2+24+i}, v{vV+i}")
    g.e(f"v_mov_b32 v{vP2+33}, 0x3f80")
    for i in range(34, 40):
        g.e(f"v_mov_b32 v{vP2+i}, 0")
    g.e(f"s_mul_i32 s{S_T+2}, s{S_WAVE}, {64*160}")
    g.e(f"s_add_u32 s{S_T+2}, s{S_T+2}, 36864")
    g.e("v_mul_u32_u24 v2, 160, v1")
    g.e(f"v_add_u32 v2, s{S_T+2}, v2")
    for i in range(10):
        g.e(f"ds_write_b128 v2, v[{vP2+4*i}:{vP2+4*i+3}] offset:{KTB + 16*i}")
    g.e("v_lshrrev_b32 v2, 4, v1")
    g.e("v_lshlrev_b32 v2, 2, v2")
    g.e("v_bfe_u32 v3, v1, 2, 2")
    g.e("v_add_u32 v2, v2, v3")
    g.e("v_mul_u32_u24 v2, 160, v2")
    g.e("v_and_b32 v3, 3, v1")
    g.e("v_lshl_add_u32 v2, v3, 3, v2")
    g.e(f"v_add_u32 v2, s{S_T+2}, v2")
    g.e("s_waitcnt lgkmcnt(0)")
    vFr = 128
    for ks in range(2):
        for t in range(5):
            for half in range(2):
                r = vFr + (ks * 5 + t) * 4 + 2 * half
                g.e(f"ds_read_b64_tr_b16 v[{r}:{r+1}], v2 offset:{KTB + (32*ks+16*half)*160 + 32*t}")
    g.e("s_waitcnt lgkmcnt(0)")
    vKV = 8
    for ks in range(2):
        for mt in range(3):
            for nt in range(2):
                d = vKV + (mt * 2 + nt) * 4
                a = vFr + (ks * 5 + mt) * 4
                b = vFr + (ks * 5 + 3 + nt) * 4
                c = "0" if ks == 0 else f"v[{d}:{d+3}]"
                g.e(f"v_mfma_f32_16x16x32_bf16 v[{d}:{d+3}], v[{a}:{a+3}], v[{b}:{b+3}], {c}")
    g.e("s_nop 7")
    g.e("s_nop 1")
    g.e(f"s_lshl_b32 s{S_T}, s{S_HG}, 5")
    g.e(f"s_add_u32 s{S_T}, s{S_T}, s{S_RB}")
    g.e(f"s_lshl_b32 s{S_T}, s{S_T}, 2")
    g.e(f"s_add_u32 s{S_T}, s{S_T}, s{S_WAVE}")
    g.e(f"s_mul_i32 s{S_T}, s{S_T}, 6144")
    g.e("v_lshlrev_b32 v2, 4, v1")
    for t in range(6):
        g.e(f"s_add_u32 s{S_T+1}, s{S_T}, {t*1024}")
        g.e(f"buffer_store_dwordx4 v[{vKV+4*t}:{vKV+4*t+3}], v2, s[{S_E}:{S_E+3}], s{S_T+1} offen sc0 sc1")
    g.e("s_waitcnt vmcnt(0)")
    g.e("s_barrier")
    g.e(f"s_cmp_lg_u32 s{S_WAVE}, 0")
    g.e(f"s_cbranch_scc1 {kname}_noat")
    srd(g, S_A, P_DBG, 0, 256)
    g.e(f"s_lshl_b32 s{S_T}, s{S_HG}, 2")
    g.e(f"v_mov_b32 v3, s{S_T}")
    g.e("v_mov_b32 v4, 1")
    g.e("s_mov_b64 exec, 1")
    g.e(f"buffer_atomic_add v4, v3, s[{S_A}:{S_A+3}], 0 offen sc0")
    g.e("s_waitcnt vmcnt(0)")
    g.e("v_mov_b32 v3, 0")
    g.e(f"ds_write_b32 v3, v4 offset:{FLG}")
    g.e("s_mov_b64 exec, -1")
    g.e("s_waitcnt lgkmcnt(0)")
    g.lab(f"{kname}_noat")
    g.e("s_barrier")
    g.e("v_mov_b32 v3, 0")
    g.e(f"ds_read_b32 v4, v3 offset:{FLG}")
    g.e("s_waitcnt lgkmcnt(0)")
    g.e(f"v_readfirstlane_b32 s{S_T}, v4")
    g.e("s_nop 3")
    g.e(f"s_cmp_lg_u32 s{S_T}, 31")
    g.e(f"s_cbranch_scc1 {kname}_fin")
    g.e(f"s_lshl_b32 s{S_T}, s{S_HG}, 7")
    g.e(f"s_add_u32 s{S_T}, s{S_T}, s{S_WAVE}")
    g.e(f"s_mul_i32 s{S_T}, s{S_T}, 6144")
    for i in range(24):
        g.e(f"v_mov_b32 v{vKV+i}, 0")
    for bt in range(4):
        for j in range(8):
            for t in range(6):
                r = 32 + (j * 6 + t) * 4
                g.e(f"s_add_u32 s{S_T+1}, s{S_T}, {(bt*8+j)*4*6144 + t*1024}")
                g.e(f"buffer_load_dwordx4 v[{r}:{r+3}], v2, s[{S_E}:{S_E+3}], s{S_T+1} offen sc0 sc1")
        for j in range(8):
            g.e(f"s_waitcnt vmcnt({(7-j)*6})")
            for i in range(24):
                g.e(f"v_add_f32 v{vKV+i}, v{vKV+i}, v{32+j*24+i}")
    g.e(f"s_mul_i32 s{S_T+2}, s{S_WAVE}, 3072")
    g.e("v_and_b32 v3, 15, v1")
    g.e("v_mul_u32_u24 v3, 96, v3")
    g.e("v_lshrrev_b32 v4, 4, v1")
    g.e("v_lshl_add_u32 v5, v4, 3, v3")
    g.e(f"v_add_u32 v5, s{S_T+2}, v5")
    for mt in range(3):
        for nt in range(2):
            d = vKV + (mt * 2 + nt) * 4
            g.e(f"v_cvt_pk_bf16_f32 v{d}, v{d}, v{d+1}")
            g.e(f"v_cvt_pk_bf16_f32 v{d+1}, v{d+2}, v{d+3}")
            g.e(f"ds_write_b64 v5, v[{d}:{d+1}] offset:{nt*16*96 + mt*32}")
    g.e("v_lshl_add_u32 v6, v4, 4, v3")
    g.e(f"v_add_u32 v6, s{S_T+2}, v6")
    g.e("v_lshlrev_b32 v7, 4, v4")
    g.e(f"v_add_u32 v7, s{S_T+2}, v7")
    g.e("v_lshlrev_b32 v3, 3, v4")
    g.e(f"v_add_u32 v3, s{S_T+2}, v3")
    g.e("s_waitcnt lgkmcnt(0)")
    for t in range(2):
        g.e(f"ds_read_b128 v[{32+8*t}:{35+8*t}], v6 offset:{t*16*96}")
        g.e(f"ds_read_b64 v[{36+8*t}:{37+8*t}], v5 offset:{t*16*96+64}")
    g.e(f"ds_read_b128 v[48:51], v7 offset:{18*96}")
    g.e(f"ds_read_b64 v[52:53], v3 offset:{18*96+64}")
    g.e(f"s_lshl_b32 s{S_T}, s{S_HG}, 2")
    g.e(f"s_add_u32 s{S_T}, s{S_T}, s{S_WAVE}")
    g.e(f"s_mul_i32 s{S_T}, s{S_T}, 4608")
    g.e("v_lshlrev_b32 v4, 3, v1")
    g.e("s_waitcnt lgkmcnt(0)")
    for t in range(3):
        g.e(f"s_add_u32 s{S_T+1}, s{S_T}, {t*1536}")
        g.e(f"buffer_store_dwordx4 v[{32+8*t}:{35+8*t}], v2, s[{S_F}:{S_F+3}], s{S_T+1} offen")
        g.e(f"buffer_store_dwordx2 v[{36+8*t}:{37+8*t}], v4, s[{S_F}:{S_F+3}], s{S_T+1} offen offset:1024")
    g.lab(f"{kname}_fin")
    epilogue(g, kname)
    return g.text(), descriptor(kname, 256), lds_total


HEADER = open(__file__.replace("dev/gen.py", "cdna_kernels/" + NAME + ".s.ref")).read().split("; Override launch")[0]


def build(which=None):
    kernels = []
    t, d, l = k1_kernel()
    kernels.append(("k1_kernel", 256, 512, l, t, d))
    t, d, l = k2_kernel()
    kernels.append(("k2_kernel", 256, 256, l, t, d))
    t, d, l = k3_kernel()
    kernels.append(("k3_kernel", 256, 512, l, t, d))
    t, d, l = kn_kernel()
    kernels.append(("kn_kernel", 256, 256, l, t, d))
    t, d, l = gemm_global_kernel("k4_kernel", 'k4')
    kernels.append(("k4_kernel", 256, 512, l, t, d))
    t, d, l = gemm_global_kernel("k5_kernel", 'k5')
    kernels.append(("k5_kernel", 256, 512, l, t, d))
    out = HEADER
    for (n, grid, blk, lds, t, d) in kernels:
        out += f"; @launch kernel={n} grid=({grid},1,1) block=({blk},1,1) lds={lds}\n"
    out += '.amdgcn_target "amdgcn-amd-amdhsa--gfx950"\n.text\n'
    for k in kernels:
        out += k[4]
    out += '.section .rodata,"a"\n'
    for k in kernels:
        out += k[5]
    return out


if __name__ == "__main__":
    path = sys.argv[1] if len(sys.argv) > 1 else f"cdna_kernels/{NAME}.s"
    open(path, "w").write(build())
    print("wrote", path)
```

```python
import sys, os
EXP = os.environ.get('EXP','')

NAME = "sequential_preLN__linear_kernel_hedgehog__mixer_gmlp__prompt"

PHIQ_OFF, PHIQ_SZ = 0x0000000, 128 * 32 * 1152 + 512
KVP_OFF, KVP_SZ = 0x0600000, 8 * 32 * 4 * 6 * 1024
KVT_OFF, KVT_SZ = 0x0C00000, 32 * 4608
H_OFF, H_SZ = 0x0D00000, 2048 * 576 * 2
Z1_OFF, Z_SZ = 0x1000000, 2048 * 2304 * 2
Z2_OFF = 0x1A00000
Z2N_OFF = 0x2400000
ST_OFF, ST_SZ = 0x2E00000, 2048 * 16 * 2 * 4
U_OFF = 0x3000000
HST_OFF, HST_SZ = 0x3A00000, 2048 * 8 * 8
CS_OFF, CS_SZ = 0x3B00000, 4608 * 4
XN_OFF = 0x0600000
ACC_OFF, ACC_SZ = 0x0C00000, 32 * 3072
KV3_OFF, KV3_SZ = 0x0900000, 32 * 8 * 6144
TQKV_OFF, TQKV_SZ = 0x4000000, 32 * 576 * 160
TWO_OFF, TWO_SZ = 0x4300000, 4 * 576 * 288
TWIN_OFF, TWIN_SZ = 0x4400000, 32 * 576 * 288
TWOUT_OFF, TWOUT_SZ = 0x4A00000, 8 * 2304 * 160
ST2_SZ = 2048 * 8

P_X, P_WQKV, P_WPHI, P_WO, P_BX, P_WIN, P_WSP, P_BSP = 4, 6, 8, 10, 12, 14, 16, 18
P_WOUT, P_OUT, P_DBG, P_WS = 20, 22, 24, 26
S_A, S_B, S_C, S_O, S_E, S_F = 28, 32, 36, 40, 44, 48


class G:
    def __init__(self):
        self.L = []

    def e(self, s):
        self.L.append("    " + s)

    def lab(self, s):
        self.L.append(s + ":")

    def c(self, s):
        self.L.append("    ; " + s)

    def text(self):
        return "\n".join(self.L) + "\n"


def srd(g, sd, ptr, off, size):
    if off:
        g.e(f"s_add_u32 s{sd}, s{ptr}, {off}")
        g.e(f"s_addc_u32 s{sd+1}, s{ptr+1}, 0")
        g.e(f"s_and_b32 s{sd+1}, s{sd+1}, 0xffff")
    else:
        g.e(f"s_mov_b32 s{sd}, s{ptr}")
        g.e(f"s_and_b32 s{sd+1}, s{ptr+1}, 0xffff")
    g.e(f"s_mov_b32 s{sd+2}, {size}")
    g.e(f"s_mov_b32 s{sd+3}, 0x00020000")


def prologue(g, kname, nwg):
    g.L.append(f".globl {kname}")
    g.L.append(".p2align 8")
    g.L.append(f".type {kname},@function")
    g.lab(kname)
    g.e(f"s_cmp_ge_u32 s2, {nwg}")
    g.e(f"s_cbranch_scc1 {kname}_end")
    g.e("s_load_dwordx16 s[4:19], s[0:1], 0")
    g.e("s_load_dwordx8 s[20:27], s[0:1], 64")
    if 'stamp' in EXP:
        g.e("s_memrealtime s[96:97]")
        g.e("s_mov_b32 s92, 0")
        g.e("s_mov_b32 s94, 0")


STAMP_OFF = 0x3F00000
def epilogue(g, kname):
    if 'stamp' in EXP:
        idx = int(kname[1]) if kname[1].isdigit() else 6
        g.e("s_waitcnt vmcnt(0) lgkmcnt(0)")
        g.e("s_memrealtime s[98:99]")
        srd(g, S_F, P_WS, STAMP_OFF + idx * 16384, 16384)
        g.e("s_waitcnt lgkmcnt(0)")
        g.e("v_mov_b32 v2, s96")
        g.e("v_mov_b32 v3, s98")
        g.e("v_mov_b32 v4, s92")
        g.e("v_mov_b32 v5, s94")
        g.e("s_lshl_b32 s96, s2, 4")
        g.e("v_mov_b32 v6, s96")
        g.e("v_cmp_eq_u32 vcc, 0, v0")
        g.e("s_and_saveexec_b64 s[96:97], vcc")
        g.e(f"buffer_store_dwordx4 v[2:5], v6, s[{S_F}:{S_F+3}], 0 offen")
    g.lab(f"{kname}_end")
    g.e("s_endpgm")


def descriptor(kname, vgpr, agpr=0, sgpr=100):
    acc = (vgpr + 3) // 4 * 4
    tot = acc + agpr if agpr else vgpr
    return f""".p2align 6
.amdhsa_kernel {kname}
  .amdhsa_next_free_vgpr {tot}
  .amdhsa_next_free_sgpr {sgpr}
  .amdhsa_accum_offset {acc}
  .amdhsa_group_segment_fixed_size 0
  .amdhsa_kernarg_size 96
  .amdhsa_user_sgpr_count 2
  .amdhsa_user_sgpr_kernarg_segment_ptr 1
  .amdhsa_system_sgpr_workgroup_id_x 1
.end_amdhsa_kernel
"""


def swap23(r):
    return (r & 3) | ((r & 4) << 1) | ((r & 8) >> 1)


S_WAVE = 52
S_WB = 53
S_KB = 54
S_KA = 55
S_LOOP = 56
S_M0 = 57
S_N0 = 58
S_WA = 59
S_T = 60
S_J = 70
S_ROT = 71
S_ROLE = 72


class Gemm:
    def __init__(self, g, MT, NT, BN, NS, ldb, a_mode, vbase, lds_base=0):
        self.g = g
        self.MT, self.NT, self.BN, self.NS = MT, NT, BN, NS
        self.ldb = ldb
        self.a_mode = a_mode
        self.S = BN * 2
        self.CPR = BN // 8
        self.STAGE = 64 * self.S
        self.ASTAGE = 4 * MT * 16 * 128 if a_mode == 'lds' else 0
        self.a_base = lds_base
        self.b_base = lds_base + NS * self.ASTAGE
        nch = 16 * self.CPR
        self.nfull = nch // 64
        self.half = (nch % 64) // 32
        assert nch % 32 == 0
        self.D = self.nfull + self.half
        self.DA = 2 * MT if a_mode == 'lds' else 0
        v = vbase
        self.vDma = v; v += self.D
        self.vBaddr = v; v += NS
        if a_mode == 'lds':
            self.vDmaA = v; v += self.DA
            self.a_multi = NS * self.ASTAGE > 65536
            self.vAaddr = v; v += 2 * (NS if self.a_multi else 1)
        v = (v + 3) // 4 * 4
        self.vB = [v, v + NT * 4]; v += 2 * NT * 4
        if a_mode == 'lds':
            self.vA = [v, v + MT * 4]; v += 2 * MT * 4
        self.G = (0 if 'nob' in EXP else self.D) + (0 if 'noa' in EXP else self.DA)
        self.vend = v
        self.rotw = 1
        self.lds_bytes = NS * (self.STAGE + self.ASTAGE)

    def setup(self, vlane, vt0, colmap=None, col0_sgpr=None):
        g = self.g
        t0, t1, t2, t3 = vt0, vt0 + 1, vt0 + 2, vt0 + 3
        magic = (65536 + self.CPR - 1) // self.CPR
        for c in range(self.D * 64):
            assert (c * magic) >> 16 == c // self.CPR
        g.e(f"s_mul_i32 s{S_WB}, s{S_WAVE}, {16*self.S}")
        g.e(f"s_add_u32 s{S_WB}, s{S_WB}, {self.b_base}")
        g.e(f"s_lshl_b32 s{S_T}, s{S_WAVE}, 4")
        for q in range(self.D):
            g.e(f"v_add_u32 v{t0}, {q*64}, v{vlane}")
            g.e(f"v_mul_u32_u24 v{t1}, {magic}, v{t0}")
            g.e(f"v_lshrrev_b32 v{t1}, 16, v{t1}")
            g.e(f"v_mul_u32_u24 v{t2}, {self.CPR}, v{t1}")
            g.e(f"v_sub_u32 v{t0}, v{t0}, v{t2}")
            g.e(f"v_and_b32 v{t2}, 3, v{t1}")
            g.e(f"v_and_b32 v{t3}, 4, v{t1}")
            g.e(f"v_lshl_or_b32 v{t2}, v{t3}, 1, v{t2}")
            g.e(f"v_and_b32 v{t3}, 8, v{t1}")
            g.e(f"v_lshrrev_b32 v{t3}, 1, v{t3}")
            g.e(f"v_or_b32 v{t2}, v{t2}, v{t3}")
            g.e(f"v_add_u32 v{t2}, s{S_T}, v{t2}")
            g.e(f"s_mov_b32 s{S_T+1}, {self.ldb}")
            g.e(f"v_mul_lo_u32 v{t2}, v{t2}, s{S_T+1}")
            if colmap is None:
                g.e(f"v_lshlrev_b32 v{t0}, 4, v{t0}")
            else:
                colmap(g, t0, t1, t3)
            g.e(f"v_add_u32 v{self.vDma+q}, v{t2}, v{t0}")
            if col0_sgpr is not None:
                g.e(f"v_add_u32 v{self.vDma+q}, s{col0_sgpr}, v{self.vDma+q}")
        g.e(f"v_lshrrev_b32 v{t0}, 5, v{vlane}")
        g.e(f"v_lshlrev_b32 v{t0}, 4, v{t0}")
        g.e(f"v_bfe_u32 v{t1}, v{vlane}, 4, 1")
        g.e(f"v_lshl_or_b32 v{t0}, v{t1}, 2, v{t0}")
        g.e(f"v_bfe_u32 v{t1}, v{vlane}, 2, 2")
        g.e(f"v_add_u32 v{t0}, v{t0}, v{t1}")
        g.e(f"v_mul_u32_u24 v{t0}, {self.S}, v{t0}")
        g.e(f"v_and_b32 v{t1}, 3, v{vlane}")
        g.e(f"v_lshl_add_u32 v{t0}, v{t1}, 3, v{t0}")
        for s in range(self.NS):
            g.e(f"v_add_u32 v{self.vBaddr+s}, {self.b_base + s*self.STAGE}, v{t0}")

    def setup_a(self, vlane, vt0, lda, srow0):
        g = self.g
        t0, t1, t2 = vt0, vt0 + 1, vt0 + 2
        g.e(f"s_mul_i32 s{S_WA}, s{S_WAVE}, {self.MT*16*128}")
        if self.a_base:
            g.e(f"s_add_u32 s{S_WA}, s{S_WA}, {self.a_base}")
        g.e(f"v_lshrrev_b32 v{t0}, 3, v{vlane}")
        g.e(f"v_and_b32 v{t1}, 7, v{vlane}")
        g.e(f"v_xor_b32 v{t1}, v{t1}, v{t0}")
        g.e(f"v_add_u32 v{t0}, s{srow0}, v{t0}")
        g.e(f"s_mov_b32 s{S_T}, {lda}")
        g.e(f"v_mul_lo_u32 v{t0}, v{t0}, s{S_T}")
        g.e(f"v_lshl_add_u32 v{t0}, v{t1}, 4, v{t0}")
        for q in range(self.DA):
            g.e(f"v_add_u32 v{self.vDmaA+q}, {8*q*lda}, v{t0}")
        g.e(f"v_and_b32 v{t0}, 15, v{vlane}")
        g.e(f"v_lshrrev_b32 v{t1}, 4, v{vlane}")
        g.e(f"v_and_b32 v{t2}, 7, v{vlane}")
        g.e(f"v_xor_b32 v{t1}, v{t1}, v{t2}")
        g.e(f"v_lshlrev_b32 v{t1}, 4, v{t1}")
        g.e(f"v_lshl_add_u32 v{t0}, v{t0}, 7, v{t1}")
        g.e(f"v_add_u32 v{self.vAaddr}, s{S_WA}, v{t0}")
        g.e(f"v_xor_b32 v{self.vAaddr+1}, 64, v{self.vAaddr}")
        if self.a_multi:
            for sl in range(1, self.NS):
                g.e(f"v_add_u32 v{self.vAaddr+2*sl}, {sl*self.ASTAGE}, v{self.vAaddr}")
                g.e(f"v_add_u32 v{self.vAaddr+2*sl+1}, {sl*self.ASTAGE}, v{self.vAaddr+1}")

    def dma_items(self, slot):
        items = []
        if self.a_mode == 'lds' and 'noa' not in EXP:
            for q in range(self.DA):
                pre = [f"s_add_u32 m0, s{S_WA}, {slot*self.ASTAGE + q*1024}"]
                main = [f"buffer_load_dwordx4 v{self.vDmaA+q}, s[{S_A}:{S_A+3}], s{S_KA} offen lds"]
                items.append((pre, main))
        if 'nob' not in EXP:
            for q in range(self.D):
                pre = [f"s_add_u32 m0, s{S_WB}, {slot*self.STAGE + q*1024}"]
                main = [f"buffer_load_dwordx4 v{self.vDma+q}, s[{S_B}:{S_B+3}], s{S_KB} offen lds"]
                if q == self.nfull:
                    main = ["s_mov_b32 exec_hi, 0"] + main + ["s_mov_b32 exec_hi, -1"]
                if q == self.D - 1:
                    main += self.next_k()
                items.append((pre, main))
        return items

    def next_k(self):
        W = self.rotw
        if W == 0:
            return []
        if W <= 1:
            return [f"s_add_u32 s{S_KB}, s{S_KB}, {64*self.ldb}", f"s_add_u32 s{S_KA}, s{S_KA}, 128"]
        return [f"s_add_u32 s{S_J}, s{S_J}, 1",
                f"s_add_u32 s{S_KA}, s{S_J}, s{S_ROT}",
                f"s_and_b32 s{S_KA}, s{S_KA}, {W-1}",
                f"s_and_b32 s{S_KB}, s{S_J}, {(~(W-1)) & 0xffff}",
                f"s_or_b32 s{S_KA}, s{S_KA}, s{S_KB}",
                f"s_mul_i32 s{S_KB}, s{S_KA}, {64*self.ldb}",
                f"s_lshl_b32 s{S_KA}, s{S_KA}, 7"]

    def init_k(self):
        g = self.g
        g.e(f"s_mov_b32 s{S_J}, 0")
        g.e(f"s_and_b32 s{S_KA}, s{S_ROT}, {max(self.rotw-1,0)}")
        g.e(f"s_mul_i32 s{S_KB}, s{S_KA}, {64*self.ldb}")
        g.e(f"s_lshl_b32 s{S_KA}, s{S_KA}, 7")

    def issue(self, slot):
        for pre, main in self.dma_items(slot):
            for x in pre:
                self.g.e(x)
            self.g.e("s_nop 0")
            for x in main:
                self.g.e(x)

    def reads(self, slot, ks, dst):
        out = []
        if 'nord' in EXP:
            return out
        if self.a_mode == 'lds':
            for mt in range(self.MT):
                r = self.vA[dst] + mt * 4
                if self.a_multi:
                    out.append(f"ds_read_b128 v[{r}:{r+3}], v{self.vAaddr+2*slot+ks} offset:{mt*2048}")
                else:
                    out.append(f"ds_read_b128 v[{r}:{r+3}], v{self.vAaddr+ks} offset:{slot*self.ASTAGE + mt*2048}")
        for nt in range(self.NT):
            for half in range(2):
                r = self.vB[dst] + nt * 4 + half * 2
                off = (32 * ks + 8 * half) * self.S + 32 * nt
                out.append(f"ds_read_b64_tr_b16 v[{r}:{r+1}], v{self.vBaddr+slot} offset:{off}")
        return out

    def phase(self, cur, afr, acc, rd, dma=None, first=0):
        g = self.g
        rd = list(rd)
        dma = list(dma or [])
        mf = [(mt, nt) for nt in range(self.NT) for mt in range(self.MT)]
        n = len(mf)
        pos = {}
        if dma:
            gap = max(2, (n - 1) // len(dma))
            for j, it in enumerate(dma):
                p = min(j * gap + first, n - 2)
                pos.setdefault(p, []).append(('pre', it))
        pend = []
        for i, (mt, nt) in enumerate(mf):
            for _ in range(2):
                if rd:
                    g.e(rd.pop(0))
            b = self.vB[cur] + nt * 4
            a = afr(mt)
            c = acc(mt, nt)
            if 'nomf' not in EXP:
                g.e(f"v_mfma_f32_16x16x32_bf16 {c}, v[{b}:{b+3}], v[{a}:{a+3}], {c}")
            for it in pend:
                for x in it[1]:
                    g.e(x)
            pend = []
            todo = pos.get(i, [])
            for k_, (_, it) in enumerate(todo):
                if k_ > 0:
                    g.e("s_nop 0")
                    for x in pend[0][1]:
                        g.e(x)
                    pend = []
                for x in it[0]:
                    g.e(x)
                pend.append(it)
        for it in pend:
            g.e("s_nop 0")
            for x in it[1]:
                g.e(x)
        for x in rd:
            g.e(x)


def unpack_lo(g, d, s):
    g.e(f"v_lshlrev_b32 v{d}, 16, v{s}")


def unpack_hi(g, d, s):
    g.e(f"v_and_b32 v{d}, 0xffff0000, v{s}")


def gemm_global_kernel(kname, kind):
    g = G()
    if kind == 'k4':
        MT, NT, BN, NS, KT = 2, 9, 144, int(os.environ.get('NS4','4')), 32
        lda, ldb = 4096, 288
        nwg = 256
    else:
        MT, NT, BN, NS, KT = 1, 5, 80, int(os.environ.get('NS5','4')), 36
        lda, ldb = 4608, 160
        nwg = 256
    if 'NWG' in os.environ: nwg = int(os.environ['NWG'])
    prologue(g, kname, nwg)
    g.e("v_and_b32 v1, 63, v0")
    g.e("v_lshrrev_b32 v2, 6, v0")
    g.e("s_nop 0")
    g.e(f"v_readfirstlane_b32 s{S_ROLE}, v2")
    g.e(f"s_and_b32 s{S_WAVE}, s{S_ROLE}, 3")
    g.e(f"s_lshr_b32 s{S_ROLE}, s{S_ROLE}, 2")
    g.e(f"s_and_b32 s{S_T}, s2, 7")
    g.e(f"s_lshr_b32 s{S_T+1}, s2, 3")
    if kind == 'k4':
        g.e(f"s_lshr_b32 s{S_M0}, s{S_T}, 1")
        g.e(f"s_lshl_b32 s{S_M0}, s{S_M0}, 2")
        g.e(f"s_and_b32 s{S_T+2}, s{S_T+1}, 3")
        g.e(f"s_add_u32 s{S_M0}, s{S_M0}, s{S_T+2}")
        g.e(f"s_lshl_b32 s{S_M0}, s{S_M0}, 7")
        g.e(f"s_and_b32 s{S_N0}, s{S_T}, 1")
        g.e(f"s_lshl_b32 s{S_N0}, s{S_N0}, 3")
        g.e(f"s_lshr_b32 s{S_T+2}, s{S_T+1}, 2")
        g.e(f"s_add_u32 s{S_N0}, s{S_N0}, s{S_T+2}")
        g.e(f"s_mul_i32 s{S_N0}, s{S_N0}, 144")
        g.e(f"s_and_b32 s{S_ROT}, s{S_T+1}, 3")
        g.e(f"s_lshl_b32 s{S_ROT}, s{S_ROT}, 1")
        g.e(f"s_add_u32 s{S_ROT}, s{S_ROT}, s{S_T+2}")
        if int(os.environ.get('ROTW', '8')) > 8:
            g.e(f"s_mul_i32 s{S_ROT}, s{S_ROT}, {int(os.environ.get('ROTW', '8'))//8}")
    else:
        g.e(f"s_lshl_b32 s{S_M0}, s{S_T}, 2")
        g.e(f"s_lshr_b32 s{S_T+2}, s{S_T+1}, 3")
        g.e(f"s_add_u32 s{S_M0}, s{S_M0}, s{S_T+2}")
        g.e(f"s_lshl_b32 s{S_M0}, s{S_M0}, 6")
        g.e(f"s_and_b32 s{S_N0}, s{S_T+1}, 7")
        g.e(f"s_mul_i32 s{S_N0}, s{S_N0}, 72")
        g.e(f"s_lshr_b32 s{S_ROT}, s{S_T+1}, 1")
        g.e(f"s_add_u32 s{S_ROT}, s{S_ROT}, s{S_T+2}")
    if 'same' in EXP:
        g.e(f"s_mov_b32 s{S_M0}, 0")
        g.e(f"s_mov_b32 s{S_N0}, 0")
    g.e("s_waitcnt lgkmcnt(0)")
    if kind == 'k4':
        srd(g, S_A, P_WSP, 0, 2048 * 2048 * 2)
        srd(g, S_B, P_WS, Z2N_OFF, Z_SZ)
        srd(g, S_F, P_WS, ST_OFF, ST2_SZ)
        srd(g, S_C, P_WS, Z1_OFF, Z_SZ)
        srd(g, S_O, P_WS, U_OFF, Z_SZ)
        srd(g, S_E, P_BSP, 0, 4096)
    else:
        srd(g, S_A, P_WS, U_OFF, Z_SZ)
        srd(g, S_B, P_WS, TWOUT_OFF, TWOUT_SZ)
        srd(g, S_C, P_WS, H_OFF, H_SZ)
        srd(g, S_O, P_OUT, 0, H_SZ)
    NACC = MT * NT * 4
    vacc = 8
    gm = Gemm(g, MT, NT, BN, NS, ldb, 'lds', vacc + NACC)
    g.e(f"s_mul_i32 s{S_T+3}, s{S_WAVE}, {16*MT}")
    g.e(f"s_add_u32 s{S_T+3}, s{S_T+3}, s{S_M0}")
    g.e(f"s_lshl_b32 s{S_T+4}, s{S_N0}, 1")
    if kind == 'k4':
        g.e(f"s_mul_i32 s{S_T+5}, s{S_N0}, 4096")
        gm.setup(1, 2, col0_sgpr=S_T + 5)
    else:
        g.e(f"s_mul_i32 s{S_T+5}, s{S_N0}, 5120")
        gm.setup(1, 2, col0_sgpr=S_T + 5)
    gm.setup_a(1, 2, lda, S_T + 3)
    gm.rotw = int(os.environ.get('ROTW', '8'))
    if kind == 'k5': gm.rotw = min(gm.rotw, 4)
    gm.init_k()
    g.e(f"s_cmp_eq_u32 s{S_ROLE}, 0")
    g.e(f"s_cbranch_scc1 {kname}_comp")
    NORM4 = False
    if kind == 'k4' and NORM4:
        TAB = gm.lds_bytes
        vst = gm.vB[0]
        vkl = vst + NS * 20
        vwa = vkl + 5
        vtb = vwa + 1
        tq = (vtb + 10 + 3) // 4 * 4
        g.e(f"s_lshl_b32 s{S_T}, s{S_WAVE}, 12")
        g.e(f"v_lshlrev_b32 v{tq}, 6, v1")
        g.e(f"v_add_u32 v{tq}, s{S_T}, v{tq}")
        for i in range(4):
            g.e(f"buffer_load_dwordx4 v[{tq+4+4*i}:{tq+7+4*i}], v{tq}, s[{S_F}:{S_F+3}], 0 offen offset:{16*i}")
        g.e(f"s_lshl_b32 s{S_T}, s{S_WAVE}, 4")
        for q in range(5):
            g.e(f"v_add_u32 v2, {q*64}, v1")
            g.e(f"v_mul_u32_u24 v3, 3641, v2")
            g.e(f"v_lshrrev_b32 v3, 16, v3")
            g.e(f"v_and_b32 v4, 3, v3")
            g.e(f"v_and_b32 v5, 4, v3")
            g.e(f"v_lshl_or_b32 v4, v5, 1, v4")
            g.e(f"v_and_b32 v5, 8, v3")
            g.e(f"v_lshrrev_b32 v5, 1, v5")
            g.e(f"v_or_b32 v4, v4, v5")
            g.e(f"v_add_u32 v4, s{S_T}, v4")
            g.e(f"v_and_b32 v4, 63, v4")
            g.e(f"v_lshlrev_b32 v4, 3, v4")
            g.e(f"v_add_u32 v{vkl+q}, {TAB}, v4")
        g.e(f"v_lshlrev_b32 v{vwa}, 4, v1")
        g.e(f"v_add_u32 v{vwa}, s{S_WB}, v{vwa}")
        S_KQ = 76
        S_JB, S_KB2 = 80, 81
        W_ = gm.rotw
        def issueA(slot):
            for pre, main in gm.dma_items(slot)[:gm.DA]:
                for x in pre: g.e(x)
                g.e("s_nop 0")
                for x in main: g.e(x)
            g.e(f"s_add_u32 s{S_J}, s{S_J}, 1")
            g.e(f"s_add_u32 s{S_KA}, s{S_J}, s{S_ROT}")
            g.e(f"s_and_b32 s{S_KA}, s{S_KA}, {W_-1}")
            g.e(f"s_and_b32 s{S_T}, s{S_J}, {(~(W_-1)) & 0xffff}")
            g.e(f"s_or_b32 s{S_KA}, s{S_KA}, s{S_T}")
            g.e(f"s_lshl_b32 s{S_KA}, s{S_KA}, 7")
        def issueB(slot):
            g.e(f"s_lshl_b32 s{S_KQ+slot}, s{S_KB2}, 9")
            g.e(f"s_mul_i32 s{S_KB}, s{S_KB2}, {64*gm.ldb}")
            for q in range(5):
                r = vst + slot * 20 + q * 4
                if q == 4:
                    g.e("s_mov_b32 exec_hi, 0")
                g.e(f"buffer_load_dwordx4 v[{r}:{r+3}], v{gm.vDma+q}, s[{S_B}:{S_B+3}], s{S_KB} offen")
                if q == 4:
                    g.e("s_mov_b32 exec_hi, -1")
            g.e(f"s_add_u32 s{S_JB}, s{S_JB}, 1")
            g.e(f"s_add_u32 s{S_KB2}, s{S_JB}, s{S_ROT}")
            g.e(f"s_and_b32 s{S_KB2}, s{S_KB2}, {W_-1}")
            g.e(f"s_and_b32 s{S_T}, s{S_JB}, {(~(W_-1)) & 0xffff}")
            g.e(f"s_or_b32 s{S_KB2}, s{S_KB2}, s{S_T}")
        def pre4(slot):
            for q in range(5):
                g.e(f"v_add_u32 v2, s{S_KQ+slot}, v{vkl+q}")
                g.e(f"ds_read_b64 v[{vtb+2*q}:{vtb+2*q+1}], v2")
        def norm4(slot):
            g.e("s_waitcnt lgkmcnt(0)")
            for q in range(5):
                r = vst + slot * 20 + q * 4
                for d in range(4):
                    unpack_lo(g, 2, r + d)
                    unpack_hi(g, 3, r + d)
                    g.e(f"v_pk_fma_f32 v[2:3], v[2:3], v[{vtb+2*q}:{vtb+2*q+1}], v[{vtb+2*q}:{vtb+2*q+1}] op_sel:[0,1,0] op_sel_hi:[1,1,0]")
                    g.e(f"v_cvt_pk_bf16_f32 v{r+d}, v2, v3")
                if q == 4:
                    g.e("s_mov_b32 exec_hi, 0")
                g.e(f"ds_write_b128 v{vwa}, v[{r}:{r+3}] offset:{slot*gm.STAGE + q*1024}")
                if q == 4:
                    g.e("s_mov_b32 exec_hi, -1")
            g.e("s_waitcnt lgkmcnt(0)")
        g.e(f"s_mov_b32 s{S_JB}, 0")
        g.e(f"s_and_b32 s{S_KB2}, s{S_ROT}, {W_-1}")
        issueB(0)
        for j in range(NS - 1):
            issueA(j)
            issueB(j + 1)
        g.e(f"s_waitcnt vmcnt({5 + (NS-1)*9})")
        for i in range(8):
            a_ = tq + 4 + 2 * i
            ln_from_sums(g, a_, a_ + 1, 2304, 4, 5, 6)
            g.e(f"v_mul_f32 v4, v4, v5")
            g.e(f"v_sub_f32 v{a_}, 0, v4")
            g.e(f"v_mov_b32 v{a_+1}, v5")
        g.e(f"v_add_u32 v{tq}, {TAB}, v{tq}")
        for i in range(4):
            g.e(f"ds_write_b128 v{tq}, v[{tq+4+4*i}:{tq+7+4*i}] offset:{16*i}")
        g.e("s_waitcnt lgkmcnt(0)")
        g.e("s_barrier")
        pre4(0)
        g.e(f"s_waitcnt vmcnt({(NS-1)*9})")
        norm4(0)
        issueA(NS - 1)
        issueB(0)
        pre4(1)
        g.e(f"s_waitcnt vmcnt({(NS-1)*9})")
        norm4(1)
        g.e("s_barrier")
        g.e(f"s_mov_b32 s{S_LOOP}, {KT//NS}")
        g.lab(f"{kname}_lloop")
        for s in range(NS):
            g.e(f"s_waitcnt vmcnt({(NS-2)*9 + 5})")
            g.e("s_barrier")
            issueA(s)
            issueB((s + 1) % NS)
            pre4((s + 2) % NS)
            g.e(f"s_waitcnt vmcnt({(NS-1)*9})")
            norm4((s + 2) % NS)
        g.e(f"s_sub_u32 s{S_LOOP}, s{S_LOOP}, 1")
        g.e(f"s_cmp_lg_u32 s{S_LOOP}, 0")
        g.e(f"s_cbranch_scc1 {kname}_lloop")
        g.e("s_waitcnt vmcnt(0)")
        g.e("s_barrier")
        g.e(f"s_branch {kname}_end")
    else:
        for j in range(NS):
            gm.issue(j)
        g.e(f"s_waitcnt vmcnt({(NS-1)*gm.G})")
        g.e("s_barrier")
        g.e(f"s_mov_b32 s{S_LOOP}, {KT//NS}")
        g.lab(f"{kname}_lloop")
        for s in range(NS):
            g.e(f"s_waitcnt vmcnt({(NS-2)*gm.G})")
            g.e("s_barrier")
            gm.issue(s)
        g.e(f"s_sub_u32 s{S_LOOP}, s{S_LOOP}, 1")
        g.e(f"s_cmp_lg_u32 s{S_LOOP}, 0")
        g.e(f"s_cbranch_scc1 {kname}_lloop")
        g.e("s_waitcnt vmcnt(0)")
        if kind == 'k4':
            g.e("s_barrier")
        g.e(f"s_branch {kname}_end")
    g.lab(f"{kname}_comp")
    for i in range(NACC):
        g.e(f"v_mov_b32 v{vacc+i}, 0")
    acc = lambda mt, nt: f"v[{vacc+(mt*NT+nt)*4}:{vacc+(mt*NT+nt)*4+3}]"
    if kind == 'k4' and NORM4:
        g.e("s_barrier")
    g.e("s_barrier")
    for x in gm.reads(0, 0, 0):
        g.e(x)
    if 'stamp' in EXP:
        g.e("s_memrealtime s[92:93]")
    g.e(f"s_mov_b32 s{S_LOOP}, {KT//NS}")
    g.lab(f"{kname}_loop")
    for s in range(NS):
        g.e("s_waitcnt lgkmcnt(0)")
        gm.phase(0, lambda mt: gm.vA[0] + mt * 4, acc, gm.reads(s, 1, 1))
        g.e(f"s_waitcnt lgkmcnt(0)")
        g.e("s_barrier")
        gm.phase(1, lambda mt: gm.vA[1] + mt * 4, acc, gm.reads((s + 1) % NS, 0, 0))
    g.e(f"s_sub_u32 s{S_LOOP}, s{S_LOOP}, 1")
    g.e(f"s_cmp_lg_u32 s{S_LOOP}, 0")
    g.e(f"s_cbranch_scc1 {kname}_loop")
    g.e("s_waitcnt vmcnt(0) lgkmcnt(0)")
    if 'stamp' in EXP:
        g.e("s_memrealtime s[94:95]")
    vt = gm.vB[0]
    voff = vt
    vtmp = vt + 4
    ldc = 4608 if kind == 'k4' else 1152
    g.e(f"v_and_b32 v{vtmp}, 15, v1")
    g.e(f"v_add_u32 v{vtmp}, s{S_T+3}, v{vtmp}")
    g.e(f"s_mov_b32 s{S_T}, {ldc}")
    g.e(f"v_mul_lo_u32 v{vtmp+1}, v{vtmp}, s{S_T}")
    g.e(f"v_lshrrev_b32 v{vtmp+2}, 4, v1")
    g.e(f"v_lshl_add_u32 v{vtmp+1}, v{vtmp+2}, 3, v{vtmp+1}")
    g.e(f"v_add_u32 v{vtmp+1}, s{S_T+4}, v{vtmp+1}")
    for mt in range(MT):
        g.e(f"v_add_u32 v{voff+mt}, {16*mt*ldc}, v{vtmp+1}")
    if kind == 'k4':
        vb = vtmp + 4
        for mt in range(MT):
            g.e(f"v_add_u32 v{vtmp+3}, {16*mt}, v{vtmp}")
            g.e(f"v_lshlrev_b32 v{vtmp+3}, 1, v{vtmp+3}")
            g.e(f"buffer_load_ushort v{vb+mt}, v{vtmp+3}, s[{S_E}:{S_E+3}], 0 offen")
        vq = vb + MT
        vz = (vq + 9 + 3) // 4 * 4
        w = vz + 36
        g.e(f"s_mul_i32 s{S_T}, s{S_T+3}, 4608")
        g.e(f"s_add_u32 s{S_T}, s{S_T}, s{S_T+4}")
        for q in range(9):
            g.e(f"v_add_u32 v{w}, {q*64}, v1")
            g.e(f"v_mul_u32_u24 v{w+1}, 3641, v{w}")
            g.e(f"v_lshrrev_b32 v{w+1}, 16, v{w+1}")
            g.e(f"v_mul_u32_u24 v{w+2}, 18, v{w+1}")
            g.e(f"v_sub_u32 v{w}, v{w}, v{w+2}")
            g.e(f"v_mul_u32_u24 v{w+1}, 4608, v{w+1}")
            g.e(f"v_lshl_add_u32 v{w}, v{w}, 4, v{w+1}")
            g.e(f"v_add_u32 v{vq+q}, s{S_T}, v{w}")
            g.e(f"buffer_load_dwordx4 v[{vz+4*q}:{vz+4*q+3}], v{vq+q}, s[{S_C}:{S_C+3}], 0 offen")
        g.e("s_barrier")
        g.e(f"s_mul_i32 s{S_T+1}, s{S_WAVE}, 9216")
        g.e(f"v_and_b32 v{w}, 15, v1")
        g.e(f"v_mul_u32_u24 v{w}, 288, v{w}")
        g.e(f"v_lshrrev_b32 v{w+1}, 4, v1")
        g.e(f"v_lshl_add_u32 v{w}, v{w+1}, 3, v{w}")
        g.e(f"v_add_u32 v{voff}, s{S_T+1}, v{w}")
        g.e(f"v_lshlrev_b32 v{w}, 4, v1")
        g.e(f"v_add_u32 v{voff+1}, s{S_T+1}, v{w}")
        g.e("s_waitcnt vmcnt(9)")
        for mt in range(MT):
            g.e(f"v_lshlrev_b32 v{vb+mt}, 16, v{vb+mt}")
        for mt in range(MT):
            for nt in range(NT):
                a = vacc + (mt * NT + nt) * 4
                for p in range(2):
                    g.e(f"v_cvt_pk_bf16_f32 v{w}, v{a+2*p}, v{a+2*p+1}")
                    unpack_lo(g, w + 1, w)
                    unpack_hi(g, w + 2, w)
                    g.e(f"v_add_f32 v{w+1}, v{w+1}, v{vb+mt}")
                    g.e(f"v_add_f32 v{w+2}, v{w+2}, v{vb+mt}")
                    g.e(f"v_cvt_pk_bf16_f32 v{a+p}, v{w+1}, v{w+2}")
                g.e(f"ds_write_b64 v{voff}, v[{a}:{a+1}] offset:{mt*16*288 + nt*32}")
        g.e("s_waitcnt lgkmcnt(0)")
        for q in range(9):
            g.e(f"ds_read_b128 v[{vacc+4*q}:{vacc+4*q+3}], v{voff+1} offset:{q*1024}")
        for q in range(9):
            g.e(f"s_waitcnt vmcnt({8-q}) lgkmcnt({8-q})") if q == 0 else g.e(f"s_waitcnt lgkmcnt({8-q})")
            if q == 0:
                g.e("s_waitcnt vmcnt(0)")
            for d in range(4):
                gq = vacc + 4 * q + d
                z = vz + 4 * q + d
                unpack_lo(g, w + 1, gq)
                unpack_hi(g, w + 2, gq)
                unpack_lo(g, w + 3, z)
                unpack_hi(g, w + 4, z)
                g.e(f"v_mul_f32 v{w+1}, v{w+1}, v{w+3}")
                g.e(f"v_mul_f32 v{w+2}, v{w+2}, v{w+4}")
                g.e(f"v_cvt_pk_bf16_f32 v{z}, v{w+1}, v{w+2}")
            g.e(f"buffer_store_dwordx4 v[{vz+4*q}:{vz+4*q+3}], v{vq+q}, s[{S_O}:{S_O+3}], 0 offen")
        vmax = w + 5
    else:
        vz = (vtmp + 6) // 2 * 2
        vlast = vtmp + 4
        for mt in range(MT):
            for nt in range(NT):
                r = vz + (mt * NT + nt) * 2
                g.e(f"buffer_load_dwordx2 v[{r}:{r+1}], v{voff+mt}, s[{S_C}:{S_C+3}], 0 offen offset:{nt*32}")
        g.e(f"v_cmp_gt_u32 vcc, 32, v1")
        g.e(f"v_mov_b32 v{vtmp+3}, 0x40000000")
        g.e(f"v_cndmask_b32 v{vlast}, v{vtmp+3}, v{voff}, vcc")
        w = vz + MT * NT * 2
        g.e("s_waitcnt vmcnt(0)")
        for mt in range(MT):
            for nt in range(NT):
                a = vacc + (mt * NT + nt) * 4
                z = vz + (mt * NT + nt) * 2
                for p in range(2):
                    g.e(f"v_cvt_pk_bf16_f32 v{w}, v{a+2*p}, v{a+2*p+1}")
                    unpack_lo(g, w + 1, w)
                    unpack_hi(g, w + 2, w)
                    unpack_lo(g, w + 3, z + p)
                    unpack_hi(g, w + 4, z + p)
                    g.e(f"v_add_f32 v{w+1}, v{w+1}, v{w+3}")
                    g.e(f"v_add_f32 v{w+2}, v{w+2}, v{w+4}")
                    g.e(f"v_cvt_pk_bf16_f32 v{z+p}, v{w+1}, v{w+2}")
                vo = vlast if nt == NT - 1 else voff + mt
                g.e(f"buffer_store_dwordx2 v[{z}:{z+1}], v{vo}, s[{S_O}:{S_O+3}], 0 offen offset:{nt*32}")
        vmax = w + 5
    epilogue(g, kname)
    vmax = max(vmax, gm.vend, 216)
    assert vmax <= 256, vmax
    return g.text(), descriptor(kname, vmax), gm.lds_bytes


def wave_setup(g):
    g.e("v_and_b32 v1, 63, v0")
    g.e("v_lshrrev_b32 v2, 6, v0")
    g.e("s_nop 0")
    g.e(f"v_readfirstlane_b32 s{S_ROLE}, v2")
    g.e(f"s_and_b32 s{S_WAVE}, s{S_ROLE}, 3")
    g.e(f"s_lshr_b32 s{S_ROLE}, s{S_ROLE}, 2")


def xor_reduce(g, vals, vtmp, vaddr16, vaddr32):
    for va in (vaddr16, vaddr32):
        for i, v in enumerate(vals):
            g.e(f"ds_bpermute_b32 v{vtmp+i}, v{va}, v{v}")
        g.e("s_waitcnt lgkmcnt(0)")
        for i, v in enumerate(vals):
            g.e(f"v_add_f32 v{v}, v{v}, v{vtmp+i}")


def bf16_round(g, v, t):
    g.e(f"v_cvt_pk_bf16_f32 v{t}, v{v}, v{v}")
    g.e(f"v_lshlrev_b32 v{v}, 16, v{t}")


def ln_from_sums(g, vs, vq, n, vm, vr, t):
    g.e(f"v_mul_f32 v{vm}, {1.0/n!r}, v{vs}")
    g.e(f"v_mul_f32 v{vr}, {1.0/n!r}, v{vq}")
    g.e(f"v_fma_f32 v{vr}, -v{vm}, v{vm}, v{vr}")
    g.e(f"v_max_f32 v{vr}, 0, v{vr}")
    bf16_round(g, vm, t)
    bf16_round(g, vr, t)
    g.e(f"v_add_f32 v{vr}, 0x3727c5ac, v{vr}")
    bf16_round(g, vr, t)
    g.e(f"v_sqrt_f32 v{vr}, v{vr}")
    g.e("s_nop 0")
    bf16_round(g, vr, t)
    g.e(f"v_rcp_f32 v{vr}, v{vr}")
    g.e("s_nop 0")


GK1 = -2.0 * 1.4426950408889634 * 0.7978845608028654
GK2 = GK1 * 0.044715


def gelu_pair(g, x0, x1, vk1, vk2, t):
    assert x1 == x0 + 1 and x0 % 2 == 0 and t % 2 == 0
    k1e, k2e = vk1 & ~1, vk2 & ~1
    s1 = 1 if vk1 & 1 else 0
    s2 = 1 if vk2 & 1 else 0
    X = f"v[{x0}:{x0+1}]"
    Tt = f"v[{t}:{t+1}]"
    g.e(f"v_pk_mul_f32 {Tt}, {X}, {X}")
    g.e(f"v_pk_fma_f32 {Tt}, {Tt}, v[{k2e}:{k2e+1}], v[{k1e}:{k1e+1}] op_sel:[0,{s2},{s1}] op_sel_hi:[1,{s2},{s1}]")
    g.e(f"v_pk_mul_f32 {Tt}, {Tt}, {X}")
    g.e(f"v_exp_f32 v{t}, v{t}")
    g.e(f"v_exp_f32 v{t+1}, v{t+1}")
    g.e("s_nop 0")
    g.e(f"v_pk_add_f32 {Tt}, {Tt}, 1.0 op_sel_hi:[1,0]")
    g.e(f"v_rcp_f32 v{t}, v{t}")
    g.e(f"v_rcp_f32 v{t+1}, v{t+1}")
    g.e("s_nop 0")
    g.e(f"v_pk_mul_f32 {X}, {X}, {Tt}")


import struct
def fhex(x):
    return "0x%08x" % struct.unpack("<I", struct.pack("<f", x))[0]


def k3_kernel():
    kname = "k3_kernel"
    g = G()
    MT, NT, BN, NS = 2, 9, 144, 4
    lda, ldb = 1152, 288
    prologue(g, kname, 256)
    wave_setup(g)
    g.e(f"s_and_b32 s{S_T}, s2, 7")
    g.e(f"s_lshr_b32 s{S_T+1}, s2, 3")
    g.e(f"s_lshr_b32 s{S_M0}, s{S_T}, 1")
    g.e(f"s_lshl_b32 s{S_M0}, s{S_M0}, 2")
    g.e(f"s_and_b32 s{S_T+2}, s{S_T+1}, 3")
    g.e(f"s_add_u32 s{S_M0}, s{S_M0}, s{S_T+2}")
    g.e(f"s_lshl_b32 s{S_M0}, s{S_M0}, 7")
    S_P = S_T + 5
    g.e(f"s_and_b32 s{S_P}, s{S_T}, 1")
    g.e(f"s_lshl_b32 s{S_P}, s{S_P}, 3")
    g.e(f"s_lshr_b32 s{S_T+2}, s{S_T+1}, 2")
    g.e(f"s_add_u32 s{S_P}, s{S_P}, s{S_T+2}")
    g.e(f"s_mul_i32 s{S_N0}, s{S_P}, 288")
    g.e("s_waitcnt lgkmcnt(0)")
    srd(g, S_A, P_WS, H_OFF, H_SZ)
    srd(g, S_B, P_WS, TWIN_OFF, TWIN_SZ)
    srd(g, S_C, P_WS, CS_OFF, CS_SZ)
    srd(g, S_E, P_WS, HST_OFF, HST_SZ)
    srd(g, S_F, P_WS, ST_OFF, ST2_SZ)
    g.e(f"s_cmp_ge_u32 s{S_P}, 8")
    g.e(f"s_mov_b32 s{S_T+1}, {Z1_OFF}")
    g.e(f"s_cselect_b32 s{S_T}, {Z2_OFF}, s{S_T+1}")
    g.e(f"s_add_u32 s{S_O}, s{P_WS}, s{S_T}")
    g.e(f"s_addc_u32 s{S_O+1}, s{P_WS+1}, 0")
    g.e(f"s_and_b32 s{S_O+1}, s{S_O+1}, 0xffff")
    g.e(f"s_mov_b32 s{S_O+2}, {Z_SZ}")
    g.e(f"s_mov_b32 s{S_O+3}, 0x00020000")
    NACC = MT * NT * 4
    vacc = 8
    gm = Gemm(g, MT, NT, BN, NS, ldb, 'lds', vacc + NACC)
    gm.rotw = 0
    S_WR = S_T + 3
    S_CB = S_T + 4
    g.e(f"s_mul_i32 s{S_WR}, s{S_WAVE}, {16*MT}")
    g.e(f"s_add_u32 s{S_WR}, s{S_WR}, s{S_M0}")
    g.e(f"s_mul_i32 s{S_CB}, s{S_P}, {2*165888}")
    gm.setup(1, 2, col0_sgpr=S_CB)
    gm.setup_a(1, 2, lda, S_WR)
    T = 18
    SCR = gm.lds_bytes
    lds_total = SCR + 4 * 4608
    S_RS, S_TI = S_T + 8, S_T + 9
    g.e(f"s_cmp_ge_u32 s{S_P}, 8")
    g.e(f"s_movk_i32 s{S_T+1}, 4608")
    g.e(f"s_cselect_b32 s{S_RS}, 288, s{S_T+1}")
    g.e(f"s_movk_i32 s{S_T+1}, 288")
    g.e(f"s_cselect_b32 s{S_TI}, 589824, s{S_T+1}")
    g.e(f"s_and_b32 s{S_T}, s{S_P}, 7")
    g.e(f"s_lshl_b32 s{S_T+1}, s{S_TI}, 1")
    g.e(f"s_mul_i32 s{S_T}, s{S_T}, s{S_T+1}")
    g.e(f"s_mul_i32 s{S_T+1}, s{S_WR}, s{S_RS}")
    g.e(f"s_add_u32 s{S_T}, s{S_T}, s{S_T+1}")
    v = (gm.vend + 3) // 4 * 4
    vCS = v; v += 36
    vM = v; v += 2
    vR = v; v += 2
    vK = v; v += 2
    vq = v; v += 9
    v = (v + 1) // 2 * 2
    vrw = v; v += 12
    vWr, vRd, vCo = 4, 5, 6
    w = (v + 1) // 2 * 2
    assert w + 8 <= 256, w
    g.e(f"s_lshl_b32 s{S_T+2}, s{S_WAVE}, 8")
    for q in range(9):
        g.e(f"v_add_u32 v{w}, {q*64}, v1")
        g.e(f"v_mul_u32_u24 v{w+1}, 3641, v{w}")
        g.e(f"v_lshrrev_b32 v{w+1}, 16, v{w+1}")
        g.e(f"v_mul_u32_u24 v{w+2}, 18, v{w+1}")
        g.e(f"v_sub_u32 v{w}, v{w}, v{w+2}")
        g.e(f"v_mul_lo_u32 v{w+1}, v{w+1}, s{S_RS}")
        g.e(f"v_lshl_add_u32 v{w}, v{w}, 4, v{w+1}")
        g.e(f"v_add_u32 v{vq+q}, s{S_T}, v{w}")
    g.e(f"s_mul_i32 s{S_T+1}, s{S_WAVE}, 4608")
    g.e(f"s_add_u32 s{S_T+1}, s{S_T+1}, {SCR}")
    g.e(f"v_and_b32 v{w}, 15, v1")
    g.e(f"v_mul_u32_u24 v{w}, 288, v{w}")
    g.e(f"v_lshrrev_b32 v{w+1}, 4, v1")
    g.e(f"v_lshl_add_u32 v{w}, v{w+1}, 3, v{w}")
    g.e(f"v_add_u32 v{vWr}, s{S_T+1}, v{w}")
    g.e(f"v_lshlrev_b32 v{w}, 4, v1")
    g.e(f"v_add_u32 v{vRd}, s{S_T+1}, v{w}")
    g.e(f"v_mov_b32 v{vK}, {fhex(GK1)}")
    g.e(f"v_mov_b32 v{vK+1}, {fhex(GK2)}")

    vS = vrw
    if vS % 2: vS += 1
    vS2 = vS + 4
    assert vS2 % 2 == 0 and vS2 + 8 <= 256
    vP16, vP32 = 2, 3
    g.e(f"v_xor_b32 v{vP16}, 16, v1")
    g.e(f"v_lshlrev_b32 v{vP16}, 2, v{vP16}")
    g.e(f"v_xor_b32 v{vP32}, 32, v1")
    g.e(f"v_lshlrev_b32 v{vP32}, 2, v{vP32}")

    def gelu4(a, mt):
        for p_ in range(2):
            unpack_lo(g, w + 4, a + p_)
            unpack_hi(g, w + 5, a + p_)
            gelu_pair(g, w + 4, w + 5, vK, vK + 1, w)
            g.e(f"v_cvt_pk_bf16_f32 v{a+p_}, v{w+4}, v{w+5}")
            unpack_lo(g, w + 4, a + p_)
            unpack_hi(g, w + 5, a + p_)
            g.e(f"v_pk_add_f32 v[{vS2+4*mt}:{vS2+4*mt+1}], v[{vS2+4*mt}:{vS2+4*mt+1}], v[{w+4}:{w+5}]")
            g.e(f"v_pk_fma_f32 v[{vS2+4*mt+2}:{vS2+4*mt+3}], v[{w+4}:{w+5}], v[{w+4}:{w+5}], v[{vS2+4*mt+2}:{vS2+4*mt+3}]")

    def pieces(ps, base):
        for j, (mt, nt) in enumerate(ps):
            g.e(f"ds_read_b64 v[{base+2*j}:{base+2*j+1}], v{vWr} offset:{mt*16*288 + nt*32}")
        for j, (mt, nt) in enumerate(ps):
            g.e(f"s_waitcnt lgkmcnt({len(ps)-1})")
            gelu4(base + 2 * j, mt)
            g.e(f"ds_write_b64 v{vWr}, v[{base+2*j}:{base+2*j+1}] offset:{mt*16*288 + nt*32}")

    def store_tile(t, base):
        g.e("s_waitcnt lgkmcnt(0)")
        for q in range(9):
            g.e(f"ds_read_b128 v[{base+4*q}:{base+4*q+3}], v{vRd} offset:{q*1024}")
        so = f"s{S_TI}" if t else "0"
        for q in range(9):
            g.e(f"s_waitcnt lgkmcnt({8-q})")
            g.e(f"buffer_store_dwordx4 v[{base+4*q}:{base+4*q+3}], v{vq+q}, s[{S_O}:{S_O+3}], {so} offen")

    def flush_stats(mts, lab):
        g.e(f"s_cmp_lt_u32 s{S_P}, 8")
        g.e(f"s_cbranch_scc1 {lab}")
        for mt in mts:
            g.e(f"v_add_f32 v{vS+2*mt}, v{vS2+4*mt}, v{vS2+4*mt+1}")
            g.e(f"v_add_f32 v{vS+2*mt+1}, v{vS2+4*mt+2}, v{vS2+4*mt+3}")
        xor_reduce(g, [vS + 2 * mt + k_ for mt in mts for k_ in range(2)], w, vP16, vP32)
        g.e(f"v_and_b32 v{w}, 15, v1")
        g.e(f"v_add_u32 v{w}, s{S_WR}, v{w}")
        g.e(f"v_lshlrev_b32 v{w}, 3, v{w}")
        g.e("s_mov_b64 exec, 0xffff")
        for mt in mts:
            g.e(f"buffer_atomic_add_f32 v{vS+2*mt}, v{w}, s[{S_F}:{S_F+3}], 0 offen offset:{mt*128}")
            g.e(f"buffer_atomic_add_f32 v{vS+2*mt+1}, v{w}, s[{S_F}:{S_F+3}], 0 offen offset:{mt*128+4}")
        g.e("s_mov_b64 exec, -1")
        g.lab(lab)

    g.e(f"s_cmp_eq_u32 s{S_ROLE}, 0")
    g.e(f"s_cbranch_scc1 {kname}_comp")
    def grp(i):
        t, ks = i // 9, i % 9
        g.e(f"s_mov_b32 s{S_KA}, {ks*128}")
        g.e(f"s_mov_b32 s{S_KB}, {ks*64*ldb + t*165888}")
        gm.issue(i % NS)
    for j in range(NS):
        grp(j)
    g.e(f"s_waitcnt vmcnt({(NS-1)*gm.G})")
    g.e("s_barrier")
    for i in range(T):
        last = min(i + NS - 1, T - 1)
        g.e(f"s_waitcnt vmcnt({max(last-(i+1),0)*gm.G})")
        g.e("s_barrier")
        if i + NS < T:
            grp(i + NS)
    g.e(f"s_branch {kname}_end")
    g.lab(f"{kname}_comp")
    g.e(f"v_and_b32 v{w}, 15, v1")
    g.e(f"v_add_u32 v{w}, s{S_WR}, v{w}")
    g.e(f"v_mul_u32_u24 v{vCo}, 64, v{w}")
    for mt in range(MT):
        for i in range(4):
            g.e(f"buffer_load_dwordx4 v[{vacc+mt*24+4*i}:{vacc+mt*24+4*i+3}], v{vCo}, s[{S_E}:{S_E+3}], 0 offen offset:{mt*16*64 + 16*i}")
    g.e(f"v_lshrrev_b32 v{w}, 4, v1")
    g.e(f"v_lshlrev_b32 v{w}, 4, v{w}")
    g.e(f"s_lshl_b32 s{S_T}, s{S_N0}, 2")
    g.e(f"v_add_u32 v{vCo}, s{S_T}, v{w}")
    for nt in range(NT):
        g.e(f"buffer_load_dwordx4 v[{vCS+4*nt}:{vCS+4*nt+3}], v{vCo}, s[{S_C}:{S_C+3}], 0 offen offset:{nt*64}")
    g.e("s_waitcnt vmcnt(9)")
    for mt in range(MT):
        b = vacc + mt * 24
        for i in range(1, 8):
            g.e(f"v_add_f32 v{b}, v{b}, v{b+2*i}")
            g.e(f"v_add_f32 v{b+1}, v{b+1}, v{b+2*i+1}")
        ln_from_sums(g, b, b + 1, 576, vM + mt, vR + mt, w)
        g.e(f"v_sub_f32 v{vM+mt}, 0, v{vM+mt}")
    for i in range(NACC):
        g.e(f"v_mov_b32 v{vacc+i}, 0")
    acc = lambda mt, nt: f"v[{vacc+(mt*NT+nt)*4}:{vacc+(mt*NT+nt)*4+3}]"
    g.e("s_barrier")
    for x in gm.reads(0, 0, 0):
        g.e(x)
    if 'stamp' in EXP:
        g.e("s_memrealtime s[92:93]")
    for i in range(T):
        s = i % NS
        g.e("s_waitcnt lgkmcnt(0)")
        gm.phase(0, lambda mt: gm.vA[0] + mt * 4, acc, gm.reads(s, 1, 1))
        g.e(f"s_waitcnt lgkmcnt(0)")
        g.e("s_barrier")
        gm.phase(1, lambda mt: gm.vA[1] + mt * 4, acc, gm.reads((s + 1) % NS, 0, 0) if i + 1 < T else [])
        if i % 9 == 8:
            t = i // 9
            g.e("s_nop 7")
            g.e("s_nop 1")
            if t == 0:
                g.e("s_waitcnt vmcnt(0)")
            else:
                g.e("s_waitcnt vmcnt(0)")
            for k_ in range(8):
                g.e(f"v_mov_b32 v{vS2+k_}, 0")
            so = f"s{S_TI}" if t else "0"
            for mt in range(MT):
                for nt in range(NT):
                    a = vacc + (mt * NT + nt) * 4
                    for r in (0, 2):
                        g.e(f"v_pk_fma_f32 v[{a+r}:{a+r+1}], v[{vCS+4*nt+r}:{vCS+4*nt+r+1}], v[{vM}:{vM+1}], v[{a+r}:{a+r+1}] op_sel:[0,{mt},0] op_sel_hi:[1,{mt},1]")
                    for r in (0, 2):
                        g.e(f"v_pk_mul_f32 v[{a+r}:{a+r+1}], v[{a+r}:{a+r+1}], v[{vR}:{vR+1}] op_sel:[0,{mt}] op_sel_hi:[1,{mt}]")
                    g.e(f"v_cvt_pk_bf16_f32 v{a}, v{a}, v{a+1}")
                    g.e(f"v_cvt_pk_bf16_f32 v{a+1}, v{a+2}, v{a+3}")
                    gelu4(a, mt)
                    g.e(f"ds_write_b64 v{vWr}, v[{a}:{a+1}] offset:{nt*32}")
                g.e("s_waitcnt lgkmcnt(0)")
                base = vacc + mt * 36
                for q in range(5):
                    if q == 4:
                        g.e("s_mov_b32 exec_hi, 0")
                    g.e(f"ds_read_b128 v[{base+4*q}:{base+4*q+3}], v{vRd} offset:{q*1024}")
                    if q == 4:
                        g.e("s_mov_b32 exec_hi, -1")
                for q in range(5):
                    g.e(f"s_waitcnt lgkmcnt({4-q})")
                    if q == 4:
                        g.e("s_mov_b32 exec_hi, 0")
                    g.e(f"buffer_store_dwordx4 v[{base+4*q}:{base+4*q+3}], v{vq+q}, s[{S_O}:{S_O+3}], {so} offen" + ("" if mt == 0 else ""))
                    if q == 4:
                        g.e("s_mov_b32 exec_hi, -1")
                if mt == 0:
                    g.e(f"s_lshl_b32 s{S_T}, s{S_RS}, 4")
                    for q in range(5):
                        g.e(f"v_add_u32 v{vq+q}, s{S_T}, v{vq+q}")
                else:
                    for q in range(5):
                        g.e(f"v_subrev_u32 v{vq+q}, s{S_T}, v{vq+q}")
            if t == 0:
                for nt in range(NT):
                    g.e(f"buffer_load_dwordx4 v[{vCS+4*nt}:{vCS+4*nt+3}], v{vCo}, s[{S_C}:{S_C+3}], 0 offen offset:{nt*64+576}")
            flush_stats([0, 1], f"{kname}_fs{t}")
            if t == 0:
                g.e("s_nop 1")
                for k_ in range(NACC):
                    g.e(f"v_mov_b32 v{vacc+k_}, 0")
    if 'stamp' in EXP:
        g.e("s_memrealtime s[94:95]")
    epilogue(g, kname)
    return g.text(), descriptor(kname, 256), lds_total


def kn_kernel():
    kname = "kn_kernel"
    g = G()
    prologue(g, kname, 256)
    g.e("s_waitcnt lgkmcnt(0)")
    srd(g, S_A, P_WS, Z2_OFF, Z_SZ)
    srd(g, S_O, P_WS, Z2N_OFF, Z_SZ)
    srd(g, S_F, P_WS, ST_OFF, ST2_SZ)
    g.e(f"s_mul_i32 s{S_M0}, s2, 36864")
    g.e(f"s_and_b32 s{S_T}, s2, 15")
    g.e(f"s_lshl_b32 s{S_T}, s{S_T}, 10")
    for q in range(9):
        g.e(f"v_add_u32 v2, {q*256}, v0")
        g.e(f"v_lshlrev_b32 v{10+q}, 4, v2")
        g.e(f"buffer_load_dwordx4 v[{40+4*q}:{43+4*q}], v{10+q}, s[{S_A}:{S_A+3}], s{S_M0} offen")
        g.e(f"v_mul_u32_u24 v3, 3641, v2")
        g.e(f"v_lshrrev_b32 v3, 16, v3")
        g.e(f"v_lshlrev_b32 v3, 3, v3")
        g.e(f"buffer_load_dwordx2 v[{20+2*q}:{21+2*q}], v3, s[{S_F}:{S_F+3}], s{S_T} offen")
    for c in range(2304):
        assert (c * 3641) >> 16 == c // 18
    for q in range(9):
        g.e(f"s_waitcnt vmcnt({16-q})")
        a = 20 + 2 * q
        ln_from_sums(g, a, a + 1, 2304, 6, 7, 4)
        r = 40 + 4 * q
        for d in range(4):
            unpack_lo(g, 2, r + d)
            unpack_hi(g, 3, r + d)
            g.e(f"v_sub_f32 v2, v2, v6")
            g.e(f"v_sub_f32 v3, v3, v6")
            g.e(f"v_cvt_pk_bf16_f32 v{r+d}, v2, v3")
            unpack_lo(g, 2, r + d)
            unpack_hi(g, 3, r + d)
            g.e(f"v_mul_f32 v2, v2, v7")
            g.e(f"v_mul_f32 v3, v3, v7")
            g.e(f"v_cvt_pk_bf16_f32 v{r+d}, v2, v3")
        g.e(f"buffer_store_dwordx4 v[{r}:{r+3}], v{10+q}, s[{S_O}:{S_O+3}], s{S_M0} offen")
    epilogue(g, kname)
    return g.text(), descriptor(kname, 80), 0


def k2_kernel():
    kname = "k2_kernel"
    g = G()
    NS = 4
    prologue(g, kname, 256)
    g.e("v_and_b32 v1, 63, v0")
    g.e("v_lshrrev_b32 v2, 6, v0")
    g.e("s_nop 0")
    g.e(f"v_readfirstlane_b32 s{S_WAVE}, v2")
    g.e(f"s_and_b32 s{S_T}, s2, 7")
    g.e(f"s_lshr_b32 s{S_T+1}, s2, 3")
    g.e(f"s_lshl_b32 s{S_M0}, s{S_T}, 3")
    g.e(f"s_lshr_b32 s{S_T+2}, s{S_T+1}, 2")
    g.e(f"s_add_u32 s{S_M0}, s{S_M0}, s{S_T+2}")
    S_CBI = S_T + 5
    g.e(f"s_and_b32 s{S_CBI}, s{S_T+1}, 3")
    g.e(f"s_mul_i32 s{S_N0}, s{S_CBI}, 144")
    g.e("s_waitcnt lgkmcnt(0)")
    srd(g, S_A, P_WS, PHIQ_OFF, PHIQ_SZ)
    srd(g, S_B, P_WS, TWO_OFF, TWO_SZ)
    srd(g, S_C, P_WS, ACC_OFF, ACC_SZ)
    srd(g, S_O, P_WS, H_OFF, H_SZ)
    srd(g, S_E, P_X, 0, H_SZ)
    srd(g, S_F, P_WS, HST_OFF, HST_SZ)
    OST = 1168
    OB = 0
    gm = Gemm(g, 1, 5, 144, NS, 288, 'ext', 8, lds_base=32 * OST)
    gm.rotw = 1
    S_CB = S_T + 4
    g.e(f"s_mul_i32 s{S_CB}, s{S_CBI}, 165888")
    gm.setup(1, 2, col0_sgpr=S_CB)
    g.e(f"s_lshl_b32 s{S_CB}, s{S_N0}, 1")
    S_NH = S_T + 6
    g.e(f"s_lshr_b32 s{S_NH}, s{S_WAVE}, 1")
    g.e(f"s_lshl_b32 s{S_T}, s{S_NH}, 7")
    for s_ in range(NS):
        g.e(f"v_add_u32 v{gm.vBaddr+s_}, s{S_T}, v{gm.vBaddr+s_}")
    g.e(f"s_mov_b32 s{S_KA}, 0")
    g.e(f"s_mov_b32 s{S_KB}, 0")
    v = 236
    vL16 = v; v += 1
    vL8 = v; v += 1
    vL8k = v; v += 1
    vOW = v; v += 1
    vAr = v; v += 1
    w = 242
    vZ = 250
    vF = gm.vB[0]
    vD = vF + 192
    assert vD + 12 <= 232
    vacc = gm.vend + 24
    g.e(f"v_lshlrev_b32 v{vL16}, 4, v1")
    g.e(f"v_and_b32 v{vL8}, 15, v1")
    g.e(f"v_lshlrev_b32 v{vL8}, 3, v{vL8}")
    g.e(f"v_lshlrev_b32 v{vL8k}, 3, v1")
    g.e(f"v_and_b32 v{w}, 15, v1")
    g.e(f"v_mul_u32_u24 v{w}, {OST}, v{w}")
    g.e(f"v_lshrrev_b32 v{w+1}, 4, v1")
    g.e(f"v_lshl_add_u32 v{vOW}, v{w+1}, 3, v{w}")
    g.e(f"s_mul_i32 s{S_T}, s{S_WAVE}, {8*36}")
    g.e(f"v_add_u32 v{vOW}, s{S_T}, v{vOW}")
    g.e(f"v_lshl_add_u32 v{vAr}, v{w+1}, 4, v{w}")
    g.e(f"s_and_b32 s{S_T}, s{S_WAVE}, 1")
    g.e(f"s_mul_i32 s{S_T}, s{S_T}, {16*OST}")
    g.e(f"v_add_u32 v{vAr}, s{S_T}, v{vAr}")
    S_PH = S_T + 7
    S_KV = S_T + 8
    g.e(f"s_mul_i32 s{S_PH}, s{S_M0}, {2*32*1152}")
    g.e(f"s_mul_i32 s{S_T}, s{S_WAVE}, {8*1152}")
    g.e(f"s_add_u32 s{S_PH}, s{S_PH}, s{S_T}")
    g.e(f"s_mul_i32 s{S_KV}, s{S_WAVE}, {8*3072}")
    for h in range(8):
        b = vF + h * 24
        for pp in range(3):
            g.e(f"buffer_load_dwordx4 v[{b+4*pp}:{b+4*pp+3}], v{vL16}, s[{S_C}:{S_C+3}], s{S_KV} offen offset:{pp*1024}")
        for mt in range(2):
            g.e(f"s_add_u32 s{S_T}, s{S_PH}, {mt*32*1152}")
            r = b + 12 + 6 * mt
            g.e(f"buffer_load_dwordx4 v[{r}:{r+3}], v{vL16}, s[{S_A}:{S_A+3}], s{S_T} offen")
            g.e(f"buffer_load_dwordx2 v[{r+4}:{r+5}], v{vL8}, s[{S_A}:{S_A+3}], s{S_T} offen offset:1024")
        g.e(f"s_add_u32 s{S_KV}, s{S_KV}, 3072")
        g.e(f"s_add_u32 s{S_PH}, s{S_PH}, 1152")
    for j in range(NS):
        gm.issue(j)
    def mf(h, db):
        b = vF + h * 24
        z = vZ
        g.e(f"s_waitcnt vmcnt({min((7-h)*7 + NS*gm.D, 63)})")
        for kc in range(3):
            t = kc * 2 + 1
            g.e(f"v_mov_b32_dpp v{z+2*kc}, v{b+2*t} row_newbcast:2 row_mask:0xf bank_mask:0xf")
            g.e(f"v_mov_b32_dpp v{z+2*kc+1}, v{b+2*t+1} row_newbcast:2 row_mask:0xf bank_mask:0xf")
        g.e("s_nop 1")
        for kc in range(3):
            for mt in range(2):
                pb = b + 12 + 6 * mt + 2 * kc
                for o_, aop in enumerate([b + 2 * (kc * 2), b + 2 * (kc * 2 + 1), z + 2 * kc]):
                    d = db + 12 * mt + 4 * o_
                    c = "0" if kc == 0 else f"v[{d}:{d+3}]"
                    g.e(f"v_mfma_f32_16x16x16_bf16 v[{d}:{d+3}], v[{aop}:{aop+1}], v[{pb}:{pb+1}], {c}")
    def fin(h, db):
        for mt in range(2):
            D = db + 12 * mt
            g.e(f"v_cvt_pk_bf16_f32 v{w}, v{D+8}, v{D+8}")
            g.e(f"v_lshlrev_b32 v{D+8}, 16, v{w}")
            g.e(f"v_add_f32 v{D+8}, 0x358637bd, v{D+8}")
            g.e(f"v_cvt_pk_bf16_f32 v{w}, v{D+8}, v{D+8}")
            g.e(f"v_lshlrev_b32 v{D+8}, 16, v{w}")
            g.e(f"v_rcp_f32 v{D+8}, v{D+8}")
            for p_ in range(3):
                g.e(f"v_cvt_pk_bf16_f32 v{w+1+p_}, v{D+2*p_}, v{D+2*p_+1}")
            for p_ in range(3):
                unpack_lo(g, D + 2 * p_, w + 1 + p_)
                unpack_hi(g, D + 2 * p_ + 1, w + 1 + p_)
            for r in range(6):
                g.e(f"v_mul_f32 v{D+r}, v{D+r}, v{D+8}")
            for p_ in range(3):
                g.e(f"v_cvt_pk_bf16_f32 v{D+9+p_}, v{D+2*p_}, v{D+2*p_+1}")
            off = mt * 16 * OST + 36 * h
            g.e(f"ds_write_b32 v{vOW}, v{D+9} offset:{off}")
            g.e(f"ds_write_b32 v{vOW}, v{D+10} offset:{off+4}")
            g.e("s_mov_b64 exec, 0xffff")
            g.e(f"ds_write_b32 v{vOW}, v{D+11} offset:{off+32}")
            g.e("s_mov_b64 exec, -1")
    DB0 = 212
    def dbuf(h):
        return DB0 if h == 0 else vF + (h - 1) * 24
    mf(0, dbuf(0))
    for h in range(8):
        if h + 1 < 8:
            mf(h + 1, dbuf(h + 1))
        else:
            g.e("s_nop 7")
            g.e("s_nop 3")
        fin(h, dbuf(h))
    if 'stamp' in EXP:
        g.e("s_memrealtime s[92:93]")
    w = 120
    for i in range(20):
        g.e(f"v_mov_b32 v{vacc+i}, 0")
    vX = (gm.vend + 3) // 4 * 4
    vXo = w + 8
    g.e(f"s_and_b32 s{S_T}, s{S_WAVE}, 1")
    g.e(f"s_lshl_b32 s{S_T}, s{S_T}, 4")
    g.e(f"s_lshl_b32 s{S_T+1}, s{S_M0}, 5")
    g.e(f"s_add_u32 s{S_T}, s{S_T}, s{S_T+1}")
    g.e(f"v_and_b32 v{w}, 15, v1")
    g.e(f"v_add_u32 v{w}, s{S_T}, v{w}")
    g.e(f"v_mov_b32 v{w+9}, v{w}")
    g.e(f"v_mul_u32_u24 v{w}, 1152, v{w}")
    g.e(f"v_lshrrev_b32 v{w+1}, 4, v1")
    g.e(f"v_lshl_add_u32 v{w}, v{w+1}, 3, v{w}")
    g.e(f"s_lshl_b32 s{S_T+1}, s{S_NH}, 7")
    g.e(f"s_add_u32 s{S_T+1}, s{S_T+1}, s{S_CB}")
    g.e(f"v_add_u32 v{vXo}, s{S_T+1}, v{w}")
    for nt in range(5):
        g.e(f"buffer_load_dwordx2 v[{vX+2*nt}:{vX+2*nt+1}], v{vXo}, s[{S_E}:{S_E+3}], 0 offen offset:{32*nt}")
    vAf = vX + 12
    acc = lambda mt, nt: f"v[{vacc+nt*4}:{vacc+nt*4+3}]"
    def rd(i, ks, dst):
        r = vAf + dst * 4
        return [f"ds_read_b128 v[{r}:{r+3}], v{vAr} offset:{(i*64+ks*32)*2}"] + gm.reads(i % NS, ks, dst)
    T = 9
    g.e(f"s_waitcnt vmcnt({(NS-1)*gm.D + 5}) lgkmcnt(0)")
    g.e("s_barrier")
    if 'dbgo' in EXP:
        g.e("s_cmp_lg_u32 s2, 0")
        g.e(f"s_cbranch_scc1 {kname}_nodbg")
        srd(g, S_A, P_WS, 0x3C00000, 65536)
        for q in range(37):
            g.e(f"v_lshlrev_b32 v{w}, 2, v0")
            g.e(f"ds_read_b32 v{w+1}, v{w} offset:{q*1024}")
            g.e("s_waitcnt lgkmcnt(0)")
            g.e(f"buffer_store_dword v{w+1}, v{w}, s[{S_A}:{S_A+3}], 0 offen offset:0")
            g.e(f"s_add_u32 s{S_A}, s{S_A}, 1024")
            g.e(f"s_addc_u32 s{S_A+1}, s{S_A+1}, 0")
        g.lab(f"{kname}_nodbg")
    for x in rd(0, 0, 0):
        g.e(x)
    issued = NS
    for i in range(T):
        g.e("s_waitcnt lgkmcnt(0)")
        gm.phase(0, lambda mt: vAf, acc, rd(i, 1, 1))
        if i + 1 < T:
            young = (issued - 1 - (i + 1)) * gm.D + (5 if i + 1 <= NS - 1 else 0)
            g.e(f"s_waitcnt vmcnt({young}) lgkmcnt(0)")
        else:
            g.e("s_waitcnt lgkmcnt(0)")
        g.e("s_barrier")
        if issued < T:
            gm.issue(issued % NS)
            issued += 1
        gm.phase(1, lambda mt: vAf + 4, acc, rd(i + 1, 0, 0) if i + 1 < T else [])
    g.e("s_waitcnt vmcnt(0)")
    if 'stamp' in EXP:
        g.e("s_memrealtime s[94:95]")
    g.e("s_nop 7")
    vS = w + 10
    g.e(f"v_mov_b32 v{vS}, 0")
    g.e(f"v_mov_b32 v{vS+1}, 0")
    g.e(f"s_cmp_eq_u32 s{S_NH}, 1")
    g.e(f"s_cselect_b32 s{S_T}, 0, 1.0")
    for nt in range(5):
        a = vacc + 4 * nt
        for p_ in range(2):
            g.e(f"v_cvt_pk_bf16_f32 v{w}, v{a+2*p_}, v{a+2*p_+1}")
            unpack_lo(g, w + 1, w)
            unpack_hi(g, w + 2, w)
            unpack_lo(g, w + 3, vX + 2 * nt + p_)
            unpack_hi(g, w + 4, vX + 2 * nt + p_)
            g.e(f"v_add_f32 v{w+1}, v{w+1}, v{w+3}")
            g.e(f"v_add_f32 v{w+2}, v{w+2}, v{w+4}")
            g.e(f"v_cvt_pk_bf16_f32 v{vX+2*nt+p_}, v{w+1}, v{w+2}")
            unpack_lo(g, w + 1, vX + 2 * nt + p_)
            unpack_hi(g, w + 2, vX + 2 * nt + p_)
            if nt == 0:
                g.e(f"v_mul_f32 v{w+1}, s{S_T}, v{w+1}")
                g.e(f"v_mul_f32 v{w+2}, s{S_T}, v{w+2}")
            g.e(f"v_add_f32 v{vS}, v{vS}, v{w+1}")
            g.e(f"v_fmac_f32 v{vS+1}, v{w+1}, v{w+1}")
            g.e(f"v_add_f32 v{vS}, v{vS}, v{w+2}")
            g.e(f"v_fmac_f32 v{vS+1}, v{w+2}, v{w+2}")
        g.e(f"buffer_store_dwordx2 v[{vX+2*nt}:{vX+2*nt+1}], v{vXo}, s[{S_O}:{S_O+3}], 0 offen offset:{32*nt}")
    g.e(f"v_xor_b32 v{w+2}, 16, v1")
    g.e(f"v_lshlrev_b32 v{w+2}, 2, v{w+2}")
    g.e(f"v_xor_b32 v{w+3}, 32, v1")
    g.e(f"v_lshlrev_b32 v{w+3}, 2, v{w+3}")
    xor_reduce(g, [vS, vS + 1], w, w + 2, w + 3)
    g.e(f"s_lshl_b32 s{S_T}, s{S_CBI}, 1")
    g.e(f"s_add_u32 s{S_T}, s{S_T}, s{S_NH}")
    g.e(f"s_lshl_b32 s{S_T}, s{S_T}, 3")
    g.e(f"v_lshlrev_b32 v{w}, 6, v{w+9}")
    g.e(f"v_add_u32 v{w}, s{S_T}, v{w}")
    g.e("s_mov_b64 exec, 0xffff")
    g.e(f"buffer_store_dwordx2 v[{vS}:{vS+1}], v{w}, s[{S_F}:{S_F+3}], 0 offen")
    g.e("s_mov_b64 exec, -1")
    epilogue(g, kname)
    return g.text(), descriptor(kname, 256), 32 * OST + gm.lds_bytes


LOG2E = 1.4426950408889634


def retile_jobs(g):
    NTH = 49152
    g.e(f"s_mul_i32 s{S_T}, s2, 192")
    g.e(f"v_add_u32 v2, s{S_T}, v7")

    def map_tile(rowc, tilec, tilebytes, rowbytes):
        def f(vi):
            divmod_const(g, vi, rowc, 5, 7, S_T)
            divmod_const(g, 7, tilec, 6, 24, S_T)
            g.e(f"s_mov_b32 s{S_T}, {tilebytes}")
            g.e(f"v_mul_lo_u32 v6, v6, s{S_T}")
            g.e(f"v_mul_u32_u24 v5, {rowbytes}, v5")
            g.e("v_add_u32 v6, v6, v5")
            g.e("v_lshl_add_u32 v6, v24, 4, v6")
        return f
    jobs = [(P_WO, 576 * 1152, TWO_OFF, TWO_SZ, 576 * 72, map_tile(72, 18, 165888, 288), S_B, S_C),
            (P_WIN, 576 * 9216, TWIN_OFF, TWIN_SZ, 576 * 576, map_tile(576, 18, 165888, 288), 76, 80),
            (P_WOUT, 2304 * 1152, TWOUT_OFF, TWOUT_SZ, 2304 * 72, map_tile(72, 9, 368640, 160), 84, 88)]
    plan = []
    vi, vd = 28, 48
    for (ptr, ssz, doff, dsz, n, mp, ss, sd) in jobs:
        srd(g, ss, ptr, 0, ssz)
        srd(g, sd, P_WS, doff, dsz)
        nj = (n + NTH - 1) // NTH
        for j in range(nj):
            g.e(f"v_add_u32 v{vi}, {NTH*j}, v2")
            g.e(f"v_lshlrev_b32 v6, 4, v{vi}")
            g.e(f"buffer_load_dwordx4 v[{vd}:{vd+3}], v6, s[{ss}:{ss+3}], 0 offen")
            plan.append((vi, vd, sd, mp, n, (j + 1) * NTH > n))
            vi += 1
            vd += 4
    for (vi_, vd_, sd, mp, n, partial) in plan:
        mp(vi_)
        if partial:
            g.e(f"v_cmp_gt_u32 vcc, {n}, v{vi_}")
            g.e("v_mov_b32 v7, 0x40000000")
            g.e("s_nop 0")
            g.e("v_cndmask_b32 v6, v7, v6, vcc")
        g.e(f"v_mov_b32 v{vi_}, v6")
    nl = len(plan)
    for k_, (vi_, vd_, sd, mp, n, partial) in enumerate(plan):
        g.e(f"s_waitcnt vmcnt({nl-1})")
        g.e(f"buffer_store_dwordx4 v[{vd_}:{vd_+3}], v{vi_}, s[{sd}:{sd+3}], 0 offen")
    srd(g, S_A, P_WS, ST_OFF, ST2_SZ)
    for i in range(4):
        g.e(f"v_mov_b32 v{8+i}, 0")
    g.e("v_lshlrev_b32 v6, 4, v2")
    g.e(f"buffer_store_dwordx4 v[8:11], v6, s[{S_A}:{S_A+3}], 0 offen")


def k1_kernel():
    kname = "k1_kernel"
    g = G()
    MT, NT, BN, NS, T = 4, 5, 80, 3, 9
    prologue(g, kname, 256)
    wave_setup(g)
    S_H, S_RB = S_T + 5, S_T + 6
    g.e(f"s_and_b32 s{S_RB}, s2, 7")
    g.e(f"s_lshr_b32 s{S_H}, s2, 3")
    g.e(f"s_lshl_b32 s{S_M0}, s{S_RB}, 8")
    g.e("s_waitcnt lgkmcnt(0)")
    srd(g, S_A, P_X, 0, H_SZ)
    srd(g, S_B, P_WQKV, 0, 576 * 3456)
    srd(g, S_C, P_WPHI, 0, 32 * 648)
    srd(g, S_O, P_WS, PHIQ_OFF, PHIQ_SZ)
    srd(g, S_E, P_WS, KV3_OFF, KV3_SZ)
    srd(g, S_F, P_WS, ACC_OFF, ACC_SZ)
    vacc = 8
    vcs = vacc + 80
    vrs = vcs + 20
    vsq = vrs + 16
    vone = vsq + 16
    LB = 2048
    gm = Gemm(g, MT, NT, BN, NS, 3456, 'lds', vone + 4, lds_base=LB)
    assert gm.vend <= 256
    gm.rotw = 0
    S_WR, S_CB = S_T + 3, S_T + 4
    g.e(f"s_lshl_b32 s{S_WR}, s{S_WAVE}, 6")
    g.e(f"s_add_u32 s{S_WR}, s{S_WR}, s{S_M0}")
    g.e(f"s_mul_i32 s{S_CB}, s{S_H}, 36")

    def colmap(g, vc, t1, t3):
        g.e(f"v_cmp_eq_u32 vcc, 9, v{vc}")
        g.e("s_nop 1")
        g.e(f"v_cndmask_b32 v{vc}, v{vc}, 0, vcc")
        g.e(f"v_mul_u32_u24 v{t1}, 21846, v{vc}")
        g.e(f"v_lshrrev_b32 v{t1}, 16, v{t1}")
        g.e(f"v_mul_u32_u24 v{t3}, 3, v{t1}")
        g.e(f"v_sub_u32 v{vc}, v{vc}, v{t3}")
        g.e(f"v_lshlrev_b32 v{vc}, 4, v{vc}")
        g.e(f"v_mul_u32_u24 v{t1}, 1152, v{t1}")
        g.e(f"v_add_u32 v{vc}, v{vc}, v{t1}")
    for c in range(9):
        assert (c * 21846) >> 16 == c // 3
    gm.setup(1, 2, colmap=colmap, col0_sgpr=S_CB)
    gm.setup_a(1, 2, 1152, S_WR)
    RING = gm.lds_bytes
    QS = 136
    WB = 0
    lds_total = LB + RING
    g.e(f"s_cmp_eq_u32 s{S_ROLE}, 0")
    g.e(f"s_cbranch_scc1 {kname}_comp")
    def grp(i):
        g.e(f"s_mov_b32 s{S_KA}, {i*128}")
        g.e(f"s_mov_b32 s{S_KB}, {i*64*3456}")
        gm.issue(i % NS)
    for j in range(NS):
        grp(j)
    g.e(f"s_waitcnt vmcnt({(NS-1)*gm.G})")
    g.e("s_barrier")
    for i in range(T):
        last = min(i + NS - 1, T - 1)
        g.e(f"s_waitcnt vmcnt({max(last-(i+1),0)*gm.G})")
        g.e("s_barrier")
        if i + NS < T:
            grp(i + NS)
    g.e("v_and_b32 v7, 255, v0")
    g.e(f"s_cmp_eq_u32 s{S_WAVE}, 3")
    g.e(f"s_cbranch_scc1 {kname}_cs")
    retile_jobs(g)
    g.e(f"s_branch {kname}_end")
    g.lab(f"{kname}_cs")
    colsum_job(g, kname, 0)
    g.e(f"s_branch {kname}_end")
    g.lab(f"{kname}_comp")
    g.e(f"s_mul_i32 s{S_T+1}, s{S_H}, 648")
    vw = vacc
    for q in range(6):
        g.e(f"v_add_u32 v{vw+6+q}, {q*64}, v1")
        g.e(f"v_lshlrev_b32 v3, 1, v{vw+6+q}")
        g.e(f"buffer_load_ushort v{vw+q}, v3, s[{S_C}:{S_C+3}], s{S_T+1} offen")
    g.e("s_waitcnt vmcnt(0)")
    for q in range(6):
        g.e(f"v_mul_u32_u24 v2, 3641, v{vw+6+q}")
        g.e(f"v_lshrrev_b32 v2, 16, v2")
        g.e(f"v_mul_u32_u24 v3, 18, v2")
        g.e(f"v_sub_u32 v3, v{vw+6+q}, v3")
        g.e(f"v_mul_u32_u24 v2, 80, v2")
        g.e(f"v_lshl_add_u32 v2, v3, 2, v2")
        g.e(f"v_lshlrev_b32 v{vw+q}, 16, v{vw+q}")
        if q == 5:
            g.e("s_mov_b64 exec, 0xf")
        g.e(f"ds_write_b32 v2, v{vw+q} offset:{WB}")
        if q == 5:
            g.e("s_mov_b64 exec, -1")
    g.e("s_waitcnt lgkmcnt(0)")
    for i in range(80 + 20 + 32):
        g.e(f"v_mov_b32 v{vacc+i}, 0")
    for i in range(4):
        g.e(f"v_mov_b32 v{vone+i}, 0x3f803f80")
    acc = lambda mt, nt: f"v[{vacc+(mt*5+nt)*4}:{vacc+(mt*5+nt)*4+3}]"
    def extra(cur):
        for nt in range(5):
            b = gm.vB[cur] + nt * 4
            c = f"v[{vcs+4*nt}:{vcs+4*nt+3}]"
            g.e(f"v_mfma_f32_16x16x32_bf16 {c}, v[{b}:{b+3}], v[{vone}:{vone+3}], {c}")
        for mt in range(4):
            a = gm.vA[cur] + mt * 4
            c = f"v[{vrs+4*mt}:{vrs+4*mt+3}]"
            g.e(f"v_mfma_f32_16x16x32_bf16 {c}, v[{vone}:{vone+3}], v[{a}:{a+3}], {c}")
            c = f"v[{vsq+4*mt}:{vsq+4*mt+3}]"
            g.e(f"v_mfma_f32_16x16x32_bf16 {c}, v[{a}:{a+3}], v[{a}:{a+3}], {c}")
    g.e("s_barrier")
    for x in gm.reads(0, 0, 0):
        g.e(x)
    for i in range(T):
        s_ = i % NS
        g.e("s_waitcnt lgkmcnt(0)")
        gm.phase(0, lambda mt: gm.vA[0] + 4 * mt, acc, gm.reads(s_, 1, 1))
        extra(0)
        g.e(f"s_waitcnt lgkmcnt(0)")
        g.e("s_barrier")
        gm.phase(1, lambda mt: gm.vA[1] + 4 * mt, acc, gm.reads((s_ + 1) % NS, 0, 0) if i + 1 < T else [])
        extra(1)
    if 'stamp' in EXP:
        g.e("s_memrealtime s[92:93]")
    g.e("s_barrier")
    vt_ = gm.vB[0]
    g.e("v_and_b32 v2, 15, v1")
    g.e("v_lshrrev_b32 v3, 2, v2")
    g.e("v_lshl_add_u32 v3, v3, 4, v2")
    g.e("v_lshlrev_b32 v3, 2, v3")
    g.e("v_and_b32 v4, 3, v1")
    g.e("s_nop 4")
    for mt in range(4):
        q0 = vsq + 4 * mt
        g.e("v_cmp_eq_u32 vcc, 1, v4")
        g.e("s_nop 1")
        g.e(f"v_cndmask_b32 v{vt_+mt}, v{q0}, v{q0+1}, vcc")
        g.e("v_cmp_eq_u32 vcc, 2, v4")
        g.e("s_nop 1")
        g.e(f"v_cndmask_b32 v{vt_+mt}, v{vt_+mt}, v{q0+2}, vcc")
        g.e("v_cmp_eq_u32 vcc, 3, v4")
        g.e("s_nop 1")
        g.e(f"v_cndmask_b32 v{vt_+mt}, v{vt_+mt}, v{q0+3}, vcc")
    for mt in range(4):
        g.e(f"ds_bpermute_b32 v{vt_+4+mt}, v3, v{vt_+mt}")
    g.e("s_waitcnt lgkmcnt(0)")
    for mt in range(4):
        ln_from_sums(g, vrs + 4 * mt, vt_ + 4 + mt, 576, vt_ + 8 + 2 * mt, vt_ + 9 + 2 * mt, 5)
        g.e(f"v_sub_f32 v{vt_+8+2*mt}, 0, v{vt_+8+2*mt}")
    g.e(f"s_mul_i32 s{S_T+2}, s{S_WAVE}, {64*QS}")
    g.e(f"s_add_u32 s{S_T+2}, s{S_T+2}, {LB}")
    g.e("v_and_b32 v3, 15, v1")
    g.e(f"v_mul_u32_u24 v3, {QS}, v3")
    g.e("v_lshrrev_b32 v6, 4, v1")
    g.e("v_lshl_add_u32 v3, v6, 3, v3")
    g.e(f"v_add_u32 v3, s{S_T+2}, v3")
    for mt in range(4):
        for t in range(5):
            a = vacc + 4 * (mt * 5 + t)
            for r in range(4):
                g.e(f"v_fma_f32 v{a+r}, v{vt_+8+2*mt}, v{vcs+4*t+r}, v{a+r}")
            for r in range(4):
                g.e(f"v_mul_f32 v{a+r}, v{a+r}, v{vt_+9+2*mt}")
            g.e(f"v_cvt_pk_bf16_f32 v{a}, v{a}, v{a+1}")
            g.e(f"v_cvt_pk_bf16_f32 v{a+1}, v{a+2}, v{a+3}")
            if t == 4:
                g.e("s_mov_b64 exec, 0xffff")
            g.e(f"ds_write_b64 v3, v[{a}:{a+1}] offset:{mt*16*QS + 32*t}")
            if t == 4:
                g.e("s_mov_b64 exec, -1")
    g.e("s_waitcnt lgkmcnt(0)")
    QB = 0
    vQ, vKk, vV = 8, 17, 26
    vq32, vk32 = 36, 54
    vpq, vpk = 72, 90
    vW = 108
    vE = 148
    vPk = 184
    t0 = 204
    g.e(f"v_mul_u32_u24 v2, {QS}, v1")
    g.e(f"v_add_u32 v2, s{S_T+2}, v2")
    for i in range(9):
        g.e(f"ds_read_b32 v{vQ+i}, v2 offset:{QB + 4*i}")
        g.e(f"ds_read_b32 v{vKk+i}, v2 offset:{QB + 48 + 4*i}")
        g.e(f"ds_read_b32 v{vV+i}, v2 offset:{QB + 96 + 4*i}")
    g.e(f"v_mov_b32 v3, {WB}")
    for c in range(5):
        g.e(f"ds_read_b128 v[{vW+4*c}:{vW+4*c+3}], v3 offset:{16*c}")
    g.e("s_waitcnt lgkmcnt(5)")
    for i in range(9):
        unpack_lo(g, vq32 + 2 * i, vQ + i)
        unpack_hi(g, vq32 + 2 * i + 1, vQ + i)
        unpack_lo(g, vk32 + 2 * i, vKk + i)
        unpack_hi(g, vk32 + 2 * i + 1, vKk + i)
    for d in range(18):
        wb = vW + 20 * (d % 2)
        wn = vW + 20 * ((d + 1) % 2)
        g.e("s_waitcnt lgkmcnt(0)")
        if d + 1 < 18:
            for c in range(5):
                g.e(f"ds_read_b128 v[{wn+4*c}:{wn+4*c+3}], v3 offset:{(d+1)*80 + 16*c}")
        for f in range(0, 18, 2):
            qd, kd = vq32 + d, vk32 + d
            qe, ke = qd & ~1, kd & ~1
            sq = "op_sel:[1,0,0] op_sel_hi:[1,1,1]" if qd & 1 else "op_sel:[0,0,0] op_sel_hi:[0,1,1]"
            if d == 0:
                sq2 = "op_sel:[1,0] op_sel_hi:[1,1]" if qd & 1 else "op_sel:[0,0] op_sel_hi:[0,1]"
                g.e(f"v_pk_mul_f32 v[{vpq+f}:{vpq+f+1}], v[{qe}:{qe+1}], v[{wb+f}:{wb+f+1}] {sq2}")
                g.e(f"v_pk_mul_f32 v[{vpk+f}:{vpk+f+1}], v[{ke}:{ke+1}], v[{wb+f}:{wb+f+1}] {sq2}")
            else:
                g.e(f"v_pk_fma_f32 v[{vpq+f}:{vpq+f+1}], v[{qe}:{qe+1}], v[{wb+f}:{wb+f+1}], v[{vpq+f}:{vpq+f+1}] {sq}")
                g.e(f"v_pk_fma_f32 v[{vpk+f}:{vpk+f+1}], v[{ke}:{ke+1}], v[{wb+f}:{wb+f+1}], v[{vpk+f}:{vpk+f+1}] {sq}")

    def softmax_pm(vp, out):
        for i in range(9):
            g.e(f"v_cvt_pk_bf16_f32 v{t0}, v{vp+2*i}, v{vp+2*i+1}")
            unpack_lo(g, vp + 2 * i, t0)
            unpack_hi(g, vp + 2 * i + 1, t0)
        g.e(f"v_max3_f32 v{t0}, v{vp}, v{vp+1}, v{vp+2}")
        g.e(f"v_min3_f32 v{t0+1}, v{vp}, v{vp+1}, v{vp+2}")
        for i in range(3, 18, 2):
            if i + 1 < 18:
                g.e(f"v_max3_f32 v{t0}, v{t0}, v{vp+i}, v{vp+i+1}")
                g.e(f"v_min3_f32 v{t0+1}, v{t0+1}, v{vp+i}, v{vp+i+1}")
            else:
                g.e(f"v_max_f32 v{t0}, v{t0}, v{vp+i}")
                g.e(f"v_min_f32 v{t0+1}, v{t0+1}, v{vp+i}")
        g.e(f"v_mov_b32 v{t0+4}, {fhex(LOG2E)}")
        g.e(f"v_mul_f32 v{t0}, v{t0}, v{t0+4}")
        g.e(f"v_mul_f32 v{t0+1}, v{t0+1}, v{t0+4}")
        for i in range(18):
            g.e(f"v_fma_f32 v{out+i}, v{vp+i}, v{t0+4}, -v{t0}")
            g.e(f"v_fma_f32 v{out+18+i}, -v{vp+i}, v{t0+4}, v{t0+1}")
        for i in range(36):
            g.e(f"v_exp_f32 v{out+i}, v{out+i}")
        g.e("s_nop 0")
        for half in range(2):
            o = out + 18 * half
            g.e(f"v_add_f32 v{t0+2+half}, v{o}, v{o+1}")
        for i in range(2, 18):
            for half in range(2):
                o = out + 18 * half
                g.e(f"v_add_f32 v{t0+2+half}, v{t0+2+half}, v{o+i}")
        g.e(f"v_rcp_f32 v{t0+2}, v{t0+2}")
        g.e(f"v_rcp_f32 v{t0+3}, v{t0+3}")
        g.e("s_nop 0")
        for half in range(2):
            for i in range(18):
                g.e(f"v_mul_f32 v{out+18*half+i}, v{out+18*half+i}, v{t0+2+half}")
    softmax_pm(vpq, vE)
    for i in range(18):
        g.e(f"v_cvt_pk_bf16_f32 v{vPk+i}, v{vE+2*i}, v{vE+2*i+1}")
    g.e("v_lshrrev_b32 v2, 4, v1")
    g.e(f"v_mul_u32_u24 v2, {32*1152}, v2")
    g.e("v_and_b32 v3, 15, v1")
    g.e("v_lshl_add_u32 v5, v3, 3, v2")
    g.e("v_lshl_add_u32 v4, v3, 4, v2")
    g.e(f"s_lshl_b32 s{S_T}, s{S_RB}, 4")
    g.e(f"s_lshl_b32 s{S_T+1}, s{S_WAVE}, 2")
    g.e(f"s_add_u32 s{S_T}, s{S_T}, s{S_T+1}")
    g.e(f"s_lshl_b32 s{S_T}, s{S_T}, 5")
    g.e(f"s_add_u32 s{S_T}, s{S_T}, s{S_H}")
    g.e(f"s_mul_i32 s{S_T}, s{S_T}, 1152")
    for gg in range(4):
        g.e(f"v_mov_b32 v{vE+4*gg}, v{vPk+2*gg}")
        g.e(f"v_mov_b32 v{vE+4*gg+1}, v{vPk+2*gg+1}")
        g.e(f"v_mov_b32 v{vE+4*gg+2}, v{vPk+8+2*gg}")
        g.e(f"v_mov_b32 v{vE+4*gg+3}, v{vPk+8+2*gg+1}")
        g.e(f"buffer_store_dwordx4 v[{vE+4*gg}:{vE+4*gg+3}], v4, s[{S_O}:{S_O+3}], s{S_T} offen offset:{gg*256}")
    g.e(f"buffer_store_dwordx2 v[{vPk+16}:{vPk+17}], v5, s[{S_O}:{S_O+3}], s{S_T} offen offset:1024")
    g.e("s_nop 1")
    softmax_pm(vpk, vE)
    g.e("s_nop 1")
    vP2 = vpq
    for i in range(18):
        g.e(f"v_cvt_pk_bf16_f32 v{vP2+i}, v{vE+2*i}, v{vE+2*i+1}")
    for i in range(18, 24):
        g.e(f"v_mov_b32 v{vP2+i}, 0")
    for i in range(9):
        g.e(f"v_mov_b32 v{vP2+24+i}, v{vV+i}")
    g.e(f"v_mov_b32 v{vP2+33}, 0x3f80")
    for i in range(34, 40):
        g.e(f"v_mov_b32 v{vP2+i}, 0")
    g.e(f"s_mul_i32 s{S_T+2}, s{S_WAVE}, {64*160}")
    g.e(f"s_add_u32 s{S_T+2}, s{S_T+2}, {LB + 36864}")
    g.e("v_mul_u32_u24 v2, 160, v1")
    g.e(f"v_add_u32 v2, s{S_T+2}, v2")
    for i in range(10):
        g.e(f"ds_write_b128 v2, v[{vP2+4*i}:{vP2+4*i+3}] offset:{16*i}")
    g.e("v_lshrrev_b32 v2, 4, v1")
    g.e("v_lshlrev_b32 v2, 2, v2")
    g.e("v_bfe_u32 v3, v1, 2, 2")
    g.e("v_add_u32 v2, v2, v3")
    g.e("v_mul_u32_u24 v2, 160, v2")
    g.e("v_and_b32 v3, 3, v1")
    g.e("v_lshl_add_u32 v2, v3, 3, v2")
    g.e(f"v_add_u32 v2, s{S_T+2}, v2")
    g.e("s_waitcnt lgkmcnt(0)")
    vFr = 128
    for ks in range(2):
        for t in range(5):
            for half in range(2):
                r = vFr + (ks * 5 + t) * 4 + 2 * half
                g.e(f"ds_read_b64_tr_b16 v[{r}:{r+1}], v2 offset:{(32*ks+16*half)*160 + 32*t}")
    g.e("s_waitcnt lgkmcnt(0)")
    vKV = 8
    for ks in range(2):
        for mt in range(3):
            for nt in range(2):
                d = vKV + (mt * 2 + nt) * 4
                a = vFr + (ks * 5 + mt) * 4
                b = vFr + (ks * 5 + 3 + nt) * 4
                c = "0" if ks == 0 else f"v[{d}:{d+3}]"
                g.e(f"v_mfma_f32_16x16x32_bf16 v[{d}:{d+3}], v[{a}:{a+3}], v[{b}:{b+3}], {c}")
    if 'stamp' in EXP:
        g.e("s_memrealtime s[94:95]")
    RB2 = LB + 81920
    g.e(f"s_mul_i32 s{S_T+2}, s{S_WAVE}, 6144")
    g.e(f"s_add_u32 s{S_T+2}, s{S_T+2}, {RB2}")
    g.e("v_lshlrev_b32 v2, 4, v1")
    g.e(f"v_add_u32 v3, s{S_T+2}, v2")
    g.e("s_nop 6")
    g.e(f"s_cmp_eq_u32 s{S_WAVE}, 0")
    g.e(f"s_cbranch_scc1 {kname}_w0")
    for t in range(6):
        g.e(f"ds_write_b128 v3, v[{vKV+4*t}:{vKV+4*t+3}] offset:{t*1024}")
    g.e("s_waitcnt lgkmcnt(0)")
    g.e("s_barrier")
    g.e(f"s_branch {kname}_fin")
    g.lab(f"{kname}_w0")
    g.e("s_barrier")
    for wv in range(1, 4):
        for t in range(6):
            r = 32 + ((wv - 1) * 6 + t) * 4
            g.e(f"ds_read_b128 v[{r}:{r+3}], v3 offset:{wv*6144 + t*1024}")
    g.e("s_waitcnt lgkmcnt(0)")
    for wv in range(3):
        for i in range(24):
            g.e(f"v_add_f32 v{vKV+i}, v{vKV+i}, v{32+wv*24+i}")
    g.e(f"s_lshl_b32 s{S_T}, s{S_H}, 3")
    g.e(f"s_add_u32 s{S_T}, s{S_T}, s{S_RB}")
    g.e(f"s_mul_i32 s{S_T}, s{S_T}, 6144")
    for t in range(6):
        g.e(f"s_add_u32 s{S_T+1}, s{S_T}, {t*1024}")
        g.e(f"buffer_store_dwordx4 v[{vKV+4*t}:{vKV+4*t+3}], v2, s[{S_E}:{S_E+3}], s{S_T+1} offen sc1")
    g.e("s_waitcnt vmcnt(0)")
    srd(g, S_A, P_DBG, 0, 256)
    g.e(f"s_lshl_b32 s{S_T}, s{S_H}, 2")
    g.e(f"v_mov_b32 v3, s{S_T}")
    g.e("v_mov_b32 v4, 1")
    g.e("s_mov_b64 exec, 1")
    g.e(f"buffer_atomic_add v4, v3, s[{S_A}:{S_A+3}], 0 offen sc0")
    g.e("s_waitcnt vmcnt(0)")
    g.e("s_mov_b64 exec, -1")
    g.e(f"v_readfirstlane_b32 s{S_T}, v4")
    g.e("s_nop 3")
    g.e(f"s_cmp_lg_u32 s{S_T}, 7")
    g.e(f"s_cbranch_scc1 {kname}_fin")
    g.e(f"s_mul_i32 s{S_T}, s{S_H}, {8*6144}")
    for j in range(8):
        for t in range(6):
            r = 32 + (j * 6 + t) * 4
            g.e(f"s_add_u32 s{S_T+1}, s{S_T}, {j*6144 + t*1024}")
            g.e(f"buffer_load_dwordx4 v[{r}:{r+3}], v2, s[{S_E}:{S_E+3}], s{S_T+1} offen sc1")
    for j in range(8):
        g.e(f"s_waitcnt vmcnt({(7-j)*6})")
        for i in range(24):
            if j == 0:
                g.e(f"v_mov_b32 v{vKV+i}, v{32+i}")
            else:
                g.e(f"v_add_f32 v{vKV+i}, v{vKV+i}, v{32+j*24+i}")
    g.e(f"s_mul_i32 s{S_T}, s{S_H}, 3072")
    for pp in range(3):
        d = vKV + 8 * pp
        g.e(f"v_cvt_pk_bf16_f32 v{d}, v{d}, v{d+1}")
        g.e(f"v_cvt_pk_bf16_f32 v{d+1}, v{d+2}, v{d+3}")
        g.e(f"v_cvt_pk_bf16_f32 v{d+2}, v{d+4}, v{d+5}")
        g.e(f"v_cvt_pk_bf16_f32 v{d+3}, v{d+6}, v{d+7}")
        g.e(f"buffer_store_dwordx4 v[{d}:{d+3}], v2, s[{S_F}:{S_F+3}], s{S_T} offen offset:{pp*1024}")
    g.lab(f"{kname}_fin")
    epilogue(g, kname)
    return g.text(), descriptor(kname, 256), lds_total


def divmod_const(g, vx, d, vq, vr, st):
    magic = (2**32 + d - 1) // d
    g.e(f"s_mov_b32 s{st}, {magic}")
    g.e(f"v_mul_hi_u32 v{vq}, v{vx}, s{st}")
    g.e(f"v_mul_u32_u24 v{vr}, {d}, v{vq}")
    g.e(f"v_sub_u32 v{vr}, v{vx}, v{vr}")


def k0_kernel():
    kname = "k0_kernel"
    g = G()
    prologue(g, kname, 256)
    g.e("v_and_b32 v1, 63, v0")
    g.e("v_lshrrev_b32 v2, 6, v0")
    g.e("s_nop 0")
    g.e(f"v_readfirstlane_b32 s{S_WAVE}, v2")
    g.e(f"s_lshl_b32 s{S_T}, s2, 8")
    g.e(f"v_add_u32 v2, s{S_T}, v0")
    g.e("s_waitcnt lgkmcnt(0)")
    srd(g, S_A, P_X, 0, H_SZ)
    srd(g, S_O, P_WS, XN_OFF, H_SZ)
    g.e(f"s_lshl_b32 s{S_M0}, s2, 3")
    g.e(f"s_lshl_b32 s{S_T}, s{S_WAVE}, 1")
    g.e(f"s_add_u32 s{S_M0}, s{S_M0}, s{S_T}")
    g.e(f"s_mul_i32 s{S_M0}, s{S_M0}, 1152")
    g.e("v_lshlrev_b32 v3, 4, v1")
    g.e("v_add_u32 v4, 1024, v3")
    g.e("v_cmp_gt_u32 vcc, 8, v1")
    g.e("v_mov_b32 v5, 0x40000000")
    g.e("v_cndmask_b32 v4, v5, v4, vcc")
    for rr in range(2):
        g.e(f"s_add_u32 s{S_T}, s{S_M0}, {rr*1152}")
        g.e(f"buffer_load_dwordx4 v[{8+rr*8}:{11+rr*8}], v3, s[{S_A}:{S_A+3}], s{S_T} offen")
        g.e(f"buffer_load_dwordx4 v[{12+rr*8}:{15+rr*8}], v4, s[{S_A}:{S_A+3}], s{S_T} offen")

    def map_tile(rowc, tilec, tilebytes, rowbytes):
        def f(vi):
            divmod_const(g, vi, rowc, 5, 7, S_T)
            divmod_const(g, 7, tilec, 6, 24, S_T)
            g.e(f"s_mov_b32 s{S_T}, {tilebytes}")
            g.e(f"v_mul_lo_u32 v6, v6, s{S_T}")
            g.e(f"v_mul_u32_u24 v5, {rowbytes}, v5")
            g.e("v_add_u32 v6, v6, v5")
            g.e("v_lshl_add_u32 v6, v24, 4, v6")
        return f

    def map_qkv(vi):
        divmod_const(g, vi, 864, 5, 7, S_T)
        divmod_const(g, 7, 288, 25, 24, S_T)
        divmod_const(g, 24, 9, 6, 7, S_T)
        g.e(f"s_mov_b32 s{S_T}, 92160")
        g.e(f"v_mul_lo_u32 v6, v6, s{S_T}")
        g.e("v_mul_u32_u24 v5, 160, v5")
        g.e("v_add_u32 v6, v6, v5")
        g.e("v_mul_u32_u24 v25, 36, v25")
        g.e("v_add_u32 v6, v6, v25")
        g.e("v_lshl_add_u32 v6, v7, 2, v6")
    jobs = [(P_WIN, 576 * 9216, TWIN_OFF, TWIN_SZ, 576 * 576, map_tile(576, 18, 165888, 288), 4, 76, 80),
            (P_WOUT, 2304 * 1152, TWOUT_OFF, TWOUT_SZ, 2304 * 72, map_tile(72, 9, 368640, 160), 4, 84, 88),
            (P_WO, 576 * 1152, TWO_OFF, TWO_SZ, 576 * 72, map_tile(72, 18, 165888, 288), 4, S_B, S_C),
            (P_WQKV, 576 * 3456, TQKV_OFF, TQKV_SZ, 576 * 864, map_qkv, 1, S_E, S_F)]
    vi0, vd0 = 28, 48
    plan = []
    vi, vd = vi0, vd0
    for (ptr, ssz, doff, dsz, n, mp, wd, ss, sd) in jobs:
        srd(g, ss, ptr, 0, ssz)
        srd(g, sd, P_WS, doff, dsz)
        nj = (n + 65535) // 65536
        for j in range(nj):
            g.e(f"v_add_u32 v{vi}, {65536*j}, v2")
            g.e(f"v_lshlrev_b32 v6, {4 if wd == 4 else 2}, v{vi}")
            if wd == 4:
                g.e(f"buffer_load_dwordx4 v[{vd}:{vd+3}], v6, s[{ss}:{ss+3}], 0 offen")
            else:
                g.e(f"buffer_load_dword v{vd}, v6, s[{ss}:{ss+3}], 0 offen")
            plan.append((vi, vd, wd, sd, mp, n, (j + 1) * 65536 > n))
            vi += 1
            vd += wd
        vd = (vd + 3) // 4 * 4
    assert vi <= vd0 and vd <= 110
    nl = len(plan)
    for (vi_, vd_, wd, sd, mp, n, partial) in plan:
        mp(vi_)
        if partial:
            g.e(f"v_cmp_gt_u32 vcc, {n}, v{vi_}")
            g.e("v_mov_b32 v7, 0x40000000")
            g.e("s_nop 0")
            g.e("v_cndmask_b32 v6, v7, v6, vcc")
        g.e(f"v_mov_b32 v{vi_}, v6")
    g.e(f"s_waitcnt vmcnt({nl})")
    vs = 112
    g.e("v_mov_b32 v26, 0x3f803f80")
    for rr in range(2):
        g.e(f"v_mov_b32 v{vs+2*rr}, 0")
        g.e(f"v_mov_b32 v{vs+1+2*rr}, 0")
        for d in range(8):
            r = 8 + rr * 8 + d
            g.e(f"v_dot2_f32_bf16 v{vs+2*rr}, v{r}, v26, v{vs+2*rr}")
            g.e(f"v_dot2_f32_bf16 v{vs+1+2*rr}, v{r}, v{r}, v{vs+1+2*rr}")
    for sw in (0x041F, 0x081F, 0x101F, 0x201F, 0x401F):
        for i in range(4):
            g.e(f"ds_swizzle_b32 v{vs+4+i}, v{vs+i} offset:{sw}")
        g.e("s_waitcnt lgkmcnt(0)")
        for i in range(4):
            g.e(f"v_add_f32 v{vs+i}, v{vs+i}, v{vs+4+i}")
    g.e("v_xor_b32 v26, 32, v1")
    g.e("v_lshlrev_b32 v26, 2, v26")
    for i in range(4):
        g.e(f"ds_bpermute_b32 v{vs+4+i}, v26, v{vs+i}")
    g.e("s_waitcnt lgkmcnt(0)")
    for i in range(4):
        g.e(f"v_add_f32 v{vs+i}, v{vs+i}, v{vs+4+i}")
    for rr in range(2):
        ln_from_sums(g, vs + 2 * rr, vs + 1 + 2 * rr, 576, vs + 4 + 2 * rr, vs + 5 + 2 * rr, 26)
    for rr in range(2):
        vm, vr = vs + 4 + 2 * rr, vs + 5 + 2 * rr
        for d in range(8):
            r = 8 + rr * 8 + d
            unpack_lo(g, 26, r)
            unpack_hi(g, 27, r)
            g.e(f"v_sub_f32 v26, v26, v{vm}")
            g.e(f"v_sub_f32 v27, v27, v{vm}")
            g.e(f"v_cvt_pk_bf16_f32 v{r}, v26, v27")
            unpack_lo(g, 26, r)
            unpack_hi(g, 27, r)
            g.e(f"v_mul_f32 v26, v26, v{vr}")
            g.e(f"v_mul_f32 v27, v27, v{vr}")
            g.e(f"v_cvt_pk_bf16_f32 v{r}, v26, v27")
    for k_, (vi_, vd_, wd, sd, mp, n, partial) in enumerate(plan):
        g.e(f"s_waitcnt vmcnt({nl-1-k_})") if k_ == 0 else None
        if k_ == 0:
            g.e("s_waitcnt vmcnt(0)")
        if wd == 4:
            g.e(f"buffer_store_dwordx4 v[{vd_}:{vd_+3}], v{vi_}, s[{sd}:{sd+3}], 0 offen")
        else:
            g.e(f"buffer_store_dword v{vd_}, v{vi_}, s[{sd}:{sd+3}], 0 offen")
    for rr in range(2):
        g.e(f"s_add_u32 s{S_T}, s{S_M0}, {rr*1152}")
        g.e(f"buffer_store_dwordx4 v[{8+rr*8}:{11+rr*8}], v3, s[{S_O}:{S_O+3}], s{S_T} offen")
        g.e(f"buffer_store_dwordx4 v[{12+rr*8}:{15+rr*8}], v4, s[{S_O}:{S_O+3}], s{S_T} offen")
    srd(g, S_A, P_WS, ST_OFF, ST2_SZ)
    for i in range(4):
        g.e(f"v_mov_b32 v{vs+i}, 0")
    g.e("v_lshlrev_b32 v6, 4, v2")
    g.e(f"buffer_store_dwordx4 v[{vs}:{vs+3}], v6, s[{S_A}:{S_A+3}], 0 offen")
    epilogue(g, kname)
    return g.text(), descriptor(kname, 128), 0


def colsum_job(g, kname, first_wg):
    g.e(f"s_sub_u32 s{S_T}, s2, {first_wg}")
    g.e(f"s_cmp_ge_u32 s{S_T}, 144")
    g.e(f"s_cbranch_scc1 {kname}_end")
    srd(g, S_A, P_WIN, 0, 576 * 4608 * 2)
    srd(g, S_B, P_WS, CS_OFF, CS_SZ)
    g.e(f"s_lshl_b32 s{S_T}, s{S_T}, 6")
    g.e("v_lshrrev_b32 v2, 2, v1")
    g.e("v_mul_u32_u24 v2, 9216, v2")
    g.e("v_and_b32 v3, 3, v1")
    g.e("v_lshl_add_u32 v2, v3, 4, v2")
    g.e(f"v_add_u32 v2, s{S_T}, v2")
    for i in range(8):
        g.e(f"v_mov_b32 v{8+i}, 0")
    for q in range(36):
        g.e(f"s_mov_b32 s{S_T+1}, {q*16*9216}")
        g.e(f"buffer_load_dwordx4 v[{16+4*q}:{19+4*q}], v2, s[{S_A}:{S_A+3}], s{S_T+1} offen")
    for q in range(36):
        g.e(f"s_waitcnt vmcnt({35-q})")
        for d in range(4):
            unpack_lo(g, 4, 16 + 4 * q + d)
            unpack_hi(g, 5, 16 + 4 * q + d)
            g.e(f"v_add_f32 v{8+2*d}, v{8+2*d}, v4")
            g.e(f"v_add_f32 v{9+2*d}, v{9+2*d}, v5")
    for x in (4, 8, 16, 32):
        g.e(f"v_xor_b32 v4, {x}, v1")
        g.e("v_lshlrev_b32 v4, 2, v4")
        for i in range(8):
            g.e(f"ds_bpermute_b32 v{16+i}, v4, v{8+i}")
        g.e("s_waitcnt lgkmcnt(0)")
        for i in range(8):
            g.e(f"v_add_f32 v{8+i}, v{8+i}, v{16+i}")
    g.e(f"s_lshl_b32 s{S_T}, s{S_T}, 1")
    g.e("v_lshlrev_b32 v4, 5, v1")
    g.e(f"v_add_u32 v4, s{S_T}, v4")
    g.e("s_mov_b64 exec, 0xf")
    g.e(f"buffer_store_dwordx4 v[8:11], v4, s[{S_B}:{S_B+3}], 0 offen")
    g.e(f"buffer_store_dwordx4 v[12:15], v4, s[{S_B}:{S_B+3}], 0 offen offset:16")
    g.e("s_mov_b64 exec, -1")


HEADER = open(__file__.replace("dev/gen.py", "cdna_kernels/" + NAME + ".s.ref")).read().split("; Override launch")[0]


def build(which=None):
    kernels = []
    t, d, l = k1_kernel()
    kernels.append(("k1_kernel", 256, 512, l, t, d))
    t, d, l = k2_kernel()
    kernels.append(("k2_kernel", 256, 256, l, t, d))
    t, d, l = k3_kernel()
    kernels.append(("k3_kernel", 256, 512, l, t, d))
    t, d, l = kn_kernel()
    kernels.append(("kn_kernel", 256, 256, l, t, d))
    t, d, l = gemm_global_kernel("k4_kernel", 'k4')
    kernels.append(("k4_kernel", 256, 512, l, t, d))
    t, d, l = gemm_global_kernel("k5_kernel", 'k5')
    kernels.append(("k5_kernel", 256, 512, l, t, d))
    out = HEADER
    for (n, grid, blk, lds, t, d) in kernels:
        out += f"; @launch kernel={n} grid=({grid},1,1) block=({blk},1,1) lds={lds}\n"
    out += '.amdgcn_target "amdgcn-amd-amdhsa--gfx950"\n.text\n'
    for k in kernels:
        out += k[4]
    out += '.section .rodata,"a"\n'
    for k in kernels:
        out += k[5]
    return out


if __name__ == "__main__":
    path = sys.argv[1] if len(sys.argv) > 1 else f"cdna_kernels/{NAME}.s"
    open(path, "w").write(build())
    print("wrote", path)
```

```python
import sys, os
EXP = os.environ.get('EXP','')

NAME = "sequential_preLN__linear_kernel_hedgehog__mixer_gmlp__prompt"

PHIQ_OFF, PHIQ_SZ = 0x0000000, 128 * 32 * 1152 + 512
KVP_OFF, KVP_SZ = 0x0600000, 8 * 32 * 4 * 6 * 1024
KVT_OFF, KVT_SZ = 0x0C00000, 32 * 4608
H_OFF, H_SZ = 0x0D00000, 2048 * 576 * 2
Z1_OFF, Z_SZ = 0x1000000, 2048 * 2304 * 2
Z2_OFF = 0x1A00000
Z2N_OFF = 0x2400000
ST_OFF, ST_SZ = 0x2E00000, 2048 * 16 * 2 * 4
U_OFF = 0x3000000
HST_OFF, HST_SZ = 0x3A00000, 2048 * 8 * 8
CS_OFF, CS_SZ = 0x3B00000, 4608 * 4
XN_OFF = 0x0600000
ACC_OFF, ACC_SZ = 0x0C00000, 32 * 3072
KV3_OFF, KV3_SZ = 0x0900000, 32 * 8 * 6144
TQKV_OFF, TQKV_SZ = 0x4000000, 32 * 576 * 160
TWO_OFF, TWO_SZ = 0x4300000, 4 * 576 * 288
TWIN_OFF, TWIN_SZ = 0x4400000, 32 * 576 * 288
TWOUT_OFF, TWOUT_SZ = 0x4A00000, 8 * 2304 * 160
ST2_SZ = 2048 * 8

P_X, P_WQKV, P_WPHI, P_WO, P_BX, P_WIN, P_WSP, P_BSP = 4, 6, 8, 10, 12, 14, 16, 18
P_WOUT, P_OUT, P_DBG, P_WS = 20, 22, 24, 26
S_A, S_B, S_C, S_O, S_E, S_F = 28, 32, 36, 40, 44, 48


class G:
    def __init__(self):
        self.L = []

    def e(self, s):
        self.L.append("    " + s)

    def lab(self, s):
        self.L.append(s + ":")

    def c(self, s):
        self.L.append("    ; " + s)

    def text(self):
        return "\n".join(self.L) + "\n"


def srd(g, sd, ptr, off, size):
    if off:
        g.e(f"s_add_u32 s{sd}, s{ptr}, {off}")
        g.e(f"s_addc_u32 s{sd+1}, s{ptr+1}, 0")
        g.e(f"s_and_b32 s{sd+1}, s{sd+1}, 0xffff")
    else:
        g.e(f"s_mov_b32 s{sd}, s{ptr}")
        g.e(f"s_and_b32 s{sd+1}, s{ptr+1}, 0xffff")
    g.e(f"s_mov_b32 s{sd+2}, {size}")
    g.e(f"s_mov_b32 s{sd+3}, 0x00020000")


def prologue(g, kname, nwg):
    g.L.append(f".globl {kname}")
    g.L.append(".p2align 8")
    g.L.append(f".type {kname},@function")
    g.lab(kname)
    g.e(f"s_cmp_ge_u32 s2, {nwg}")
    g.e(f"s_cbranch_scc1 {kname}_end")
    g.e("s_load_dwordx16 s[4:19], s[0:1], 0")
    g.e("s_load_dwordx8 s[20:27], s[0:1], 64")
    if 'stamp' in EXP:
        g.e("s_memrealtime s[96:97]")
        g.e("s_mov_b32 s92, 0")
        g.e("s_mov_b32 s94, 0")


STAMP_OFF = 0x3F00000
def epilogue(g, kname):
    if 'stamp' in EXP:
        idx = int(kname[1]) if kname[1].isdigit() else 6
        g.e("s_waitcnt vmcnt(0) lgkmcnt(0)")
        g.e("s_memrealtime s[98:99]")
        srd(g, S_F, P_WS, STAMP_OFF + idx * 16384, 16384)
        g.e("s_waitcnt lgkmcnt(0)")
        g.e("v_mov_b32 v2, s96")
        g.e("v_mov_b32 v3, s98")
        g.e("v_mov_b32 v4, s92")
        g.e("v_mov_b32 v5, s94")
        g.e("s_lshl_b32 s96, s2, 4")
        g.e("v_mov_b32 v6, s96")
        g.e("v_cmp_eq_u32 vcc, 0, v0")
        g.e("s_and_saveexec_b64 s[96:97], vcc")
        g.e(f"buffer_store_dwordx4 v[2:5], v6, s[{S_F}:{S_F+3}], 0 offen")
    g.lab(f"{kname}_end")
    g.e("s_endpgm")


def descriptor(kname, vgpr, agpr=0, sgpr=100):
    acc = (vgpr + 3) // 4 * 4
    tot = acc + agpr if agpr else vgpr
    return f""".p2align 6
.amdhsa_kernel {kname}
  .amdhsa_next_free_vgpr {tot}
  .amdhsa_next_free_sgpr {sgpr}
  .amdhsa_accum_offset {acc}
  .amdhsa_group_segment_fixed_size 0
  .amdhsa_kernarg_size 96
  .amdhsa_user_sgpr_count 2
  .amdhsa_user_sgpr_kernarg_segment_ptr 1
  .amdhsa_system_sgpr_workgroup_id_x 1
.end_amdhsa_kernel
"""


def swap23(r):
    return (r & 3) | ((r & 4) << 1) | ((r & 8) >> 1)


S_WAVE = 52
S_WB = 53
S_KB = 54
S_KA = 55
S_LOOP = 56
S_M0 = 57
S_N0 = 58
S_WA = 59
S_T = 60
S_J = 70
S_ROT = 71
S_ROLE = 72


class Gemm:
    def __init__(self, g, MT, NT, BN, NS, ldb, a_mode, vbase, lds_base=0):
        self.g = g
        self.MT, self.NT, self.BN, self.NS = MT, NT, BN, NS
        self.ldb = ldb
        self.a_mode = a_mode
        self.S = BN * 2
        self.CPR = BN // 8
        self.STAGE = 64 * self.S
        self.ASTAGE = 4 * MT * 16 * 128 if a_mode == 'lds' else 0
        self.a_base = lds_base
        self.b_base = lds_base + NS * self.ASTAGE
        nch = 16 * self.CPR
        self.nfull = nch // 64
        self.half = (nch % 64) // 32
        assert nch % 32 == 0
        self.D = self.nfull + self.half
        self.DA = 2 * MT if a_mode == 'lds' else 0
        v = vbase
        self.vDma = v; v += self.D
        self.vBaddr = v; v += NS
        if a_mode == 'lds':
            self.vDmaA = v; v += self.DA
            self.a_multi = NS * self.ASTAGE > 65536
            self.vAaddr = v; v += 2 * (NS if self.a_multi else 1)
        v = (v + 3) // 4 * 4
        self.vB = [v, v + NT * 4]; v += 2 * NT * 4
        if a_mode == 'lds':
            self.vA = [v, v + MT * 4]; v += 2 * MT * 4
        self.G = (0 if 'nob' in EXP else self.D) + (0 if 'noa' in EXP else self.DA)
        self.vend = v
        self.rotw = 1
        self.lds_bytes = NS * (self.STAGE + self.ASTAGE)

    def setup(self, vlane, vt0, colmap=None, col0_sgpr=None):
        g = self.g
        t0, t1, t2, t3 = vt0, vt0 + 1, vt0 + 2, vt0 + 3
        magic = (65536 + self.CPR - 1) // self.CPR
        for c in range(self.D * 64):
            assert (c * magic) >> 16 == c // self.CPR
        g.e(f"s_mul_i32 s{S_WB}, s{S_WAVE}, {16*self.S}")
        g.e(f"s_add_u32 s{S_WB}, s{S_WB}, {self.b_base}")
        g.e(f"s_lshl_b32 s{S_T}, s{S_WAVE}, 4")
        for q in range(self.D):
            g.e(f"v_add_u32 v{t0}, {q*64}, v{vlane}")
            g.e(f"v_mul_u32_u24 v{t1}, {magic}, v{t0}")
            g.e(f"v_lshrrev_b32 v{t1}, 16, v{t1}")
            g.e(f"v_mul_u32_u24 v{t2}, {self.CPR}, v{t1}")
            g.e(f"v_sub_u32 v{t0}, v{t0}, v{t2}")
            g.e(f"v_and_b32 v{t2}, 3, v{t1}")
            g.e(f"v_and_b32 v{t3}, 4, v{t1}")
            g.e(f"v_lshl_or_b32 v{t2}, v{t3}, 1, v{t2}")
            g.e(f"v_and_b32 v{t3}, 8, v{t1}")
            g.e(f"v_lshrrev_b32 v{t3}, 1, v{t3}")
            g.e(f"v_or_b32 v{t2}, v{t2}, v{t3}")
            g.e(f"v_add_u32 v{t2}, s{S_T}, v{t2}")
            g.e(f"s_mov_b32 s{S_T+1}, {self.ldb}")
            g.e(f"v_mul_lo_u32 v{t2}, v{t2}, s{S_T+1}")
            if colmap is None:
                g.e(f"v_lshlrev_b32 v{t0}, 4, v{t0}")
            else:
                colmap(g, t0, t1, t3)
            g.e(f"v_add_u32 v{self.vDma+q}, v{t2}, v{t0}")
            if col0_sgpr is not None:
                g.e(f"v_add_u32 v{self.vDma+q}, s{col0_sgpr}, v{self.vDma+q}")
        g.e(f"v_lshrrev_b32 v{t0}, 5, v{vlane}")
        g.e(f"v_lshlrev_b32 v{t0}, 4, v{t0}")
        g.e(f"v_bfe_u32 v{t1}, v{vlane}, 4, 1")
        g.e(f"v_lshl_or_b32 v{t0}, v{t1}, 2, v{t0}")
        g.e(f"v_bfe_u32 v{t1}, v{vlane}, 2, 2")
        g.e(f"v_add_u32 v{t0}, v{t0}, v{t1}")
        g.e(f"v_mul_u32_u24 v{t0}, {self.S}, v{t0}")
        g.e(f"v_and_b32 v{t1}, 3, v{vlane}")
        g.e(f"v_lshl_add_u32 v{t0}, v{t1}, 3, v{t0}")
        for s in range(self.NS):
            g.e(f"v_add_u32 v{self.vBaddr+s}, {self.b_base + s*self.STAGE}, v{t0}")

    def setup_a(self, vlane, vt0, lda, srow0):
        g = self.g
        t0, t1, t2 = vt0, vt0 + 1, vt0 + 2
        g.e(f"s_mul_i32 s{S_WA}, s{S_WAVE}, {self.MT*16*128}")
        if self.a_base:
            g.e(f"s_add_u32 s{S_WA}, s{S_WA}, {self.a_base}")
        g.e(f"v_lshrrev_b32 v{t0}, 3, v{vlane}")
        g.e(f"v_and_b32 v{t1}, 7, v{vlane}")
        g.e(f"v_xor_b32 v{t1}, v{t1}, v{t0}")
        g.e(f"v_add_u32 v{t0}, s{srow0}, v{t0}")
        g.e(f"s_mov_b32 s{S_T}, {lda}")
        g.e(f"v_mul_lo_u32 v{t0}, v{t0}, s{S_T}")
        g.e(f"v_lshl_add_u32 v{t0}, v{t1}, 4, v{t0}")
        for q in range(self.DA):
            g.e(f"v_add_u32 v{self.vDmaA+q}, {8*q*lda}, v{t0}")
        g.e(f"v_and_b32 v{t0}, 15, v{vlane}")
        g.e(f"v_lshrrev_b32 v{t1}, 4, v{vlane}")
        g.e(f"v_and_b32 v{t2}, 7, v{vlane}")
        g.e(f"v_xor_b32 v{t1}, v{t1}, v{t2}")
        g.e(f"v_lshlrev_b32 v{t1}, 4, v{t1}")
        g.e(f"v_lshl_add_u32 v{t0}, v{t0}, 7, v{t1}")
        g.e(f"v_add_u32 v{self.vAaddr}, s{S_WA}, v{t0}")
        g.e(f"v_xor_b32 v{self.vAaddr+1}, 64, v{self.vAaddr}")
        if self.a_multi:
            for sl in range(1, self.NS):
                g.e(f"v_add_u32 v{self.vAaddr+2*sl}, {sl*self.ASTAGE}, v{self.vAaddr}")
                g.e(f"v_add_u32 v{self.vAaddr+2*sl+1}, {sl*self.ASTAGE}, v{self.vAaddr+1}")

    def dma_items(self, slot):
        items = []
        if self.a_mode == 'lds' and 'noa' not in EXP:
            for q in range(self.DA):
                pre = [f"s_add_u32 m0, s{S_WA}, {slot*self.ASTAGE + q*1024}"]
                main = [f"buffer_load_dwordx4 v{self.vDmaA+q}, s[{S_A}:{S_A+3}], s{S_KA} offen lds"]
                items.append((pre, main))
        if 'nob' not in EXP:
            for q in range(self.D):
                pre = [f"s_add_u32 m0, s{S_WB}, {slot*self.STAGE + q*1024}"]
                main = [f"buffer_load_dwordx4 v{self.vDma+q}, s[{S_B}:{S_B+3}], s{S_KB} offen lds"]
                if q == self.nfull:
                    main = ["s_mov_b32 exec_hi, 0"] + main + ["s_mov_b32 exec_hi, -1"]
                if q == self.D - 1:
                    main += self.next_k()
                items.append((pre, main))
        return items

    def next_k(self):
        W = self.rotw
        if W == 0:
            return []
        if W <= 1:
            return [f"s_add_u32 s{S_KB}, s{S_KB}, {64*self.ldb}", f"s_add_u32 s{S_KA}, s{S_KA}, 128"]
        return [f"s_add_u32 s{S_J}, s{S_J}, 1",
                f"s_add_u32 s{S_KA}, s{S_J}, s{S_ROT}",
                f"s_and_b32 s{S_KA}, s{S_KA}, {W-1}",
                f"s_and_b32 s{S_KB}, s{S_J}, {(~(W-1)) & 0xffff}",
                f"s_or_b32 s{S_KA}, s{S_KA}, s{S_KB}",
                f"s_mul_i32 s{S_KB}, s{S_KA}, {64*self.ldb}",
                f"s_lshl_b32 s{S_KA}, s{S_KA}, 7"]

    def init_k(self):
        g = self.g
        g.e(f"s_mov_b32 s{S_J}, 0")
        g.e(f"s_and_b32 s{S_KA}, s{S_ROT}, {max(self.rotw-1,0)}")
        g.e(f"s_mul_i32 s{S_KB}, s{S_KA}, {64*self.ldb}")
        g.e(f"s_lshl_b32 s{S_KA}, s{S_KA}, 7")

    def issue(self, slot):
        for pre, main in self.dma_items(slot):
            for x in pre:
                self.g.e(x)
            self.g.e("s_nop 0")
            for x in main:
                self.g.e(x)

    def reads(self, slot, ks, dst):
        out = []
        if 'nord' in EXP:
            return out
        if self.a_mode == 'lds':
            for mt in range(self.MT):
                r = self.vA[dst] + mt * 4
                if self.a_multi:
                    out.append(f"ds_read_b128 v[{r}:{r+3}], v{self.vAaddr+2*slot+ks} offset:{mt*2048}")
                else:
                    out.append(f"ds_read_b128 v[{r}:{r+3}], v{self.vAaddr+ks} offset:{slot*self.ASTAGE + mt*2048}")
        for nt in range(self.NT):
            for half in range(2):
                r = self.vB[dst] + nt * 4 + half * 2
                off = (32 * ks + 8 * half) * self.S + 32 * nt
                out.append(f"ds_read_b64_tr_b16 v[{r}:{r+1}], v{self.vBaddr+slot} offset:{off}")
        return out

    def phase(self, cur, afr, acc, rd, dma=None, first=0):
        g = self.g
        rd = list(rd)
        dma = list(dma or [])
        mf = [(mt, nt) for nt in range(self.NT) for mt in range(self.MT)]
        n = len(mf)
        pos = {}
        if dma:
            gap = max(2, (n - 1) // len(dma))
            for j, it in enumerate(dma):
                p = min(j * gap + first, n - 2)
                pos.setdefault(p, []).append(('pre', it))
        pend = []
        for i, (mt, nt) in enumerate(mf):
            for _ in range(2):
                if rd:
                    g.e(rd.pop(0))
            b = self.vB[cur] + nt * 4
            a = afr(mt)
            c = acc(mt, nt)
            if 'nomf' not in EXP:
                g.e(f"v_mfma_f32_16x16x32_bf16 {c}, v[{b}:{b+3}], v[{a}:{a+3}], {c}")
            for it in pend:
                for x in it[1]:
                    g.e(x)
            pend = []
            todo = pos.get(i, [])
            for k_, (_, it) in enumerate(todo):
                if k_ > 0:
                    g.e("s_nop 0")
                    for x in pend[0][1]:
                        g.e(x)
                    pend = []
                for x in it[0]:
                    g.e(x)
                pend.append(it)
        for it in pend:
            g.e("s_nop 0")
            for x in it[1]:
                g.e(x)
        for x in rd:
            g.e(x)


def unpack_lo(g, d, s):
    g.e(f"v_lshlrev_b32 v{d}, 16, v{s}")


def unpack_hi(g, d, s):
    g.e(f"v_and_b32 v{d}, 0xffff0000, v{s}")


def gemm_global_kernel(kname, kind):
    g = G()
    if kind == 'k4':
        MT, NT, BN, NS, KT = 2, 9, 144, int(os.environ.get('NS4','4')), 32
        lda, ldb = 4096, 288
        nwg = 256
    else:
        MT, NT, BN, NS, KT = 1, 5, 80, int(os.environ.get('NS5','4')), 36
        lda, ldb = 4608, 160
        nwg = 256
    if 'NWG' in os.environ: nwg = int(os.environ['NWG'])
    prologue(g, kname, nwg)
    g.e("v_and_b32 v1, 63, v0")
    g.e("v_lshrrev_b32 v2, 6, v0")
    g.e("s_nop 0")
    g.e(f"v_readfirstlane_b32 s{S_ROLE}, v2")
    g.e(f"s_and_b32 s{S_WAVE}, s{S_ROLE}, 3")
    g.e(f"s_lshr_b32 s{S_ROLE}, s{S_ROLE}, 2")
    g.e(f"s_and_b32 s{S_T}, s2, 7")
    g.e(f"s_lshr_b32 s{S_T+1}, s2, 3")
    if kind == 'k4':
        g.e(f"s_lshr_b32 s{S_M0}, s{S_T}, 1")
        g.e(f"s_lshl_b32 s{S_M0}, s{S_M0}, 2")
        g.e(f"s_and_b32 s{S_T+2}, s{S_T+1}, 3")
        g.e(f"s_add_u32 s{S_M0}, s{S_M0}, s{S_T+2}")
        g.e(f"s_lshl_b32 s{S_M0}, s{S_M0}, 7")
        g.e(f"s_and_b32 s{S_N0}, s{S_T}, 1")
        g.e(f"s_lshl_b32 s{S_N0}, s{S_N0}, 3")
        g.e(f"s_lshr_b32 s{S_T+2}, s{S_T+1}, 2")
        g.e(f"s_add_u32 s{S_N0}, s{S_N0}, s{S_T+2}")
        g.e(f"s_mul_i32 s{S_N0}, s{S_N0}, 144")
        g.e(f"s_and_b32 s{S_ROT}, s{S_T+1}, 3")
        g.e(f"s_lshl_b32 s{S_ROT}, s{S_ROT}, 1")
        g.e(f"s_add_u32 s{S_ROT}, s{S_ROT}, s{S_T+2}")
        if int(os.environ.get('ROTW', '8')) > 8:
            g.e(f"s_mul_i32 s{S_ROT}, s{S_ROT}, {int(os.environ.get('ROTW', '8'))//8}")
    else:
        g.e(f"s_lshl_b32 s{S_M0}, s{S_T}, 2")
        g.e(f"s_lshr_b32 s{S_T+2}, s{S_T+1}, 3")
        g.e(f"s_add_u32 s{S_M0}, s{S_M0}, s{S_T+2}")
        g.e(f"s_lshl_b32 s{S_M0}, s{S_M0}, 6")
        g.e(f"s_and_b32 s{S_N0}, s{S_T+1}, 7")
        g.e(f"s_mul_i32 s{S_N0}, s{S_N0}, 72")
        g.e(f"s_lshr_b32 s{S_ROT}, s{S_T+1}, 1")
        g.e(f"s_add_u32 s{S_ROT}, s{S_ROT}, s{S_T+2}")
    if 'same' in EXP:
        g.e(f"s_mov_b32 s{S_M0}, 0")
        g.e(f"s_mov_b32 s{S_N0}, 0")
    g.e("s_waitcnt lgkmcnt(0)")
    if kind == 'k4':
        srd(g, S_A, P_WSP, 0, 2048 * 2048 * 2)
        srd(g, S_B, P_WS, Z2N_OFF, Z_SZ)
        srd(g, S_F, P_WS, ST_OFF, ST2_SZ)
        srd(g, S_C, P_WS, Z1_OFF, Z_SZ)
        srd(g, S_O, P_WS, U_OFF, Z_SZ)
        srd(g, S_E, P_BSP, 0, 4096)
    else:
        srd(g, S_A, P_WS, U_OFF, Z_SZ)
        srd(g, S_B, P_WS, TWOUT_OFF, TWOUT_SZ)
        srd(g, S_C, P_WS, H_OFF, H_SZ)
        srd(g, S_O, P_OUT, 0, H_SZ)
    NACC = MT * NT * 4
    vacc = 8
    gm = Gemm(g, MT, NT, BN, NS, ldb, 'lds', vacc + NACC)
    g.e(f"s_mul_i32 s{S_T+3}, s{S_WAVE}, {16*MT}")
    g.e(f"s_add_u32 s{S_T+3}, s{S_T+3}, s{S_M0}")
    g.e(f"s_lshl_b32 s{S_T+4}, s{S_N0}, 1")
    if kind == 'k4':
        g.e(f"s_mul_i32 s{S_T+5}, s{S_N0}, 4096")
        gm.setup(1, 2, col0_sgpr=S_T + 5)
    else:
        g.e(f"s_mul_i32 s{S_T+5}, s{S_N0}, 5120")
        gm.setup(1, 2, col0_sgpr=S_T + 5)
    gm.setup_a(1, 2, lda, S_T + 3)
    gm.rotw = int(os.environ.get('ROTW', '8'))
    if kind == 'k5': gm.rotw = min(gm.rotw, 4)
    gm.init_k()
    g.e(f"s_cmp_eq_u32 s{S_ROLE}, 0")
    g.e(f"s_cbranch_scc1 {kname}_comp")
    NORM4 = False
    if kind == 'k4' and NORM4:
        TAB = gm.lds_bytes
        vst = gm.vB[0]
        vkl = vst + NS * 20
        vwa = vkl + 5
        vtb = vwa + 1
        tq = (vtb + 10 + 3) // 4 * 4
        g.e(f"s_lshl_b32 s{S_T}, s{S_WAVE}, 12")
        g.e(f"v_lshlrev_b32 v{tq}, 6, v1")
        g.e(f"v_add_u32 v{tq}, s{S_T}, v{tq}")
        for i in range(4):
            g.e(f"buffer_load_dwordx4 v[{tq+4+4*i}:{tq+7+4*i}], v{tq}, s[{S_F}:{S_F+3}], 0 offen offset:{16*i}")
        g.e(f"s_lshl_b32 s{S_T}, s{S_WAVE}, 4")
        for q in range(5):
            g.e(f"v_add_u32 v2, {q*64}, v1")
            g.e(f"v_mul_u32_u24 v3, 3641, v2")
            g.e(f"v_lshrrev_b32 v3, 16, v3")
            g.e(f"v_and_b32 v4, 3, v3")
            g.e(f"v_and_b32 v5, 4, v3")
            g.e(f"v_lshl_or_b32 v4, v5, 1, v4")
            g.e(f"v_and_b32 v5, 8, v3")
            g.e(f"v_lshrrev_b32 v5, 1, v5")
            g.e(f"v_or_b32 v4, v4, v5")
            g.e(f"v_add_u32 v4, s{S_T}, v4")
            g.e(f"v_and_b32 v4, 63, v4")
            g.e(f"v_lshlrev_b32 v4, 3, v4")
            g.e(f"v_add_u32 v{vkl+q}, {TAB}, v4")
        g.e(f"v_lshlrev_b32 v{vwa}, 4, v1")
        g.e(f"v_add_u32 v{vwa}, s{S_WB}, v{vwa}")
        S_KQ = 76
        S_JB, S_KB2 = 80, 81
        W_ = gm.rotw
        def issueA(slot):
            for pre, main in gm.dma_items(slot)[:gm.DA]:
                for x in pre: g.e(x)
                g.e("s_nop 0")
                for x in main: g.e(x)
            g.e(f"s_add_u32 s{S_J}, s{S_J}, 1")
            g.e(f"s_add_u32 s{S_KA}, s{S_J}, s{S_ROT}")
            g.e(f"s_and_b32 s{S_KA}, s{S_KA}, {W_-1}")
            g.e(f"s_and_b32 s{S_T}, s{S_J}, {(~(W_-1)) & 0xffff}")
            g.e(f"s_or_b32 s{S_KA}, s{S_KA}, s{S_T}")
            g.e(f"s_lshl_b32 s{S_KA}, s{S_KA}, 7")
        def issueB(slot):
            g.e(f"s_lshl_b32 s{S_KQ+slot}, s{S_KB2}, 9")
            g.e(f"s_mul_i32 s{S_KB}, s{S_KB2}, {64*gm.ldb}")
            for q in range(5):
                r = vst + slot * 20 + q * 4
                if q == 4:
                    g.e("s_mov_b32 exec_hi, 0")
                g.e(f"buffer_load_dwordx4 v[{r}:{r+3}], v{gm.vDma+q}, s[{S_B}:{S_B+3}], s{S_KB} offen")
                if q == 4:
                    g.e("s_mov_b32 exec_hi, -1")
            g.e(f"s_add_u32 s{S_JB}, s{S_JB}, 1")
            g.e(f"s_add_u32 s{S_KB2}, s{S_JB}, s{S_ROT}")
            g.e(f"s_and_b32 s{S_KB2}, s{S_KB2}, {W_-1}")
            g.e(f"s_and_b32 s{S_T}, s{S_JB}, {(~(W_-1)) & 0xffff}")
            g.e(f"s_or_b32 s{S_KB2}, s{S_KB2}, s{S_T}")
        def pre4(slot):
            for q in range(5):
                g.e(f"v_add_u32 v2, s{S_KQ+slot}, v{vkl+q}")
                g.e(f"ds_read_b64 v[{vtb+2*q}:{vtb+2*q+1}], v2")
        def norm4(slot):
            g.e("s_waitcnt lgkmcnt(0)")
            for q in range(5):
                r = vst + slot * 20 + q * 4
                for d in range(4):
                    unpack_lo(g, 2, r + d)
                    unpack_hi(g, 3, r + d)
                    g.e(f"v_pk_fma_f32 v[2:3], v[2:3], v[{vtb+2*q}:{vtb+2*q+1}], v[{vtb+2*q}:{vtb+2*q+1}] op_sel:[0,1,0] op_sel_hi:[1,1,0]")
                    g.e(f"v_cvt_pk_bf16_f32 v{r+d}, v2, v3")
                if q == 4:
                    g.e("s_mov_b32 exec_hi, 0")
                g.e(f"ds_write_b128 v{vwa}, v[{r}:{r+3}] offset:{slot*gm.STAGE + q*1024}")
                if q == 4:
                    g.e("s_mov_b32 exec_hi, -1")
            g.e("s_waitcnt lgkmcnt(0)")
        g.e(f"s_mov_b32 s{S_JB}, 0")
        g.e(f"s_and_b32 s{S_KB2}, s{S_ROT}, {W_-1}")
        issueB(0)
        for j in range(NS - 1):
            issueA(j)
            issueB(j + 1)
        g.e(f"s_waitcnt vmcnt({5 + (NS-1)*9})")
        for i in range(8):
            a_ = tq + 4 + 2 * i
            ln_from_sums(g, a_, a_ + 1, 2304, 4, 5, 6)
            g.e(f"v_mul_f32 v4, v4, v5")
            g.e(f"v_sub_f32 v{a_}, 0, v4")
            g.e(f"v_mov_b32 v{a_+1}, v5")
        g.e(f"v_add_u32 v{tq}, {TAB}, v{tq}")
        for i in range(4):
            g.e(f"ds_write_b128 v{tq}, v[{tq+4+4*i}:{tq+7+4*i}] offset:{16*i}")
        g.e("s_waitcnt lgkmcnt(0)")
        g.e("s_barrier")
        pre4(0)
        g.e(f"s_waitcnt vmcnt({(NS-1)*9})")
        norm4(0)
        issueA(NS - 1)
        issueB(0)
        pre4(1)
        g.e(f"s_waitcnt vmcnt({(NS-1)*9})")
        norm4(1)
        g.e("s_barrier")
        g.e(f"s_mov_b32 s{S_LOOP}, {KT//NS}")
        g.lab(f"{kname}_lloop")
        for s in range(NS):
            g.e(f"s_waitcnt vmcnt({(NS-2)*9 + 5})")
            g.e("s_barrier")
            issueA(s)
            issueB((s + 1) % NS)
            pre4((s + 2) % NS)
            g.e(f"s_waitcnt vmcnt({(NS-1)*9})")
            norm4((s + 2) % NS)
        g.e(f"s_sub_u32 s{S_LOOP}, s{S_LOOP}, 1")
        g.e(f"s_cmp_lg_u32 s{S_LOOP}, 0")
        g.e(f"s_cbranch_scc1 {kname}_lloop")
        g.e("s_waitcnt vmcnt(0)")
        g.e("s_barrier")
        g.e(f"s_branch {kname}_end")
    else:
        for j in range(NS):
            gm.issue(j)
        g.e(f"s_waitcnt vmcnt({(NS-1)*gm.G})")
        g.e("s_barrier")
        g.e(f"s_mov_b32 s{S_LOOP}, {KT//NS}")
        g.lab(f"{kname}_lloop")
        for s in range(NS):
            g.e(f"s_waitcnt vmcnt({(NS-2)*gm.G})")
            g.e("s_barrier")
            gm.issue(s)
        g.e(f"s_sub_u32 s{S_LOOP}, s{S_LOOP}, 1")
        g.e(f"s_cmp_lg_u32 s{S_LOOP}, 0")
        g.e(f"s_cbranch_scc1 {kname}_lloop")
        g.e("s_waitcnt vmcnt(0)")
        if kind == 'k4':
            g.e("s_barrier")
        g.e(f"s_branch {kname}_end")
    g.lab(f"{kname}_comp")
    if kind == 'k4':
        K4_VB = (gm.vend + 1) // 2 * 2
        K4_VQ = K4_VB + 2
        K4_VZ = (K4_VQ + 9 + 3) // 4 * 4
        K4_W = K4_VZ + 36
        assert K4_W + 6 <= 256
        w = K4_W
        g.e(f"v_and_b32 v{w+4}, 15, v1")
        g.e(f"v_add_u32 v{w+4}, s{S_T+3}, v{w+4}")
        for mt in range(MT):
            g.e(f"v_add_u32 v{w+3}, {16*mt}, v{w+4}")
            g.e(f"v_lshlrev_b32 v{w+3}, 1, v{w+3}")
            g.e(f"buffer_load_ushort v{K4_VB+mt}, v{w+3}, s[{S_E}:{S_E+3}], 0 offen")
        g.e(f"s_mul_i32 s{S_T}, s{S_T+3}, 4608")
        g.e(f"s_add_u32 s{S_T}, s{S_T}, s{S_T+4}")
        for q in range(9):
            g.e(f"v_add_u32 v{w}, {q*64}, v1")
            g.e(f"v_mul_u32_u24 v{w+1}, 3641, v{w}")
            g.e(f"v_lshrrev_b32 v{w+1}, 16, v{w+1}")
            g.e(f"v_mul_u32_u24 v{w+2}, 18, v{w+1}")
            g.e(f"v_sub_u32 v{w}, v{w}, v{w+2}")
            g.e(f"v_mul_u32_u24 v{w+1}, 4608, v{w+1}")
            g.e(f"v_lshl_add_u32 v{w}, v{w}, 4, v{w+1}")
            g.e(f"v_add_u32 v{K4_VQ+q}, s{S_T}, v{w}")
    for i in range(NACC):
        g.e(f"v_mov_b32 v{vacc+i}, 0")
    acc = lambda mt, nt: f"v[{vacc+(mt*NT+nt)*4}:{vacc+(mt*NT+nt)*4+3}]"
    if kind == 'k4' and NORM4:
        g.e("s_barrier")
    g.e("s_barrier")
    for x in gm.reads(0, 0, 0):
        g.e(x)
    if 'stamp' in EXP:
        g.e("s_memrealtime s[92:93]")
    g.e(f"s_mov_b32 s{S_LOOP}, {KT//NS}")
    g.lab(f"{kname}_loop")
    if kind == 'k4':
        g.e(f"s_cmp_lg_u32 s{S_LOOP}, 2")
        g.e(f"s_cbranch_scc1 {kname}_noz")
        for q in range(9):
            g.e(f"buffer_load_dwordx4 v[{K4_VZ+4*q}:{K4_VZ+4*q+3}], v{K4_VQ+q}, s[{S_C}:{S_C+3}], 0 offen")
        g.lab(f"{kname}_noz")
    for s in range(NS):
        g.e("s_waitcnt lgkmcnt(0)")
        gm.phase(0, lambda mt: gm.vA[0] + mt * 4, acc, gm.reads(s, 1, 1))
        g.e(f"s_waitcnt lgkmcnt(0)")
        g.e("s_barrier")
        gm.phase(1, lambda mt: gm.vA[1] + mt * 4, acc, gm.reads((s + 1) % NS, 0, 0))
    g.e(f"s_sub_u32 s{S_LOOP}, s{S_LOOP}, 1")
    g.e(f"s_cmp_lg_u32 s{S_LOOP}, 0")
    g.e(f"s_cbranch_scc1 {kname}_loop")
    g.e("s_waitcnt vmcnt(0) lgkmcnt(0)")
    if 'stamp' in EXP:
        g.e("s_memrealtime s[94:95]")
    vt = gm.vB[0]
    voff = vt
    vtmp = vt + 4
    ldc = 4608 if kind == 'k4' else 1152
    g.e(f"v_and_b32 v{vtmp}, 15, v1")
    g.e(f"v_add_u32 v{vtmp}, s{S_T+3}, v{vtmp}")
    g.e(f"s_mov_b32 s{S_T}, {ldc}")
    g.e(f"v_mul_lo_u32 v{vtmp+1}, v{vtmp}, s{S_T}")
    g.e(f"v_lshrrev_b32 v{vtmp+2}, 4, v1")
    g.e(f"v_lshl_add_u32 v{vtmp+1}, v{vtmp+2}, 3, v{vtmp+1}")
    g.e(f"v_add_u32 v{vtmp+1}, s{S_T+4}, v{vtmp+1}")
    for mt in range(MT):
        g.e(f"v_add_u32 v{voff+mt}, {16*mt*ldc}, v{vtmp+1}")
    if kind == 'k4':
        vb, vq, vz, w = K4_VB, K4_VQ, K4_VZ, K4_W
        g.e("s_barrier")
        g.e(f"s_mul_i32 s{S_T+1}, s{S_WAVE}, 9216")
        g.e(f"v_and_b32 v{w}, 15, v1")
        g.e(f"v_mul_u32_u24 v{w}, 288, v{w}")
        g.e(f"v_lshrrev_b32 v{w+1}, 4, v1")
        g.e(f"v_lshl_add_u32 v{w}, v{w+1}, 3, v{w}")
        g.e(f"v_add_u32 v{voff}, s{S_T+1}, v{w}")
        g.e(f"v_lshlrev_b32 v{w}, 4, v1")
        g.e(f"v_add_u32 v{voff+1}, s{S_T+1}, v{w}")
        for mt in range(MT):
            g.e(f"v_lshlrev_b32 v{vb+mt}, 16, v{vb+mt}")
        for mt in range(MT):
            for nt in range(NT):
                a = vacc + (mt * NT + nt) * 4
                for p in range(2):
                    g.e(f"v_cvt_pk_bf16_f32 v{w}, v{a+2*p}, v{a+2*p+1}")
                    unpack_lo(g, w + 2, w)
                    unpack_hi(g, w + 3, w)
                    g.e(f"v_pk_add_f32 v[{w+2}:{w+3}], v[{w+2}:{w+3}], v[{vb}:{vb+1}] op_sel:[0,{mt}] op_sel_hi:[1,{mt}]")
                    g.e(f"v_cvt_pk_bf16_f32 v{a+p}, v{w+2}, v{w+3}")
                g.e(f"ds_write_b64 v{voff}, v[{a}:{a+1}] offset:{mt*16*288 + nt*32}")
        g.e("s_waitcnt lgkmcnt(0)")
        for q in range(9):
            g.e(f"ds_read_b128 v[{vacc+4*q}:{vacc+4*q+3}], v{voff+1} offset:{q*1024}")
        for q in range(9):
            g.e(f"s_waitcnt lgkmcnt({8-q})")
            for d in range(4):
                gq = vacc + 4 * q + d
                z = vz + 4 * q + d
                unpack_lo(g, w + 2, gq)
                unpack_hi(g, w + 3, gq)
                unpack_lo(g, w + 4, z)
                unpack_hi(g, w + 5, z)
                g.e(f"v_pk_mul_f32 v[{w+2}:{w+3}], v[{w+2}:{w+3}], v[{w+4}:{w+5}]")
                g.e(f"v_cvt_pk_bf16_f32 v{z}, v{w+2}, v{w+3}")
            g.e(f"buffer_store_dwordx4 v[{vz+4*q}:{vz+4*q+3}], v{vq+q}, s[{S_O}:{S_O+3}], 0 offen")
        vmax = w + 6
    else:
        vz = (vtmp + 6) // 2 * 2
        vlast = vtmp + 4
        for mt in range(MT):
            for nt in range(NT):
                r = vz + (mt * NT + nt) * 2
                g.e(f"buffer_load_dwordx2 v[{r}:{r+1}], v{voff+mt}, s[{S_C}:{S_C+3}], 0 offen offset:{nt*32}")
        g.e(f"v_cmp_gt_u32 vcc, 32, v1")
        g.e(f"v_mov_b32 v{vtmp+3}, 0x40000000")
        g.e("s_nop 0")
        g.e(f"v_cndmask_b32 v{vlast}, v{vtmp+3}, v{voff}, vcc")
        w = vz + MT * NT * 2
        g.e("s_waitcnt vmcnt(0)")
        for mt in range(MT):
            for nt in range(NT):
                a = vacc + (mt * NT + nt) * 4
                z = vz + (mt * NT + nt) * 2
                for p in range(2):
                    g.e(f"v_cvt_pk_bf16_f32 v{w}, v{a+2*p}, v{a+2*p+1}")
                    unpack_lo(g, w + 1, w)
                    unpack_hi(g, w + 2, w)
                    unpack_lo(g, w + 3, z + p)
                    unpack_hi(g, w + 4, z + p)
                    g.e(f"v_add_f32 v{w+1}, v{w+1}, v{w+3}")
                    g.e(f"v_add_f32 v{w+2}, v{w+2}, v{w+4}")
                    g.e(f"v_cvt_pk_bf16_f32 v{z+p}, v{w+1}, v{w+2}")
                vo = vlast if nt == NT - 1 else voff + mt
                g.e(f"buffer_store_dwordx2 v[{z}:{z+1}], v{vo}, s[{S_O}:{S_O+3}], 0 offen offset:{nt*32}")
        vmax = w + 5
    epilogue(g, kname)
    vmax = max(vmax, gm.vend, 216)
    if kind == 'k4': vmax = 256
    assert vmax <= 256, vmax
    return g.text(), descriptor(kname, vmax), gm.lds_bytes


def wave_setup(g):
    g.e("v_and_b32 v1, 63, v0")
    g.e("v_lshrrev_b32 v2, 6, v0")
    g.e("s_nop 0")
    g.e(f"v_readfirstlane_b32 s{S_ROLE}, v2")
    g.e(f"s_and_b32 s{S_WAVE}, s{S_ROLE}, 3")
    g.e(f"s_lshr_b32 s{S_ROLE}, s{S_ROLE}, 2")


def xor_reduce(g, vals, vtmp, vaddr16, vaddr32):
    for va in (vaddr16, vaddr32):
        for i, v in enumerate(vals):
            g.e(f"ds_bpermute_b32 v{vtmp+i}, v{va}, v{v}")
        g.e("s_waitcnt lgkmcnt(0)")
        for i, v in enumerate(vals):
            g.e(f"v_add_f32 v{v}, v{v}, v{vtmp+i}")


def bf16_round(g, v, t):
    g.e(f"v_cvt_pk_bf16_f32 v{t}, v{v}, v{v}")
    g.e(f"v_lshlrev_b32 v{v}, 16, v{t}")


def ln_from_sums(g, vs, vq, n, vm, vr, t):
    g.e(f"v_mul_f32 v{vm}, {1.0/n!r}, v{vs}")
    g.e(f"v_mul_f32 v{vr}, {1.0/n!r}, v{vq}")
    g.e(f"v_fma_f32 v{vr}, -v{vm}, v{vm}, v{vr}")
    g.e(f"v_max_f32 v{vr}, 0, v{vr}")
    bf16_round(g, vm, t)
    bf16_round(g, vr, t)
    g.e(f"v_add_f32 v{vr}, 0x3727c5ac, v{vr}")
    bf16_round(g, vr, t)
    g.e(f"v_sqrt_f32 v{vr}, v{vr}")
    g.e("s_nop 0")
    bf16_round(g, vr, t)
    g.e(f"v_rcp_f32 v{vr}, v{vr}")
    g.e("s_nop 0")


GK1 = -2.0 * 1.4426950408889634 * 0.7978845608028654
GK2 = GK1 * 0.044715


def gelu_pair(g, x0, x1, vk1, vk2, t):
    assert x1 == x0 + 1 and x0 % 2 == 0 and t % 2 == 0
    k1e, k2e = vk1 & ~1, vk2 & ~1
    s1 = 1 if vk1 & 1 else 0
    s2 = 1 if vk2 & 1 else 0
    X = f"v[{x0}:{x0+1}]"
    Tt = f"v[{t}:{t+1}]"
    g.e(f"v_pk_mul_f32 {Tt}, {X}, {X}")
    g.e(f"v_pk_fma_f32 {Tt}, {Tt}, v[{k2e}:{k2e+1}], v[{k1e}:{k1e+1}] op_sel:[0,{s2},{s1}] op_sel_hi:[1,{s2},{s1}]")
    g.e(f"v_pk_mul_f32 {Tt}, {Tt}, {X}")
    g.e(f"v_exp_f32 v{t}, v{t}")
    g.e(f"v_exp_f32 v{t+1}, v{t+1}")
    g.e("s_nop 0")
    g.e(f"v_pk_add_f32 {Tt}, {Tt}, 1.0 op_sel_hi:[1,0]")
    g.e(f"v_rcp_f32 v{t}, v{t}")
    g.e(f"v_rcp_f32 v{t+1}, v{t+1}")
    g.e("s_nop 0")
    g.e(f"v_pk_mul_f32 {X}, {X}, {Tt}")


import struct
def fhex(x):
    return "0x%08x" % struct.unpack("<I", struct.pack("<f", x))[0]


def k3_kernel():
    kname = "k3_kernel"
    g = G()
    MT, NT, BN, NS = 2, 9, 144, 4
    lda, ldb = 1152, 288
    prologue(g, kname, 256)
    wave_setup(g)
    g.e(f"s_and_b32 s{S_T}, s2, 7")
    g.e(f"s_lshr_b32 s{S_T+1}, s2, 3")
    g.e(f"s_lshr_b32 s{S_M0}, s{S_T}, 1")
    g.e(f"s_lshl_b32 s{S_M0}, s{S_M0}, 2")
    g.e(f"s_and_b32 s{S_T+2}, s{S_T+1}, 3")
    g.e(f"s_add_u32 s{S_M0}, s{S_M0}, s{S_T+2}")
    g.e(f"s_lshl_b32 s{S_M0}, s{S_M0}, 7")
    S_P = S_T + 5
    g.e(f"s_and_b32 s{S_P}, s{S_T}, 1")
    g.e(f"s_lshl_b32 s{S_P}, s{S_P}, 3")
    g.e(f"s_lshr_b32 s{S_T+2}, s{S_T+1}, 2")
    g.e(f"s_add_u32 s{S_P}, s{S_P}, s{S_T+2}")
    g.e(f"s_mul_i32 s{S_N0}, s{S_P}, 288")
    g.e("s_waitcnt lgkmcnt(0)")
    srd(g, S_A, P_WS, H_OFF, H_SZ)
    srd(g, S_B, P_WS, TWIN_OFF, TWIN_SZ)
    srd(g, S_C, P_WS, CS_OFF, CS_SZ)
    srd(g, S_E, P_WS, HST_OFF, HST_SZ)
    srd(g, S_F, P_WS, ST_OFF, ST2_SZ)
    g.e(f"s_cmp_ge_u32 s{S_P}, 8")
    g.e(f"s_mov_b32 s{S_T+1}, {Z1_OFF}")
    g.e(f"s_cselect_b32 s{S_T}, {Z2_OFF}, s{S_T+1}")
    g.e(f"s_add_u32 s{S_O}, s{P_WS}, s{S_T}")
    g.e(f"s_addc_u32 s{S_O+1}, s{P_WS+1}, 0")
    g.e(f"s_and_b32 s{S_O+1}, s{S_O+1}, 0xffff")
    g.e(f"s_mov_b32 s{S_O+2}, {Z_SZ}")
    g.e(f"s_mov_b32 s{S_O+3}, 0x00020000")
    NACC = MT * NT * 4
    vacc = 8
    gm = Gemm(g, MT, NT, BN, NS, ldb, 'lds', vacc + NACC)
    gm.rotw = 0
    S_WR = S_T + 3
    S_CB = S_T + 4
    g.e(f"s_mul_i32 s{S_WR}, s{S_WAVE}, {16*MT}")
    g.e(f"s_add_u32 s{S_WR}, s{S_WR}, s{S_M0}")
    g.e(f"s_mul_i32 s{S_CB}, s{S_P}, {2*165888}")
    gm.setup(1, 2, col0_sgpr=S_CB)
    gm.setup_a(1, 2, lda, S_WR)
    T = 18
    SCR = gm.lds_bytes
    lds_total = SCR + 4 * 4608
    S_RS, S_TI = S_T + 8, S_T + 9
    g.e(f"s_cmp_ge_u32 s{S_P}, 8")
    g.e(f"s_movk_i32 s{S_T+1}, 4608")
    g.e(f"s_cselect_b32 s{S_RS}, 288, s{S_T+1}")
    g.e(f"s_movk_i32 s{S_T+1}, 288")
    g.e(f"s_cselect_b32 s{S_TI}, 589824, s{S_T+1}")
    g.e(f"s_and_b32 s{S_T}, s{S_P}, 7")
    g.e(f"s_lshl_b32 s{S_T+1}, s{S_TI}, 1")
    g.e(f"s_mul_i32 s{S_T}, s{S_T}, s{S_T+1}")
    g.e(f"s_mul_i32 s{S_T+1}, s{S_WR}, s{S_RS}")
    g.e(f"s_add_u32 s{S_T}, s{S_T}, s{S_T+1}")
    v = (gm.vend + 3) // 4 * 4
    vCS = v; v += 36
    vM = v; v += 2
    vR = v; v += 2
    vK = v; v += 2
    vq = v; v += 9
    v = (v + 1) // 2 * 2
    vrw = v; v += 12
    vWr, vRd, vCo = 4, 5, 6
    w = (v + 1) // 2 * 2
    assert w + 8 <= 256, w
    g.e(f"s_lshl_b32 s{S_T+2}, s{S_WAVE}, 8")
    for q in range(9):
        g.e(f"v_add_u32 v{w}, {q*64}, v1")
        g.e(f"v_mul_u32_u24 v{w+1}, 3641, v{w}")
        g.e(f"v_lshrrev_b32 v{w+1}, 16, v{w+1}")
        g.e(f"v_mul_u32_u24 v{w+2}, 18, v{w+1}")
        g.e(f"v_sub_u32 v{w}, v{w}, v{w+2}")
        g.e(f"v_mul_lo_u32 v{w+1}, v{w+1}, s{S_RS}")
        g.e(f"v_lshl_add_u32 v{w}, v{w}, 4, v{w+1}")
        g.e(f"v_add_u32 v{vq+q}, s{S_T}, v{w}")
    g.e(f"s_mul_i32 s{S_T+1}, s{S_WAVE}, 4608")
    g.e(f"s_add_u32 s{S_T+1}, s{S_T+1}, {SCR}")
    g.e(f"v_and_b32 v{w}, 15, v1")
    g.e(f"v_mul_u32_u24 v{w}, 288, v{w}")
    g.e(f"v_lshrrev_b32 v{w+1}, 4, v1")
    g.e(f"v_lshl_add_u32 v{w}, v{w+1}, 3, v{w}")
    g.e(f"v_add_u32 v{vWr}, s{S_T+1}, v{w}")
    g.e(f"v_lshlrev_b32 v{w}, 4, v1")
    g.e(f"v_add_u32 v{vRd}, s{S_T+1}, v{w}")
    g.e(f"v_mov_b32 v{vK}, {fhex(GK1)}")
    g.e(f"v_mov_b32 v{vK+1}, {fhex(GK2)}")

    vS = vrw
    if vS % 2: vS += 1
    vS2 = vS + 4
    assert vS2 % 2 == 0 and vS2 + 8 <= 256
    vP16, vP32 = 2, 3
    g.e(f"v_xor_b32 v{vP16}, 16, v1")
    g.e(f"v_lshlrev_b32 v{vP16}, 2, v{vP16}")
    g.e(f"v_xor_b32 v{vP32}, 32, v1")
    g.e(f"v_lshlrev_b32 v{vP32}, 2, v{vP32}")

    def gelu4(a, mt):
        for p_ in range(2):
            unpack_lo(g, w + 4, a + p_)
            unpack_hi(g, w + 5, a + p_)
            gelu_pair(g, w + 4, w + 5, vK, vK + 1, w)
            g.e(f"v_cvt_pk_bf16_f32 v{a+p_}, v{w+4}, v{w+5}")
            unpack_lo(g, w + 4, a + p_)
            unpack_hi(g, w + 5, a + p_)
            g.e(f"v_pk_add_f32 v[{vS2+4*mt}:{vS2+4*mt+1}], v[{vS2+4*mt}:{vS2+4*mt+1}], v[{w+4}:{w+5}]")
            g.e(f"v_pk_fma_f32 v[{vS2+4*mt+2}:{vS2+4*mt+3}], v[{w+4}:{w+5}], v[{w+4}:{w+5}], v[{vS2+4*mt+2}:{vS2+4*mt+3}]")

    def pieces(ps, base):
        for j, (mt, nt) in enumerate(ps):
            g.e(f"ds_read_b64 v[{base+2*j}:{base+2*j+1}], v{vWr} offset:{mt*16*288 + nt*32}")
        for j, (mt, nt) in enumerate(ps):
            g.e(f"s_waitcnt lgkmcnt({len(ps)-1})")
            gelu4(base + 2 * j, mt)
            g.e(f"ds_write_b64 v{vWr}, v[{base+2*j}:{base+2*j+1}] offset:{mt*16*288 + nt*32}")

    def store_tile(t, base):
        g.e("s_waitcnt lgkmcnt(0)")
        for q in range(9):
            g.e(f"ds_read_b128 v[{base+4*q}:{base+4*q+3}], v{vRd} offset:{q*1024}")
        so = f"s{S_TI}" if t else "0"
        for q in range(9):
            g.e(f"s_waitcnt lgkmcnt({8-q})")
            g.e(f"buffer_store_dwordx4 v[{base+4*q}:{base+4*q+3}], v{vq+q}, s[{S_O}:{S_O+3}], {so} offen")

    def flush_stats(mts, lab):
        g.e(f"s_cmp_lt_u32 s{S_P}, 8")
        g.e(f"s_cbranch_scc1 {lab}")
        for mt in mts:
            g.e(f"v_add_f32 v{vS+2*mt}, v{vS2+4*mt}, v{vS2+4*mt+1}")
            g.e(f"v_add_f32 v{vS+2*mt+1}, v{vS2+4*mt+2}, v{vS2+4*mt+3}")
        xor_reduce(g, [vS + 2 * mt + k_ for mt in mts for k_ in range(2)], w, vP16, vP32)
        g.e(f"v_and_b32 v{w}, 15, v1")
        g.e(f"v_add_u32 v{w}, s{S_WR}, v{w}")
        g.e(f"v_lshlrev_b32 v{w}, 3, v{w}")
        g.e("s_mov_b64 exec, 0xffff")
        for mt in mts:
            g.e(f"buffer_atomic_add_f32 v{vS+2*mt}, v{w}, s[{S_F}:{S_F+3}], 0 offen offset:{mt*128}")
            g.e(f"buffer_atomic_add_f32 v{vS+2*mt+1}, v{w}, s[{S_F}:{S_F+3}], 0 offen offset:{mt*128+4}")
        g.e("s_mov_b64 exec, -1")
        g.lab(lab)

    g.e(f"s_cmp_eq_u32 s{S_ROLE}, 0")
    g.e(f"s_cbranch_scc1 {kname}_comp")
    def grp(i):
        t, ks = i // 9, i % 9
        g.e(f"s_mov_b32 s{S_KA}, {ks*128}")
        g.e(f"s_mov_b32 s{S_KB}, {ks*64*ldb + t*165888}")
        gm.issue(i % NS)
    for j in range(NS):
        grp(j)
    g.e(f"s_waitcnt vmcnt({(NS-1)*gm.G})")
    g.e("s_barrier")
    for i in range(T):
        last = min(i + NS - 1, T - 1)
        g.e(f"s_waitcnt vmcnt({max(last-(i+1),0)*gm.G})")
        g.e("s_barrier")
        if i + NS < T:
            grp(i + NS)
    g.e(f"s_branch {kname}_end")
    g.lab(f"{kname}_comp")
    g.e(f"v_and_b32 v{w}, 15, v1")
    g.e(f"v_add_u32 v{w}, s{S_WR}, v{w}")
    g.e(f"v_mul_u32_u24 v{vCo}, 64, v{w}")
    for mt in range(MT):
        for i in range(4):
            g.e(f"buffer_load_dwordx4 v[{vacc+mt*24+4*i}:{vacc+mt*24+4*i+3}], v{vCo}, s[{S_E}:{S_E+3}], 0 offen offset:{mt*16*64 + 16*i}")
    g.e(f"v_lshrrev_b32 v{w}, 4, v1")
    g.e(f"v_lshlrev_b32 v{w}, 4, v{w}")
    g.e(f"s_lshl_b32 s{S_T}, s{S_N0}, 2")
    g.e(f"v_add_u32 v{vCo}, s{S_T}, v{w}")
    for nt in range(NT):
        g.e(f"buffer_load_dwordx4 v[{vCS+4*nt}:{vCS+4*nt+3}], v{vCo}, s[{S_C}:{S_C+3}], 0 offen offset:{nt*64}")
    g.e("s_waitcnt vmcnt(9)")
    for mt in range(MT):
        b = vacc + mt * 24
        for i in range(1, 8):
            g.e(f"v_add_f32 v{b}, v{b}, v{b+2*i}")
            g.e(f"v_add_f32 v{b+1}, v{b+1}, v{b+2*i+1}")
        ln_from_sums(g, b, b + 1, 576, vM + mt, vR + mt, w)
        g.e(f"v_sub_f32 v{vM+mt}, 0, v{vM+mt}")
    for i in range(NACC):
        g.e(f"v_mov_b32 v{vacc+i}, 0")
    acc = lambda mt, nt: f"v[{vacc+(mt*NT+nt)*4}:{vacc+(mt*NT+nt)*4+3}]"
    g.e("s_barrier")
    for x in gm.reads(0, 0, 0):
        g.e(x)
    if 'stamp' in EXP:
        g.e("s_memrealtime s[92:93]")
    for i in range(T):
        s = i % NS
        g.e("s_waitcnt lgkmcnt(0)")
        gm.phase(0, lambda mt: gm.vA[0] + mt * 4, acc, gm.reads(s, 1, 1))
        g.e(f"s_waitcnt lgkmcnt(0)")
        g.e("s_barrier")
        gm.phase(1, lambda mt: gm.vA[1] + mt * 4, acc, gm.reads((s + 1) % NS, 0, 0) if i + 1 < T else [])
        if i % 9 == 8:
            t = i // 9
            g.e("s_nop 7")
            g.e("s_nop 1")
            if t == 0:
                g.e("s_waitcnt vmcnt(0)")
            else:
                g.e("s_waitcnt vmcnt(0)")
            for k_ in range(8):
                g.e(f"v_mov_b32 v{vS2+k_}, 0")
            so = f"s{S_TI}" if t else "0"
            for mt in range(MT):
                for nt in range(NT):
                    a = vacc + (mt * NT + nt) * 4
                    for r in (0, 2):
                        g.e(f"v_pk_fma_f32 v[{a+r}:{a+r+1}], v[{vCS+4*nt+r}:{vCS+4*nt+r+1}], v[{vM}:{vM+1}], v[{a+r}:{a+r+1}] op_sel:[0,{mt},0] op_sel_hi:[1,{mt},1]")
                    for r in (0, 2):
                        g.e(f"v_pk_mul_f32 v[{a+r}:{a+r+1}], v[{a+r}:{a+r+1}], v[{vR}:{vR+1}] op_sel:[0,{mt}] op_sel_hi:[1,{mt}]")
                    g.e(f"v_cvt_pk_bf16_f32 v{a}, v{a}, v{a+1}")
                    g.e(f"v_cvt_pk_bf16_f32 v{a+1}, v{a+2}, v{a+3}")
                    gelu4(a, mt)
                    g.e(f"ds_write_b64 v{vWr}, v[{a}:{a+1}] offset:{nt*32}")
                g.e("s_waitcnt lgkmcnt(0)")
                base = vacc + mt * 36
                for q in range(5):
                    if q == 4:
                        g.e("s_mov_b32 exec_hi, 0")
                    g.e(f"ds_read_b128 v[{base+4*q}:{base+4*q+3}], v{vRd} offset:{q*1024}")
                    if q == 4:
                        g.e("s_mov_b32 exec_hi, -1")
                for q in range(5):
                    g.e(f"s_waitcnt lgkmcnt({4-q})")
                    if q == 4:
                        g.e("s_mov_b32 exec_hi, 0")
                    g.e(f"buffer_store_dwordx4 v[{base+4*q}:{base+4*q+3}], v{vq+q}, s[{S_O}:{S_O+3}], {so} offen" + ("" if mt == 0 else ""))
                    if q == 4:
                        g.e("s_mov_b32 exec_hi, -1")
                if mt == 0:
                    g.e(f"s_lshl_b32 s{S_T}, s{S_RS}, 4")
                    for q in range(5):
                        g.e(f"v_add_u32 v{vq+q}, s{S_T}, v{vq+q}")
                else:
                    for q in range(5):
                        g.e(f"v_subrev_u32 v{vq+q}, s{S_T}, v{vq+q}")
            if t == 0:
                for nt in range(NT):
                    g.e(f"buffer_load_dwordx4 v[{vCS+4*nt}:{vCS+4*nt+3}], v{vCo}, s[{S_C}:{S_C+3}], 0 offen offset:{nt*64+576}")
            flush_stats([0, 1], f"{kname}_fs{t}")
            if t == 0:
                g.e("s_nop 1")
                for k_ in range(NACC):
                    g.e(f"v_mov_b32 v{vacc+k_}, 0")
    if 'stamp' in EXP:
        g.e("s_memrealtime s[94:95]")
    epilogue(g, kname)
    return g.text(), descriptor(kname, 256), lds_total


def kn_kernel():
    kname = "kn_kernel"
    g = G()
    prologue(g, kname, 256)
    g.e("s_waitcnt lgkmcnt(0)")
    srd(g, S_A, P_WS, Z2_OFF, Z_SZ)
    srd(g, S_O, P_WS, Z2N_OFF, Z_SZ)
    srd(g, S_F, P_WS, ST_OFF, ST2_SZ)
    g.e(f"s_mul_i32 s{S_M0}, s2, 36864")
    g.e(f"s_and_b32 s{S_T}, s2, 15")
    g.e(f"s_lshl_b32 s{S_T}, s{S_T}, 10")
    for q in range(9):
        g.e(f"v_add_u32 v2, {q*256}, v0")
        g.e(f"v_lshlrev_b32 v{10+q}, 4, v2")
        g.e(f"buffer_load_dwordx4 v[{40+4*q}:{43+4*q}], v{10+q}, s[{S_A}:{S_A+3}], s{S_M0} offen")
        g.e(f"v_mul_u32_u24 v3, 3641, v2")
        g.e(f"v_lshrrev_b32 v3, 16, v3")
        g.e(f"v_lshlrev_b32 v3, 3, v3")
        g.e(f"buffer_load_dwordx2 v[{20+2*q}:{21+2*q}], v3, s[{S_F}:{S_F+3}], s{S_T} offen")
    for c in range(2304):
        assert (c * 3641) >> 16 == c // 18
    for q in range(9):
        g.e(f"s_waitcnt vmcnt({16-q})")
        a = 20 + 2 * q
        ln_from_sums(g, a, a + 1, 2304, 6, 7, 4)
        r = 40 + 4 * q
        for d in range(4):
            unpack_lo(g, 2, r + d)
            unpack_hi(g, 3, r + d)
            g.e(f"v_sub_f32 v2, v2, v6")
            g.e(f"v_sub_f32 v3, v3, v6")
            g.e(f"v_cvt_pk_bf16_f32 v{r+d}, v2, v3")
            unpack_lo(g, 2, r + d)
            unpack_hi(g, 3, r + d)
            g.e(f"v_mul_f32 v2, v2, v7")
            g.e(f"v_mul_f32 v3, v3, v7")
            g.e(f"v_cvt_pk_bf16_f32 v{r+d}, v2, v3")
        g.e(f"buffer_store_dwordx4 v[{r}:{r+3}], v{10+q}, s[{S_O}:{S_O+3}], s{S_M0} offen")
    epilogue(g, kname)
    return g.text(), descriptor(kname, 80), 0


def k2_kernel():
    kname = "k2_kernel"
    g = G()
    NS = 4
    prologue(g, kname, 256)
    g.e("v_and_b32 v1, 63, v0")
    g.e("v_lshrrev_b32 v2, 6, v0")
    g.e("s_nop 0")
    S_W8 = 73
    g.e(f"v_readfirstlane_b32 s{S_W8}, v2")
    g.e(f"s_and_b32 s{S_WAVE}, s{S_W8}, 3")
    g.e(f"s_and_b32 s{S_T}, s2, 7")
    g.e(f"s_lshr_b32 s{S_T+1}, s2, 3")
    g.e(f"s_lshl_b32 s{S_M0}, s{S_T}, 3")
    g.e(f"s_lshr_b32 s{S_T+2}, s{S_T+1}, 2")
    g.e(f"s_add_u32 s{S_M0}, s{S_M0}, s{S_T+2}")
    S_CBI = S_T + 5
    g.e(f"s_and_b32 s{S_CBI}, s{S_T+1}, 3")
    g.e(f"s_mul_i32 s{S_N0}, s{S_CBI}, 144")
    g.e("s_waitcnt lgkmcnt(0)")
    srd(g, S_A, P_WS, PHIQ_OFF, PHIQ_SZ)
    srd(g, S_B, P_WS, TWO_OFF, TWO_SZ)
    srd(g, S_C, P_WS, ACC_OFF, ACC_SZ)
    srd(g, S_O, P_WS, H_OFF, H_SZ)
    srd(g, S_E, P_X, 0, H_SZ)
    srd(g, S_F, P_WS, HST_OFF, HST_SZ)
    OST = 1168
    OB = 0
    gm = Gemm(g, 1, 5, 144, NS, 288, 'ext', 8, lds_base=32 * OST)
    gm.rotw = 1
    S_CB = S_T + 4
    g.e(f"s_mul_i32 s{S_CB}, s{S_CBI}, 165888")
    gm.setup(1, 2, col0_sgpr=S_CB)
    g.e(f"s_lshl_b32 s{S_CB}, s{S_N0}, 1")
    S_NH = S_T + 6
    g.e(f"s_lshr_b32 s{S_NH}, s{S_WAVE}, 1")
    g.e(f"s_lshl_b32 s{S_T}, s{S_NH}, 7")
    for s_ in range(NS):
        g.e(f"v_add_u32 v{gm.vBaddr+s_}, s{S_T}, v{gm.vBaddr+s_}")
    g.e(f"s_mov_b32 s{S_KA}, 0")
    g.e(f"s_mov_b32 s{S_KB}, 0")
    v = 236
    vL16 = v; v += 1
    vL8 = v; v += 1
    vL8k = v; v += 1
    vOW = v; v += 1
    vAr = v; v += 1
    w = 242
    vZ = 250
    vF = gm.vB[0]
    vD = vF + 192
    assert vD + 12 <= 232
    vacc = gm.vend + 24
    g.e(f"v_lshlrev_b32 v{vL16}, 4, v1")
    g.e(f"v_and_b32 v{vL8}, 15, v1")
    g.e(f"v_lshlrev_b32 v{vL8}, 3, v{vL8}")
    g.e(f"v_lshlrev_b32 v{vL8k}, 3, v1")
    g.e(f"v_and_b32 v{w}, 15, v1")
    g.e(f"v_mul_u32_u24 v{w}, {OST}, v{w}")
    g.e(f"v_lshrrev_b32 v{w+1}, 4, v1")
    g.e(f"v_lshl_add_u32 v{vOW}, v{w+1}, 3, v{w}")
    g.e(f"s_mul_i32 s{S_T}, s{S_W8}, {4*36}")
    g.e(f"v_add_u32 v{vOW}, s{S_T}, v{vOW}")
    g.e(f"v_lshl_add_u32 v{vAr}, v{w+1}, 4, v{w}")
    g.e(f"s_and_b32 s{S_T}, s{S_WAVE}, 1")
    g.e(f"s_mul_i32 s{S_T}, s{S_T}, {16*OST}")
    g.e(f"v_add_u32 v{vAr}, s{S_T}, v{vAr}")
    S_PH = S_T + 7
    S_KV = S_T + 8
    g.e(f"s_mul_i32 s{S_PH}, s{S_M0}, {2*32*1152}")
    g.e(f"s_mul_i32 s{S_T}, s{S_W8}, {4*1152}")
    g.e(f"s_add_u32 s{S_PH}, s{S_PH}, s{S_T}")
    g.e(f"s_mul_i32 s{S_KV}, s{S_W8}, {4*3072}")
    g.e(f"s_cmp_ge_u32 s{S_W8}, 4")
    g.e(f"s_cbranch_scc1 {kname}_noring")
    for j in range(NS):
        gm.issue(j)
    g.lab(f"{kname}_noring")
    for h in range(4):
        b = vF + h * 24
        for pp in range(3):
            g.e(f"buffer_load_dwordx4 v[{b+4*pp}:{b+4*pp+3}], v{vL16}, s[{S_C}:{S_C+3}], s{S_KV} offen offset:{pp*1024}")
        for mt in range(2):
            g.e(f"s_add_u32 s{S_T}, s{S_PH}, {mt*32*1152}")
            r = b + 12 + 6 * mt
            g.e(f"buffer_load_dwordx4 v[{r}:{r+3}], v{vL16}, s[{S_A}:{S_A+3}], s{S_T} offen")
            g.e(f"buffer_load_dwordx2 v[{r+4}:{r+5}], v{vL8}, s[{S_A}:{S_A+3}], s{S_T} offen offset:1024")
        g.e(f"s_add_u32 s{S_KV}, s{S_KV}, 3072")
        g.e(f"s_add_u32 s{S_PH}, s{S_PH}, 1152")
    def mf(h, db):
        b = vF + h * 24
        z = vZ
        g.e(f"s_waitcnt vmcnt({(3-h)*7})")
        for kc in range(3):
            t = kc * 2 + 1
            g.e(f"v_mov_b32_dpp v{z+2*kc}, v{b+2*t} row_newbcast:2 row_mask:0xf bank_mask:0xf")
            g.e(f"v_mov_b32_dpp v{z+2*kc+1}, v{b+2*t+1} row_newbcast:2 row_mask:0xf bank_mask:0xf")
        g.e("s_nop 1")
        for kc in range(3):
            for mt in range(2):
                pb = b + 12 + 6 * mt + 2 * kc
                for o_, aop in enumerate([b + 2 * (kc * 2), b + 2 * (kc * 2 + 1), z + 2 * kc]):
                    d = db + 12 * mt + 4 * o_
                    c = "0" if kc == 0 else f"v[{d}:{d+3}]"
                    g.e(f"v_mfma_f32_16x16x16_bf16 v[{d}:{d+3}], v[{aop}:{aop+1}], v[{pb}:{pb+1}], {c}")
    def fin(h, db):
        for mt in range(2):
            D = db + 12 * mt
            g.e(f"v_cvt_pk_bf16_f32 v{w}, v{D+8}, v{D+8}")
            g.e(f"v_lshlrev_b32 v{D+8}, 16, v{w}")
            g.e(f"v_add_f32 v{D+8}, 0x358637bd, v{D+8}")
            g.e(f"v_cvt_pk_bf16_f32 v{w}, v{D+8}, v{D+8}")
            g.e(f"v_lshlrev_b32 v{D+8}, 16, v{w}")
            g.e(f"v_rcp_f32 v{D+8}, v{D+8}")
            for p_ in range(3):
                g.e(f"v_cvt_pk_bf16_f32 v{w+1+p_}, v{D+2*p_}, v{D+2*p_+1}")
            for p_ in range(3):
                unpack_lo(g, D + 2 * p_, w + 1 + p_)
                unpack_hi(g, D + 2 * p_ + 1, w + 1 + p_)
            for r in range(6):
                g.e(f"v_mul_f32 v{D+r}, v{D+r}, v{D+8}")
            for p_ in range(3):
                g.e(f"v_cvt_pk_bf16_f32 v{D+9+p_}, v{D+2*p_}, v{D+2*p_+1}")
            off = mt * 16 * OST + 36 * h
            g.e(f"ds_write_b32 v{vOW}, v{D+9} offset:{off}")
            g.e(f"ds_write_b32 v{vOW}, v{D+10} offset:{off+4}")
            g.e("s_mov_b64 exec, 0xffff")
            g.e(f"ds_write_b32 v{vOW}, v{D+11} offset:{off+32}")
            g.e("s_mov_b64 exec, -1")
    DB0 = 212
    def dbuf(h):
        return DB0 if h == 0 else vF + (h - 1) * 24
    mf(0, dbuf(0))
    for h in range(4):
        if h + 1 < 4:
            mf(h + 1, dbuf(h + 1))
        else:
            g.e("s_nop 7")
            g.e("s_nop 3")
        fin(h, dbuf(h))
    if 'stamp' in EXP:
        g.e("s_memrealtime s[92:93]")
    g.e(f"s_cmp_lt_u32 s{S_W8}, 4")
    g.e(f"s_cbranch_scc1 {kname}_gemm")
    g.e("s_waitcnt lgkmcnt(0)")
    g.e("s_barrier")
    g.e(f"s_branch {kname}_end")
    g.lab(f"{kname}_gemm")
    w = 120
    for i in range(20):
        g.e(f"v_mov_b32 v{vacc+i}, 0")
    vX = (gm.vend + 3) // 4 * 4
    vXo = w + 8
    g.e(f"s_and_b32 s{S_T}, s{S_WAVE}, 1")
    g.e(f"s_lshl_b32 s{S_T}, s{S_T}, 4")
    g.e(f"s_lshl_b32 s{S_T+1}, s{S_M0}, 5")
    g.e(f"s_add_u32 s{S_T}, s{S_T}, s{S_T+1}")
    g.e(f"v_and_b32 v{w}, 15, v1")
    g.e(f"v_add_u32 v{w}, s{S_T}, v{w}")
    g.e(f"v_mov_b32 v{w+9}, v{w}")
    g.e(f"v_mul_u32_u24 v{w}, 1152, v{w}")
    g.e(f"v_lshrrev_b32 v{w+1}, 4, v1")
    g.e(f"v_lshl_add_u32 v{w}, v{w+1}, 3, v{w}")
    g.e(f"s_lshl_b32 s{S_T+1}, s{S_NH}, 7")
    g.e(f"s_add_u32 s{S_T+1}, s{S_T+1}, s{S_CB}")
    g.e(f"v_add_u32 v{vXo}, s{S_T+1}, v{w}")
    for nt in range(5):
        g.e(f"buffer_load_dwordx2 v[{vX+2*nt}:{vX+2*nt+1}], v{vXo}, s[{S_E}:{S_E+3}], 0 offen offset:{32*nt}")
    vAf = vX + 12
    acc = lambda mt, nt: f"v[{vacc+nt*4}:{vacc+nt*4+3}]"
    def rd(i, ks, dst):
        r = vAf + dst * 4
        return [f"ds_read_b128 v[{r}:{r+3}], v{vAr} offset:{(i*64+ks*32)*2}"] + gm.reads(i % NS, ks, dst)
    T = 9
    g.e(f"s_waitcnt vmcnt({(NS-1)*gm.D + 5}) lgkmcnt(0)")
    g.e("s_barrier")
    if 'dbgo' in EXP:
        g.e("s_cmp_lg_u32 s2, 0")
        g.e(f"s_cbranch_scc1 {kname}_nodbg")
        srd(g, S_A, P_WS, 0x3C00000, 65536)
        for q in range(37):
            g.e(f"v_lshlrev_b32 v{w}, 2, v0")
            g.e(f"ds_read_b32 v{w+1}, v{w} offset:{q*1024}")
            g.e("s_waitcnt lgkmcnt(0)")
            g.e(f"buffer_store_dword v{w+1}, v{w}, s[{S_A}:{S_A+3}], 0 offen offset:0")
            g.e(f"s_add_u32 s{S_A}, s{S_A}, 1024")
            g.e(f"s_addc_u32 s{S_A+1}, s{S_A+1}, 0")
        g.lab(f"{kname}_nodbg")
    for x in rd(0, 0, 0):
        g.e(x)
    issued = NS
    for i in range(T):
        g.e("s_waitcnt lgkmcnt(0)")
        gm.phase(0, lambda mt: vAf, acc, rd(i, 1, 1))
        if i + 1 < T:
            young = (issued - 1 - (i + 1)) * gm.D + (5 if i + 1 <= NS - 1 else 0)
            g.e(f"s_waitcnt vmcnt({young}) lgkmcnt(0)")
        else:
            g.e("s_waitcnt lgkmcnt(0)")
        g.e("s_barrier")
        if issued < T:
            gm.issue(issued % NS)
            issued += 1
        gm.phase(1, lambda mt: vAf + 4, acc, rd(i + 1, 0, 0) if i + 1 < T else [])
    g.e("s_waitcnt vmcnt(0)")
    if 'stamp' in EXP:
        g.e("s_memrealtime s[94:95]")
    g.e("s_nop 7")
    vS = w + 10
    g.e(f"v_mov_b32 v{vS}, 0")
    g.e(f"v_mov_b32 v{vS+1}, 0")
    g.e(f"s_cmp_eq_u32 s{S_NH}, 1")
    g.e(f"s_cselect_b32 s{S_T}, 0, 1.0")
    for nt in range(5):
        a = vacc + 4 * nt
        for p_ in range(2):
            g.e(f"v_cvt_pk_bf16_f32 v{w}, v{a+2*p_}, v{a+2*p_+1}")
            unpack_lo(g, w + 1, w)
            unpack_hi(g, w + 2, w)
            unpack_lo(g, w + 3, vX + 2 * nt + p_)
            unpack_hi(g, w + 4, vX + 2 * nt + p_)
            g.e(f"v_add_f32 v{w+1}, v{w+1}, v{w+3}")
            g.e(f"v_add_f32 v{w+2}, v{w+2}, v{w+4}")
            g.e(f"v_cvt_pk_bf16_f32 v{vX+2*nt+p_}, v{w+1}, v{w+2}")
            unpack_lo(g, w + 1, vX + 2 * nt + p_)
            unpack_hi(g, w + 2, vX + 2 * nt + p_)
            if nt == 0:
                g.e(f"v_mul_f32 v{w+1}, s{S_T}, v{w+1}")
                g.e(f"v_mul_f32 v{w+2}, s{S_T}, v{w+2}")
            g.e(f"v_add_f32 v{vS}, v{vS}, v{w+1}")
            g.e(f"v_fmac_f32 v{vS+1}, v{w+1}, v{w+1}")
            g.e(f"v_add_f32 v{vS}, v{vS}, v{w+2}")
            g.e(f"v_fmac_f32 v{vS+1}, v{w+2}, v{w+2}")
        g.e(f"buffer_store_dwordx2 v[{vX+2*nt}:{vX+2*nt+1}], v{vXo}, s[{S_O}:{S_O+3}], 0 offen offset:{32*nt}")
    g.e(f"v_xor_b32 v{w+2}, 16, v1")
    g.e(f"v_lshlrev_b32 v{w+2}, 2, v{w+2}")
    g.e(f"v_xor_b32 v{w+3}, 32, v1")
    g.e(f"v_lshlrev_b32 v{w+3}, 2, v{w+3}")
    xor_reduce(g, [vS, vS + 1], w, w + 2, w + 3)
    g.e(f"s_lshl_b32 s{S_T}, s{S_CBI}, 1")
    g.e(f"s_add_u32 s{S_T}, s{S_T}, s{S_NH}")
    g.e(f"s_lshl_b32 s{S_T}, s{S_T}, 3")
    g.e(f"v_lshlrev_b32 v{w}, 6, v{w+9}")
    g.e(f"v_add_u32 v{w}, s{S_T}, v{w}")
    g.e("s_mov_b64 exec, 0xffff")
    g.e(f"buffer_store_dwordx2 v[{vS}:{vS+1}], v{w}, s[{S_F}:{S_F+3}], 0 offen")
    g.e("s_mov_b64 exec, -1")
    epilogue(g, kname)
    return g.text(), descriptor(kname, 256), 32 * OST + gm.lds_bytes


LOG2E = 1.4426950408889634


def retile_jobs(g):
    NTH = 49152
    g.e(f"s_mul_i32 s{S_T}, s2, 192")
    g.e(f"v_add_u32 v2, s{S_T}, v7")

    def map_tile(rowc, tilec, tilebytes, rowbytes):
        def f(vi):
            divmod_const(g, vi, rowc, 5, 7, S_T)
            divmod_const(g, 7, tilec, 6, 24, S_T)
            g.e(f"s_mov_b32 s{S_T}, {tilebytes}")
            g.e(f"v_mul_lo_u32 v6, v6, s{S_T}")
            g.e(f"v_mul_u32_u24 v5, {rowbytes}, v5")
            g.e("v_add_u32 v6, v6, v5")
            g.e("v_lshl_add_u32 v6, v24, 4, v6")
        return f
    jobs = [(P_WO, 576 * 1152, TWO_OFF, TWO_SZ, 576 * 72, map_tile(72, 18, 165888, 288), S_B, S_C),
            (P_WIN, 576 * 9216, TWIN_OFF, TWIN_SZ, 576 * 576, map_tile(576, 18, 165888, 288), 76, 80),
            (P_WOUT, 2304 * 1152, TWOUT_OFF, TWOUT_SZ, 2304 * 72, map_tile(72, 9, 368640, 160), 84, 88)]
    plan = []
    vi, vd = 28, 48
    for (ptr, ssz, doff, dsz, n, mp, ss, sd) in jobs:
        srd(g, ss, ptr, 0, ssz)
        srd(g, sd, P_WS, doff, dsz)
        nj = (n + NTH - 1) // NTH
        for j in range(nj):
            g.e(f"v_add_u32 v{vi}, {NTH*j}, v2")
            g.e(f"v_lshlrev_b32 v6, 4, v{vi}")
            g.e(f"buffer_load_dwordx4 v[{vd}:{vd+3}], v6, s[{ss}:{ss+3}], 0 offen")
            plan.append((vi, vd, sd, mp, n, (j + 1) * NTH > n))
            vi += 1
            vd += 4
    for (vi_, vd_, sd, mp, n, partial) in plan:
        mp(vi_)
        if partial:
            g.e(f"v_cmp_gt_u32 vcc, {n}, v{vi_}")
            g.e("v_mov_b32 v7, 0x40000000")
            g.e("s_nop 0")
            g.e("v_cndmask_b32 v6, v7, v6, vcc")
        g.e(f"v_mov_b32 v{vi_}, v6")
    nl = len(plan)
    for k_, (vi_, vd_, sd, mp, n, partial) in enumerate(plan):
        g.e(f"s_waitcnt vmcnt({nl-1})")
        g.e(f"buffer_store_dwordx4 v[{vd_}:{vd_+3}], v{vi_}, s[{sd}:{sd+3}], 0 offen")
    srd(g, S_A, P_WS, ST_OFF, ST2_SZ)
    for i in range(4):
        g.e(f"v_mov_b32 v{8+i}, 0")
    g.e("v_lshlrev_b32 v6, 4, v2")
    g.e(f"buffer_store_dwordx4 v[8:11], v6, s[{S_A}:{S_A+3}], 0 offen")


def k1_kernel():
    kname = "k1_kernel"
    g = G()
    MT, NT, BN, NS, T = 4, 5, 80, 3, 9
    prologue(g, kname, 256)
    wave_setup(g)
    S_H, S_RB = S_T + 5, S_T + 6
    g.e(f"s_and_b32 s{S_RB}, s2, 7")
    g.e(f"s_lshr_b32 s{S_H}, s2, 3")
    g.e(f"s_lshl_b32 s{S_M0}, s{S_RB}, 8")
    g.e("s_waitcnt lgkmcnt(0)")
    srd(g, S_A, P_X, 0, H_SZ)
    srd(g, S_B, P_WQKV, 0, 576 * 3456)
    srd(g, S_C, P_WPHI, 0, 32 * 648)
    srd(g, S_O, P_WS, PHIQ_OFF, PHIQ_SZ)
    srd(g, S_E, P_WS, KV3_OFF, KV3_SZ)
    srd(g, S_F, P_WS, ACC_OFF, ACC_SZ)
    vacc = 8
    vcs = vacc + 80
    vrs = vcs + 20
    vsq = vrs + 16
    vone = vsq + 16
    LB = 10496
    gm = Gemm(g, MT, NT, BN, NS, 3456, 'lds', vone + 4, lds_base=LB)
    assert gm.vend <= 256
    gm.rotw = 0
    S_WR, S_CB = S_T + 3, S_T + 4
    g.e(f"s_lshl_b32 s{S_WR}, s{S_WAVE}, 6")
    g.e(f"s_add_u32 s{S_WR}, s{S_WR}, s{S_M0}")
    g.e(f"s_mul_i32 s{S_CB}, s{S_H}, 36")

    def colmap(g, vc, t1, t3):
        g.e(f"v_cmp_eq_u32 vcc, 9, v{vc}")
        g.e("s_nop 1")
        g.e(f"v_cndmask_b32 v{vc}, v{vc}, 0, vcc")
        g.e(f"v_mul_u32_u24 v{t1}, 21846, v{vc}")
        g.e(f"v_lshrrev_b32 v{t1}, 16, v{t1}")
        g.e(f"v_mul_u32_u24 v{t3}, 3, v{t1}")
        g.e(f"v_sub_u32 v{vc}, v{vc}, v{t3}")
        g.e(f"v_lshlrev_b32 v{vc}, 4, v{vc}")
        g.e(f"v_mul_u32_u24 v{t1}, 1152, v{t1}")
        g.e(f"v_add_u32 v{vc}, v{vc}, v{t1}")
    for c in range(9):
        assert (c * 21846) >> 16 == c // 3
    gm.setup(1, 2, colmap=colmap, col0_sgpr=S_CB)
    gm.setup_a(1, 2, 1152, S_WR)
    RING = gm.lds_bytes
    QS = 136
    WB = 0
    lds_total = LB + RING
    g.e(f"s_cmp_eq_u32 s{S_ROLE}, 0")
    g.e(f"s_cbranch_scc1 {kname}_comp")
    def grp(i):
        g.e(f"s_mov_b32 s{S_KA}, {i*128}")
        g.e(f"s_mov_b32 s{S_KB}, {i*64*3456}")
        gm.issue(i % NS)
    for j in range(NS):
        grp(j)
    g.e(f"s_waitcnt vmcnt({(NS-1)*gm.G})")
    g.e("s_barrier")
    for i in range(T):
        last = min(i + NS - 1, T - 1)
        g.e(f"s_waitcnt vmcnt({max(last-(i+1),0)*gm.G})")
        g.e("s_barrier")
        if i + NS < T:
            grp(i + NS)
    g.e("s_barrier")
    g.e("v_and_b32 v7, 255, v0")
    g.e(f"s_cmp_eq_u32 s{S_WAVE}, 3")
    g.e(f"s_cbranch_scc1 {kname}_cs")
    retile_jobs(g)
    g.e(f"s_branch {kname}_end")
    g.lab(f"{kname}_cs")
    colsum_job(g, kname, 0)
    g.e(f"s_branch {kname}_end")
    g.lab(f"{kname}_comp")
    g.e(f"s_cmp_lg_u32 s{S_WAVE}, 0")
    g.e(f"s_cbranch_scc1 {kname}_now")
    g.e(f"s_mul_i32 s{S_T+1}, s{S_H}, 648")
    g.e("v_and_b32 v2, 15, v1")
    g.e("v_lshrrev_b32 v3, 4, v1")
    g.e("v_lshlrev_b32 v3, 2, v3")
    g.e("v_mov_b32 v7, 0x40000000")
    opn = 0
    for S_, base in ((0, 0), (1, 24)):
        for ch in range(2):
            tl = ch + S_
            for ft in range(2):
                for j in range(4):
                    r = vacc + opn * 4 + j
                    g.e(f"v_add_u32 v4, {16*tl + j - base}, v3")
                    g.e(f"v_add_u32 v5, {16*ft}, v2")
                    g.e(f"v_mul_u32_u24 v6, 18, v4")
                    g.e(f"v_add_u32 v6, v6, v5")
                    g.e(f"v_lshlrev_b32 v6, 1, v6")
                    g.e(f"v_cmp_gt_u32 vcc, 18, v4")
                    g.e(f"v_cmp_gt_u32 s[{S_T+8}:{S_T+9}], 18, v5")
                    g.e(f"s_and_b64 vcc, vcc, s[{S_T+8}:{S_T+9}]")
                    g.e(f"v_cndmask_b32 v6, v7, v6, vcc")
                    g.e(f"buffer_load_ushort v{r}, v6, s[{S_C}:{S_C+3}], s{S_T+1} offen")
                opn += 1
    g.e("s_waitcnt vmcnt(0)")
    g.e("v_lshlrev_b32 v2, 3, v1")
    for o_ in range(8):
        r = vacc + o_ * 4
        g.e(f"v_lshl_or_b32 v{r}, v{r+1}, 16, v{r}")
        g.e(f"v_lshl_or_b32 v{r+1}, v{r+3}, 16, v{r+2}")
        g.e(f"ds_write_b64 v2, v[{r}:{r+1}] offset:{o_*512}")
    for i in range(4):
        g.e(f"v_mov_b32 v{vacc+i}, 0")
    g.e("v_lshlrev_b32 v2, 4, v1")
    for i in range(7):
        g.e(f"ds_write_b128 v2, v[{vacc}:{vacc+3}] offset:{4096 + i*1024 if i < 6 else 4096 + 5376}")
    g.e("s_waitcnt lgkmcnt(0)")
    g.lab(f"{kname}_now")
    for i in range(80 + 20 + 32):
        g.e(f"v_mov_b32 v{vacc+i}, 0")
    for i in range(4):
        g.e(f"v_mov_b32 v{vone+i}, 0x3f803f80")
    acc = lambda mt, nt: f"v[{vacc+(mt*5+nt)*4}:{vacc+(mt*5+nt)*4+3}]"
    def extra(cur):
        for nt in range(5):
            b = gm.vB[cur] + nt * 4
            c = f"v[{vcs+4*nt}:{vcs+4*nt+3}]"
            g.e(f"v_mfma_f32_16x16x32_bf16 {c}, v[{b}:{b+3}], v[{vone}:{vone+3}], {c}")
        for mt in range(4):
            a = gm.vA[cur] + mt * 4
            c = f"v[{vrs+4*mt}:{vrs+4*mt+3}]"
            g.e(f"v_mfma_f32_16x16x32_bf16 {c}, v[{vone}:{vone+3}], v[{a}:{a+3}], {c}")
            c = f"v[{vsq+4*mt}:{vsq+4*mt+3}]"
            g.e(f"v_mfma_f32_16x16x32_bf16 {c}, v[{a}:{a+3}], v[{a}:{a+3}], {c}")
    g.e("s_barrier")
    for x in gm.reads(0, 0, 0):
        g.e(x)
    for i in range(T):
        s_ = i % NS
        g.e("s_waitcnt lgkmcnt(0)")
        gm.phase(0, lambda mt: gm.vA[0] + 4 * mt, acc, gm.reads(s_, 1, 1))
        extra(0)
        g.e(f"s_waitcnt lgkmcnt(0)")
        g.e("s_barrier")
        gm.phase(1, lambda mt: gm.vA[1] + 4 * mt, acc, gm.reads((s_ + 1) % NS, 0, 0) if i + 1 < T else [])
        extra(1)
    if 'stamp' in EXP:
        g.e("s_memrealtime s[92:93]")
    g.e("s_barrier")
    vt_ = gm.vB[0]
    g.e("v_and_b32 v2, 15, v1")
    g.e("v_lshrrev_b32 v3, 2, v2")
    g.e("v_lshl_add_u32 v3, v3, 4, v2")
    g.e("v_lshlrev_b32 v3, 2, v3")
    g.e("v_and_b32 v4, 3, v1")
    g.e("s_nop 4")
    for mt in range(4):
        q0 = vsq + 4 * mt
        g.e("v_cmp_eq_u32 vcc, 1, v4")
        g.e("s_nop 1")
        g.e(f"v_cndmask_b32 v{vt_+mt}, v{q0}, v{q0+1}, vcc")
        g.e("v_cmp_eq_u32 vcc, 2, v4")
        g.e("s_nop 1")
        g.e(f"v_cndmask_b32 v{vt_+mt}, v{vt_+mt}, v{q0+2}, vcc")
        g.e("v_cmp_eq_u32 vcc, 3, v4")
        g.e("s_nop 1")
        g.e(f"v_cndmask_b32 v{vt_+mt}, v{vt_+mt}, v{q0+3}, vcc")
    for mt in range(4):
        g.e(f"ds_bpermute_b32 v{vt_+4+mt}, v3, v{vt_+mt}")
    g.e("s_waitcnt lgkmcnt(0)")
    for mt in range(4):
        ln_from_sums(g, vrs + 4 * mt, vt_ + 4 + mt, 576, vt_ + 8 + 2 * mt, vt_ + 9 + 2 * mt, 5)
        g.e(f"v_sub_f32 v{vt_+8+2*mt}, 0, v{vt_+8+2*mt}")
    vmr = vt_ + 8
    for mt in range(4):
        for t in range(5):
            a = vacc + 4 * (mt * 5 + t)
            for r in (0, 2):
                g.e(f"v_pk_fma_f32 v[{a+r}:{a+r+1}], v[{vcs+4*t+r}:{vcs+4*t+r+1}], v[{vmr+2*mt}:{vmr+2*mt+1}], v[{a+r}:{a+r+1}] op_sel:[0,0,0] op_sel_hi:[1,0,1]")
            for r in (0, 2):
                g.e(f"v_pk_mul_f32 v[{a+r}:{a+r+1}], v[{a+r}:{a+r+1}], v[{vmr+2*mt}:{vmr+2*mt+1}] op_sel:[0,1] op_sel_hi:[1,1]")
            g.e(f"v_cvt_pk_bf16_f32 v{a}, v{a}, v{a+1}")
            g.e(f"v_cvt_pk_bf16_f32 v{a+1}, v{a+2}, v{a+3}")
    vWo = vcs
    g.e("v_lshlrev_b32 v2, 3, v1")
    for o_ in range(8):
        g.e(f"ds_read_b64 v[{vWo+2*o_}:{vWo+2*o_+1}], v2 offset:{o_*512}")
    g.e(f"s_mul_i32 s{S_T+2}, s{S_WAVE}, {64*160}")
    g.e(f"s_add_u32 s{S_T+2}, s{S_T+2}, {LB + 36864}")
    vz = vrs
    for i in range(4):
        g.e(f"v_mov_b32 v{vz+i}, 0")
    g.e("v_lshlrev_b32 v3, 4, v1")
    g.e(f"v_add_u32 v3, s{S_T+2}, v3")
    for i in range(10):
        g.e(f"ds_write_b128 v3, v[{vz}:{vz+3}] offset:{i*1024}")
    g.e("s_waitcnt lgkmcnt(0)")
    vPD = 144
    for mt in range(4):
        for S_ in range(2):
            for ft in range(2):
                d = vPD + ((mt * 2 + S_) * 2 + ft) * 4
                for ch in range(2):
                    tl = ch + S_
                    pa = vacc + 4 * (mt * 5 + tl)
                    wo = vWo + 2 * ((S_ * 2 + ch) * 2 + ft)
                    c = "0" if ch == 0 else f"v[{d}:{d+3}]"
                    g.e(f"v_mfma_f32_16x16x16_bf16 v[{d}:{d+3}], v[{wo}:{wo+1}], v[{pa}:{pa+1}], {c}")
    vMX = 208
    vTP = 224
    vL2 = 240
    vMask = 241
    vA16, vA32 = 242, 243
    g.e(f"v_mov_b32 v{vL2}, {fhex(LOG2E)}")
    g.e("v_cmp_gt_u32 vcc, 16, v1")
    g.e("s_nop 1")
    g.e(f"v_cndmask_b32 v{vMask}, 0, 1.0, vcc")
    g.e(f"v_xor_b32 v{vA16}, 16, v1")
    g.e(f"v_lshlrev_b32 v{vA16}, 2, v{vA16}")
    g.e(f"v_xor_b32 v{vA32}, 32, v1")
    g.e(f"v_lshlrev_b32 v{vA32}, 2, v{vA32}")
    g.e("s_nop 4")
    for st in range(8):
        d = vPD + st * 8
        for p_ in range(3):
            g.e(f"v_cvt_pk_bf16_f32 v{vTP}, v{d+2*p_}, v{d+2*p_+1}")
            unpack_lo(g, d + 2 * p_, vTP)
            unpack_hi(g, d + 2 * p_ + 1, vTP)
        g.e(f"v_cndmask_b32 v{d+4}, v{d}, v{d+4}, vcc")
        g.e(f"v_cndmask_b32 v{d+5}, v{d}, v{d+5}, vcc")
        g.e(f"v_max3_f32 v{vMX+2*st}, v{d}, v{d+1}, v{d+2}")
        g.e(f"v_max3_f32 v{vMX+2*st}, v{vMX+2*st}, v{d+3}, v{d+4}")
        g.e(f"v_max_f32 v{vMX+2*st}, v{vMX+2*st}, v{d+5}")
        g.e(f"v_min3_f32 v{vMX+2*st+1}, v{d}, v{d+1}, v{d+2}")
        g.e(f"v_min3_f32 v{vMX+2*st+1}, v{vMX+2*st+1}, v{d+3}, v{d+4}")
        g.e(f"v_min_f32 v{vMX+2*st+1}, v{vMX+2*st+1}, v{d+5}")
    for va in (vA16, vA32):
        for i in range(16):
            g.e(f"ds_bpermute_b32 v{vTP+i}, v{va}, v{vMX+i}")
        g.e("s_waitcnt lgkmcnt(0)")
        for st in range(8):
            g.e(f"v_max_f32 v{vMX+2*st}, v{vMX+2*st}, v{vTP+2*st}")
            g.e(f"v_min_f32 v{vMX+2*st+1}, v{vMX+2*st+1}, v{vTP+2*st+1}")
    vE2 = 88
    def e2reg(st, i):
        mt, S_ = st // 2, st % 2
        t = S_ * 3 + i // 2
        return None
    E2 = {}
    free = []
    for mt in range(4):
        for t in range(5):
            a = vacc + 4 * (mt * 5 + t)
            free += [a + 2, a + 3]
    free += list(range(vrs + 4, vrs + 16)) + list(range(vsq, vsq + 16))
    assert len(free) >= 48
    for st in range(8):
        for i in range(6):
            E2[(st, i)] = free[st * 6 + i]
    for st in range(8):
        d = vPD + st * 8
        g.e(f"v_mul_f32 v{vMX+2*st}, v{vMX+2*st}, v{vL2}")
        g.e(f"v_mul_f32 v{vMX+2*st+1}, v{vMX+2*st+1}, v{vL2}")
        for i in range(6):
            g.e(f"v_fma_f32 v{E2[(st,i)]}, -v{d+i}, v{vL2}, v{vMX+2*st+1}")
            g.e(f"v_fma_f32 v{d+i}, v{d+i}, v{vL2}, -v{vMX+2*st}")
        for i in range(6):
            g.e(f"v_exp_f32 v{E2[(st,i)]}, v{E2[(st,i)]}")
            g.e(f"v_exp_f32 v{d+i}, v{d+i}")
    g.e("s_nop 0")
    for st in range(8):
        d = vPD + st * 8
        for sg, R_ in ((0, [d + i for i in range(6)]), (1, [E2[(st, i)] for i in range(6)])):
            sreg = vMX + 2 * st + sg
            g.e(f"v_add_f32 v{sreg}, v{R_[4]}, v{R_[5]}")
            g.e(f"v_mul_f32 v{sreg}, v{sreg}, v{vMask}")
            for i in range(4):
                g.e(f"v_add_f32 v{sreg}, v{sreg}, v{R_[i]}")
    for va in (vA16, vA32):
        for i in range(16):
            g.e(f"ds_bpermute_b32 v{vTP+i}, v{va}, v{vMX+i}")
        g.e("s_waitcnt lgkmcnt(0)")
        for i in range(16):
            g.e(f"v_add_f32 v{vMX+i}, v{vMX+i}, v{vTP+i}")
    for i in range(16):
        g.e(f"v_rcp_f32 v{vMX+i}, v{vMX+i}")
    g.e("s_nop 0")
    g.e("v_lshlrev_b32 v4, 4, v1")
    g.e("v_and_b32 v5, 15, v1")
    g.e("v_lshlrev_b32 v5, 3, v5")
    g.e(f"s_lshl_b32 s{S_T}, s{S_RB}, 4")
    g.e(f"s_lshl_b32 s{S_T+1}, s{S_WAVE}, 2")
    g.e(f"s_add_u32 s{S_T}, s{S_T}, s{S_T+1}")
    g.e(f"s_lshl_b32 s{S_T}, s{S_T}, 5")
    g.e(f"s_add_u32 s{S_T}, s{S_T}, s{S_H}")
    g.e(f"s_mul_i32 s{S_T}, s{S_T}, 1152")
    g.e("v_and_b32 v6, 15, v1")
    g.e("v_mul_u32_u24 v6, 160, v6")
    g.e("v_lshrrev_b32 v7, 4, v1")
    g.e("v_lshl_add_u32 v6, v7, 3, v6")
    g.e(f"v_add_u32 v6, s{S_T+2}, v6")
    g.e(f"v_mov_b32 v{vL2}, 0x3f80")
    for st in range(8):
        mt, S_ = st // 2, st % 2
        d = vPD + st * 8
        for i in range(6):
            g.e(f"v_mul_f32 v{d+i}, v{d+i}, v{vMX+2*st}")
            g.e(f"v_mul_f32 v{E2[(st,i)]}, v{E2[(st,i)]}, v{vMX+2*st+1}")
        o = vTP + 8 * (st % 2)
        g.e(f"v_cvt_pk_bf16_f32 v{o}, v{d}, v{d+1}")
        g.e(f"v_cvt_pk_bf16_f32 v{o+1}, v{d+2}, v{d+3}")
        g.e(f"v_cvt_pk_bf16_f32 v{o+2}, v{E2[(st,0)]}, v{E2[(st,1)]}")
        g.e(f"v_cvt_pk_bf16_f32 v{o+3}, v{E2[(st,2)]}, v{E2[(st,3)]}")
        g.e(f"v_cvt_pk_bf16_f32 v{o+4}, v{d+4}, v{d+5}")
        g.e(f"v_cvt_pk_bf16_f32 v{o+5}, v{E2[(st,4)]}, v{E2[(st,5)]}")
        if S_ == 0:
            g.e(f"s_add_u32 s{S_T+1}, s{S_T}, {mt*32*1152}")
            g.e(f"buffer_store_dwordx4 v[{o}:{o+3}], v4, s[{S_O}:{S_O+3}], s{S_T+1} offen")
            g.e("s_mov_b64 exec, 0xffff")
            g.e(f"buffer_store_dwordx2 v[{o+4}:{o+5}], v5, s[{S_O}:{S_O+3}], s{S_T+1} offen offset:1024")
            g.e("s_mov_b64 exec, -1")
        else:
            ko = mt * 16 * 160
            g.e(f"ds_write_b64 v6, v[{o}:{o+1}] offset:{ko}")
            g.e(f"ds_write_b64 v6, v[{o+2}:{o+3}] offset:{ko+32}")
            pv = vacc + 4 * (mt * 5 + 3)
            g.e(f"ds_write_b64 v6, v[{pv}:{pv+1}] offset:{ko+96}")
            pv4 = vacc + 4 * (mt * 5 + 4)
            g.e(f"v_mov_b32 v{pv4+1}, v{vL2}")
            g.e("s_mov_b64 exec, 0xffff")
            g.e(f"ds_write_b64 v6, v[{o+4}:{o+5}] offset:{ko+64}")
            g.e(f"ds_write_b64 v6, v[{pv4}:{pv4+1}] offset:{ko+128}")
            g.e("s_mov_b64 exec, -1")
    g.e("v_lshrrev_b32 v2, 4, v1")
    g.e("v_lshlrev_b32 v2, 2, v2")
    g.e("v_bfe_u32 v3, v1, 2, 2")
    g.e("v_add_u32 v2, v2, v3")
    g.e("v_mul_u32_u24 v2, 160, v2")
    g.e("v_and_b32 v3, 3, v1")
    g.e("v_lshl_add_u32 v2, v3, 3, v2")
    g.e(f"v_add_u32 v2, s{S_T+2}, v2")
    g.e("s_waitcnt lgkmcnt(0)")
    vFr = 144
    for ks in range(2):
        for t in range(5):
            for half in range(2):
                r = vFr + (ks * 5 + t) * 4 + 2 * half
                g.e(f"ds_read_b64_tr_b16 v[{r}:{r+1}], v2 offset:{(32*ks+16*half)*160 + 32*t}")
    g.e("s_waitcnt lgkmcnt(0)")
    vKV = 8
    for ks in range(2):
        for mt in range(3):
            for nt in range(2):
                d = vKV + (mt * 2 + nt) * 4
                a = vFr + (ks * 5 + mt) * 4
                b = vFr + (ks * 5 + 3 + nt) * 4
                c = "0" if ks == 0 else f"v[{d}:{d+3}]"
                g.e(f"v_mfma_f32_16x16x32_bf16 v[{d}:{d+3}], v[{a}:{a+3}], v[{b}:{b+3}], {c}")
    if 'stamp' in EXP:
        g.e("s_memrealtime s[94:95]")
    RB2 = LB + 81920
    g.e(f"s_mul_i32 s{S_T+2}, s{S_WAVE}, 6144")
    g.e(f"s_add_u32 s{S_T+2}, s{S_T+2}, {RB2}")
    g.e("v_lshlrev_b32 v2, 4, v1")
    g.e(f"v_add_u32 v3, s{S_T+2}, v2")
    g.e("s_nop 6")
    for t in range(6):
        g.e(f"ds_write_b128 v3, v[{vKV+4*t}:{vKV+4*t+3}] offset:{t*1024}")
    g.e("s_waitcnt lgkmcnt(0)")
    g.e("v_mov_b32 v3, 0")
    g.e("v_mov_b32 v4, 1")
    g.e("s_mov_b64 exec, 1")
    g.e(f"ds_add_rtn_u32 v4, v3, v4 offset:{4096 + 6144}")
    g.e("s_waitcnt lgkmcnt(0)")
    g.e("s_mov_b64 exec, -1")
    g.e(f"v_readfirstlane_b32 s{S_T}, v4")
    g.e("s_nop 3")
    g.e(f"s_cmp_lg_u32 s{S_T}, 3")
    g.e(f"s_cbranch_scc1 {kname}_fin")
    g.e(f"v_add_u32 v3, {RB2}, v2")
    for wv in range(4):
        for t in range(6):
            r = 32 + (wv * 6 + t) * 4
            g.e(f"ds_read_b128 v[{r}:{r+3}], v3 offset:{wv*6144 + t*1024}")
    g.e("s_waitcnt lgkmcnt(0)")
    for i in range(24):
        g.e(f"v_add_f32 v{vKV+i}, v{32+i}, v{56+i}")
        g.e(f"v_add_f32 v{80+i}, v{80+i}, v{104+i}")
    for i in range(24):
        g.e(f"v_add_f32 v{vKV+i}, v{vKV+i}, v{80+i}")
    g.e(f"s_lshl_b32 s{S_T}, s{S_H}, 3")
    g.e(f"s_add_u32 s{S_T}, s{S_T}, s{S_RB}")
    g.e(f"s_mul_i32 s{S_T}, s{S_T}, 6144")
    for t in range(6):
        g.e(f"s_add_u32 s{S_T+1}, s{S_T}, {t*1024}")
        g.e(f"buffer_store_dwordx4 v[{vKV+4*t}:{vKV+4*t+3}], v2, s[{S_E}:{S_E+3}], s{S_T+1} offen sc1")
    g.e("s_waitcnt vmcnt(0)")
    srd(g, S_A, P_DBG, 0, 256)
    g.e(f"s_lshl_b32 s{S_T}, s{S_H}, 2")
    g.e(f"v_mov_b32 v3, s{S_T}")
    g.e("v_mov_b32 v4, 1")
    g.e("s_mov_b64 exec, 1")
    g.e(f"buffer_atomic_add v4, v3, s[{S_A}:{S_A+3}], 0 offen sc0")
    g.e("s_waitcnt vmcnt(0)")
    g.e("s_mov_b64 exec, -1")
    g.e(f"v_readfirstlane_b32 s{S_T}, v4")
    g.e("s_nop 3")
    g.e(f"s_cmp_lg_u32 s{S_T}, 7")
    g.e(f"s_cbranch_scc1 {kname}_fin")
    g.e(f"s_mul_i32 s{S_T}, s{S_H}, {8*6144}")
    for j in range(8):
        for t in range(6):
            r = 32 + (j * 6 + t) * 4
            g.e(f"s_add_u32 s{S_T+1}, s{S_T}, {j*6144 + t*1024}")
            g.e(f"buffer_load_dwordx4 v[{r}:{r+3}], v2, s[{S_E}:{S_E+3}], s{S_T+1} offen sc1")
    for j in range(8):
        g.e(f"s_waitcnt vmcnt({(7-j)*6})")
        for i in range(24):
            if j == 0:
                g.e(f"v_mov_b32 v{vKV+i}, v{32+i}")
            else:
                g.e(f"v_add_f32 v{vKV+i}, v{vKV+i}, v{32+j*24+i}")
    g.e(f"s_mul_i32 s{S_T}, s{S_H}, 3072")
    for pp in range(3):
        d = vKV + 8 * pp
        g.e(f"v_cvt_pk_bf16_f32 v{d}, v{d}, v{d+1}")
        g.e(f"v_cvt_pk_bf16_f32 v{d+1}, v{d+2}, v{d+3}")
        g.e(f"v_cvt_pk_bf16_f32 v{d+2}, v{d+4}, v{d+5}")
        g.e(f"v_cvt_pk_bf16_f32 v{d+3}, v{d+6}, v{d+7}")
        g.e(f"buffer_store_dwordx4 v[{d}:{d+3}], v2, s[{S_F}:{S_F+3}], s{S_T} offen offset:{pp*1024}")
    g.lab(f"{kname}_fin")
    epilogue(g, kname)
    return g.text(), descriptor(kname, 256), lds_total


def divmod_const(g, vx, d, vq, vr, st):
    magic = (2**32 + d - 1) // d
    g.e(f"s_mov_b32 s{st}, {magic}")
    g.e(f"v_mul_hi_u32 v{vq}, v{vx}, s{st}")
    g.e(f"v_mul_u32_u24 v{vr}, {d}, v{vq}")
    g.e(f"v_sub_u32 v{vr}, v{vx}, v{vr}")


def k0_kernel():
    kname = "k0_kernel"
    g = G()
    prologue(g, kname, 256)
    g.e("v_and_b32 v1, 63, v0")
    g.e("v_lshrrev_b32 v2, 6, v0")
    g.e("s_nop 0")
    g.e(f"v_readfirstlane_b32 s{S_WAVE}, v2")
    g.e(f"s_lshl_b32 s{S_T}, s2, 8")
    g.e(f"v_add_u32 v2, s{S_T}, v0")
    g.e("s_waitcnt lgkmcnt(0)")
    srd(g, S_A, P_X, 0, H_SZ)
    srd(g, S_O, P_WS, XN_OFF, H_SZ)
    g.e(f"s_lshl_b32 s{S_M0}, s2, 3")
    g.e(f"s_lshl_b32 s{S_T}, s{S_WAVE}, 1")
    g.e(f"s_add_u32 s{S_M0}, s{S_M0}, s{S_T}")
    g.e(f"s_mul_i32 s{S_M0}, s{S_M0}, 1152")
    g.e("v_lshlrev_b32 v3, 4, v1")
    g.e("v_add_u32 v4, 1024, v3")
    g.e("v_cmp_gt_u32 vcc, 8, v1")
    g.e("v_mov_b32 v5, 0x40000000")
    g.e("v_cndmask_b32 v4, v5, v4, vcc")
    for rr in range(2):
        g.e(f"s_add_u32 s{S_T}, s{S_M0}, {rr*1152}")
        g.e(f"buffer_load_dwordx4 v[{8+rr*8}:{11+rr*8}], v3, s[{S_A}:{S_A+3}], s{S_T} offen")
        g.e(f"buffer_load_dwordx4 v[{12+rr*8}:{15+rr*8}], v4, s[{S_A}:{S_A+3}], s{S_T} offen")

    def map_tile(rowc, tilec, tilebytes, rowbytes):
        def f(vi):
            divmod_const(g, vi, rowc, 5, 7, S_T)
            divmod_const(g, 7, tilec, 6, 24, S_T)
            g.e(f"s_mov_b32 s{S_T}, {tilebytes}")
            g.e(f"v_mul_lo_u32 v6, v6, s{S_T}")
            g.e(f"v_mul_u32_u24 v5, {rowbytes}, v5")
            g.e("v_add_u32 v6, v6, v5")
            g.e("v_lshl_add_u32 v6, v24, 4, v6")
        return f

    def map_qkv(vi):
        divmod_const(g, vi, 864, 5, 7, S_T)
        divmod_const(g, 7, 288, 25, 24, S_T)
        divmod_const(g, 24, 9, 6, 7, S_T)
        g.e(f"s_mov_b32 s{S_T}, 92160")
        g.e(f"v_mul_lo_u32 v6, v6, s{S_T}")
        g.e("v_mul_u32_u24 v5, 160, v5")
        g.e("v_add_u32 v6, v6, v5")
        g.e("v_mul_u32_u24 v25, 36, v25")
        g.e("v_add_u32 v6, v6, v25")
        g.e("v_lshl_add_u32 v6, v7, 2, v6")
    jobs = [(P_WIN, 576 * 9216, TWIN_OFF, TWIN_SZ, 576 * 576, map_tile(576, 18, 165888, 288), 4, 76, 80),
            (P_WOUT, 2304 * 1152, TWOUT_OFF, TWOUT_SZ, 2304 * 72, map_tile(72, 9, 368640, 160), 4, 84, 88),
            (P_WO, 576 * 1152, TWO_OFF, TWO_SZ, 576 * 72, map_tile(72, 18, 165888, 288), 4, S_B, S_C),
            (P_WQKV, 576 * 3456, TQKV_OFF, TQKV_SZ, 576 * 864, map_qkv, 1, S_E, S_F)]
    vi0, vd0 = 28, 48
    plan = []
    vi, vd = vi0, vd0
    for (ptr, ssz, doff, dsz, n, mp, wd, ss, sd) in jobs:
        srd(g, ss, ptr, 0, ssz)
        srd(g, sd, P_WS, doff, dsz)
        nj = (n + 65535) // 65536
        for j in range(nj):
            g.e(f"v_add_u32 v{vi}, {65536*j}, v2")
            g.e(f"v_lshlrev_b32 v6, {4 if wd == 4 else 2}, v{vi}")
            if wd == 4:
                g.e(f"buffer_load_dwordx4 v[{vd}:{vd+3}], v6, s[{ss}:{ss+3}], 0 offen")
            else:
                g.e(f"buffer_load_dword v{vd}, v6, s[{ss}:{ss+3}], 0 offen")
            plan.append((vi, vd, wd, sd, mp, n, (j + 1) * 65536 > n))
            vi += 1
            vd += wd
        vd = (vd + 3) // 4 * 4
    assert vi <= vd0 and vd <= 110
    nl = len(plan)
    for (vi_, vd_, wd, sd, mp, n, partial) in plan:
        mp(vi_)
        if partial:
            g.e(f"v_cmp_gt_u32 vcc, {n}, v{vi_}")
            g.e("v_mov_b32 v7, 0x40000000")
            g.e("s_nop 0")
            g.e("v_cndmask_b32 v6, v7, v6, vcc")
        g.e(f"v_mov_b32 v{vi_}, v6")
    g.e(f"s_waitcnt vmcnt({nl})")
    vs = 112
    g.e("v_mov_b32 v26, 0x3f803f80")
    for rr in range(2):
        g.e(f"v_mov_b32 v{vs+2*rr}, 0")
        g.e(f"v_mov_b32 v{vs+1+2*rr}, 0")
        for d in range(8):
            r = 8 + rr * 8 + d
            g.e(f"v_dot2_f32_bf16 v{vs+2*rr}, v{r}, v26, v{vs+2*rr}")
            g.e(f"v_dot2_f32_bf16 v{vs+1+2*rr}, v{r}, v{r}, v{vs+1+2*rr}")
    for sw in (0x041F, 0x081F, 0x101F, 0x201F, 0x401F):
        for i in range(4):
            g.e(f"ds_swizzle_b32 v{vs+4+i}, v{vs+i} offset:{sw}")
        g.e("s_waitcnt lgkmcnt(0)")
        for i in range(4):
            g.e(f"v_add_f32 v{vs+i}, v{vs+i}, v{vs+4+i}")
    g.e("v_xor_b32 v26, 32, v1")
    g.e("v_lshlrev_b32 v26, 2, v26")
    for i in range(4):
        g.e(f"ds_bpermute_b32 v{vs+4+i}, v26, v{vs+i}")
    g.e("s_waitcnt lgkmcnt(0)")
    for i in range(4):
        g.e(f"v_add_f32 v{vs+i}, v{vs+i}, v{vs+4+i}")
    for rr in range(2):
        ln_from_sums(g, vs + 2 * rr, vs + 1 + 2 * rr, 576, vs + 4 + 2 * rr, vs + 5 + 2 * rr, 26)
    for rr in range(2):
        vm, vr = vs + 4 + 2 * rr, vs + 5 + 2 * rr
        for d in range(8):
            r = 8 + rr * 8 + d
            unpack_lo(g, 26, r)
            unpack_hi(g, 27, r)
            g.e(f"v_sub_f32 v26, v26, v{vm}")
            g.e(f"v_sub_f32 v27, v27, v{vm}")
            g.e(f"v_cvt_pk_bf16_f32 v{r}, v26, v27")
            unpack_lo(g, 26, r)
            unpack_hi(g, 27, r)
            g.e(f"v_mul_f32 v26, v26, v{vr}")
            g.e(f"v_mul_f32 v27, v27, v{vr}")
            g.e(f"v_cvt_pk_bf16_f32 v{r}, v26, v27")
    for k_, (vi_, vd_, wd, sd, mp, n, partial) in enumerate(plan):
        g.e(f"s_waitcnt vmcnt({nl-1-k_})") if k_ == 0 else None
        if k_ == 0:
            g.e("s_waitcnt vmcnt(0)")
        if wd == 4:
            g.e(f"buffer_store_dwordx4 v[{vd_}:{vd_+3}], v{vi_}, s[{sd}:{sd+3}], 0 offen")
        else:
            g.e(f"buffer_store_dword v{vd_}, v{vi_}, s[{sd}:{sd+3}], 0 offen")
    for rr in range(2):
        g.e(f"s_add_u32 s{S_T}, s{S_M0}, {rr*1152}")
        g.e(f"buffer_store_dwordx4 v[{8+rr*8}:{11+rr*8}], v3, s[{S_O}:{S_O+3}], s{S_T} offen")
        g.e(f"buffer_store_dwordx4 v[{12+rr*8}:{15+rr*8}], v4, s[{S_O}:{S_O+3}], s{S_T} offen")
    srd(g, S_A, P_WS, ST_OFF, ST2_SZ)
    for i in range(4):
        g.e(f"v_mov_b32 v{vs+i}, 0")
    g.e("v_lshlrev_b32 v6, 4, v2")
    g.e(f"buffer_store_dwordx4 v[{vs}:{vs+3}], v6, s[{S_A}:{S_A+3}], 0 offen")
    epilogue(g, kname)
    return g.text(), descriptor(kname, 128), 0


def colsum_job(g, kname, first_wg):
    g.e(f"s_sub_u32 s{S_T}, s2, {first_wg}")
    g.e(f"s_cmp_ge_u32 s{S_T}, 144")
    g.e(f"s_cbranch_scc1 {kname}_end")
    srd(g, S_A, P_WIN, 0, 576 * 4608 * 2)
    srd(g, S_B, P_WS, CS_OFF, CS_SZ)
    g.e(f"s_lshl_b32 s{S_T}, s{S_T}, 6")
    g.e("v_lshrrev_b32 v2, 2, v1")
    g.e("v_mul_u32_u24 v2, 9216, v2")
    g.e("v_and_b32 v3, 3, v1")
    g.e("v_lshl_add_u32 v2, v3, 4, v2")
    g.e(f"v_add_u32 v2, s{S_T}, v2")
    for i in range(8):
        g.e(f"v_mov_b32 v{8+i}, 0")
    for q in range(36):
        g.e(f"s_mov_b32 s{S_T+1}, {q*16*9216}")
        g.e(f"buffer_load_dwordx4 v[{16+4*q}:{19+4*q}], v2, s[{S_A}:{S_A+3}], s{S_T+1} offen")
    for q in range(36):
        g.e(f"s_waitcnt vmcnt({35-q})")
        for d in range(4):
            unpack_lo(g, 4, 16 + 4 * q + d)
            unpack_hi(g, 5, 16 + 4 * q + d)
            g.e(f"v_add_f32 v{8+2*d}, v{8+2*d}, v4")
            g.e(f"v_add_f32 v{9+2*d}, v{9+2*d}, v5")
    for x in (4, 8, 16, 32):
        g.e(f"v_xor_b32 v4, {x}, v1")
        g.e("v_lshlrev_b32 v4, 2, v4")
        for i in range(8):
            g.e(f"ds_bpermute_b32 v{16+i}, v4, v{8+i}")
        g.e("s_waitcnt lgkmcnt(0)")
        for i in range(8):
            g.e(f"v_add_f32 v{8+i}, v{8+i}, v{16+i}")
    g.e(f"s_lshl_b32 s{S_T}, s{S_T}, 1")
    g.e("v_lshlrev_b32 v4, 5, v1")
    g.e(f"v_add_u32 v4, s{S_T}, v4")
    g.e("s_mov_b64 exec, 0xf")
    g.e(f"buffer_store_dwordx4 v[8:11], v4, s[{S_B}:{S_B+3}], 0 offen")
    g.e(f"buffer_store_dwordx4 v[12:15], v4, s[{S_B}:{S_B+3}], 0 offen offset:16")
    g.e("s_mov_b64 exec, -1")


HEADER = open(__file__.replace("dev/gen.py", "cdna_kernels/" + NAME + ".s.ref")).read().split("; Override launch")[0]


def build(which=None):
    kernels = []
    t, d, l = k1_kernel()
    kernels.append(("k1_kernel", 256, 512, l, t, d))
    t, d, l = k2_kernel()
    kernels.append(("k2_kernel", 256, 512, l, t, d))
    t, d, l = k3_kernel()
    kernels.append(("k3_kernel", 256, 512, l, t, d))
    t, d, l = kn_kernel()
    kernels.append(("kn_kernel", 256, 256, l, t, d))
    t, d, l = gemm_global_kernel("k4_kernel", 'k4')
    kernels.append(("k4_kernel", 256, 512, l, t, d))
    t, d, l = gemm_global_kernel("k5_kernel", 'k5')
    kernels.append(("k5_kernel", 256, 512, l, t, d))
    out = HEADER
    for (n, grid, blk, lds, t, d) in kernels:
        out += f"; @launch kernel={n} grid=({grid},1,1) block=({blk},1,1) lds={lds}\n"
    out += '.amdgcn_target "amdgcn-amd-amdhsa--gfx950"\n.text\n'
    for k in kernels:
        out += k[4]
    out += '.section .rodata,"a"\n'
    for k in kernels:
        out += k[5]
    return out


if __name__ == "__main__":
    path = sys.argv[1] if len(sys.argv) > 1 else f"cdna_kernels/{NAME}.s"
    open(path, "w").write(build())
    print("wrote", path)
```

```python
import sys, os
EXP = os.environ.get('EXP','')

NAME = "sequential_preLN__linear_kernel_hedgehog__mixer_gmlp__prompt"

PHIQ_OFF, PHIQ_SZ = 0x0000000, 128 * 32 * 1152 + 512
KVP_OFF, KVP_SZ = 0x0600000, 8 * 32 * 4 * 6 * 1024
KVT_OFF, KVT_SZ = 0x0C00000, 32 * 4608
H_OFF, H_SZ = 0x0D00000, 2048 * 576 * 2
Z1_OFF, Z_SZ = 0x1000000, 2048 * 2304 * 2
Z2_OFF = 0x1A00000
Z2N_OFF = 0x2400000
ST_OFF, ST_SZ = 0x2E00000, 2048 * 16 * 2 * 4
U_OFF = 0x3000000
HST_OFF, HST_SZ = 0x3A00000, 2048 * 8 * 8
CS_OFF, CS_SZ = 0x3B00000, 4608 * 4
XN_OFF = 0x0600000
ACC_OFF, ACC_SZ = 0x0C00000, 32 * 3072
KV3_OFF, KV3_SZ = 0x0900000, 32 * 8 * 6144
TQKV_OFF, TQKV_SZ = 0x4000000, 32 * 576 * 160
TWO_OFF, TWO_SZ = 0x4300000, 4 * 576 * 288
TWIN_OFF, TWIN_SZ = 0x4400000, 32 * 576 * 288
TWOUT_OFF, TWOUT_SZ = 0x4A00000, 8 * 2304 * 160
ST2_SZ = 2048 * 8

P_X, P_WQKV, P_WPHI, P_WO, P_BX, P_WIN, P_WSP, P_BSP = 4, 6, 8, 10, 12, 14, 16, 18
P_WOUT, P_OUT, P_DBG, P_WS = 20, 22, 24, 26
S_A, S_B, S_C, S_O, S_E, S_F = 28, 32, 36, 40, 44, 48


class G:
    def __init__(self):
        self.L = []

    def e(self, s):
        self.L.append("    " + s)

    def lab(self, s):
        self.L.append(s + ":")

    def c(self, s):
        self.L.append("    ; " + s)

    def text(self):
        return "\n".join(self.L) + "\n"


def srd(g, sd, ptr, off, size):
    if off:
        g.e(f"s_add_u32 s{sd}, s{ptr}, {off}")
        g.e(f"s_addc_u32 s{sd+1}, s{ptr+1}, 0")
        g.e(f"s_and_b32 s{sd+1}, s{sd+1}, 0xffff")
    else:
        g.e(f"s_mov_b32 s{sd}, s{ptr}")
        g.e(f"s_and_b32 s{sd+1}, s{ptr+1}, 0xffff")
    g.e(f"s_mov_b32 s{sd+2}, {size}")
    g.e(f"s_mov_b32 s{sd+3}, 0x00020000")


def prologue(g, kname, nwg):
    g.L.append(f".globl {kname}")
    g.L.append(".p2align 8")
    g.L.append(f".type {kname},@function")
    g.lab(kname)
    g.e(f"s_cmp_ge_u32 s2, {nwg}")
    g.e(f"s_cbranch_scc1 {kname}_end")
    g.e("s_load_dwordx16 s[4:19], s[0:1], 0")
    g.e("s_load_dwordx8 s[20:27], s[0:1], 64")
    if 'stamp' in EXP:
        g.e("s_memrealtime s[96:97]")
        g.e("s_mov_b32 s92, 0")
        g.e("s_mov_b32 s94, 0")


STAMP_OFF = 0x3F00000
def epilogue(g, kname):
    if 'stamp' in EXP:
        idx = int(kname[1]) if kname[1].isdigit() else 6
        g.e("s_waitcnt vmcnt(0) lgkmcnt(0)")
        g.e("s_memrealtime s[98:99]")
        srd(g, S_F, P_WS, STAMP_OFF + idx * 16384, 16384)
        g.e("s_waitcnt lgkmcnt(0)")
        g.e("v_mov_b32 v2, s96")
        g.e("v_mov_b32 v3, s98")
        g.e("v_mov_b32 v4, s92")
        g.e("v_mov_b32 v5, s94")
        g.e("s_lshl_b32 s96, s2, 4")
        g.e("v_mov_b32 v6, s96")
        g.e("v_cmp_eq_u32 vcc, 0, v0")
        g.e("s_and_saveexec_b64 s[96:97], vcc")
        g.e(f"buffer_store_dwordx4 v[2:5], v6, s[{S_F}:{S_F+3}], 0 offen")
    g.lab(f"{kname}_end")
    g.e("s_endpgm")


def descriptor(kname, vgpr, agpr=0, sgpr=100):
    acc = (vgpr + 3) // 4 * 4
    tot = acc + agpr if agpr else vgpr
    return f""".p2align 6
.amdhsa_kernel {kname}
  .amdhsa_next_free_vgpr {tot}
  .amdhsa_next_free_sgpr {sgpr}
  .amdhsa_accum_offset {acc}
  .amdhsa_group_segment_fixed_size 0
  .amdhsa_kernarg_size 96
  .amdhsa_user_sgpr_count 2
  .amdhsa_user_sgpr_kernarg_segment_ptr 1
  .amdhsa_system_sgpr_workgroup_id_x 1
.end_amdhsa_kernel
"""


def swap23(r):
    return (r & 3) | ((r & 4) << 1) | ((r & 8) >> 1)


S_WAVE = 52
S_WB = 53
S_KB = 54
S_KA = 55
S_LOOP = 56
S_M0 = 57
S_N0 = 58
S_WA = 59
S_T = 60
S_J = 70
S_ROT = 71
S_ROLE = 72


class Gemm:
    def __init__(self, g, MT, NT, BN, NS, ldb, a_mode, vbase, lds_base=0):
        self.g = g
        self.MT, self.NT, self.BN, self.NS = MT, NT, BN, NS
        self.ldb = ldb
        self.a_mode = a_mode
        self.S = BN * 2
        self.CPR = BN // 8
        self.STAGE = 64 * self.S
        self.ASTAGE = 4 * MT * 16 * 128 if a_mode == 'lds' else 0
        self.a_base = lds_base
        self.b_base = lds_base + NS * self.ASTAGE
        nch = 16 * self.CPR
        self.nfull = nch // 64
        self.half = (nch % 64) // 32
        assert nch % 32 == 0
        self.D = self.nfull + self.half
        self.DA = 2 * MT if a_mode == 'lds' else 0
        v = vbase
        self.vDma = v; v += self.D
        self.vBaddr = v; v += NS
        if a_mode == 'lds':
            self.vDmaA = v; v += self.DA
            self.a_multi = NS * self.ASTAGE > 65536
            self.vAaddr = v; v += 2 * (NS if self.a_multi else 1)
        v = (v + 3) // 4 * 4
        self.vB = [v, v + NT * 4]; v += 2 * NT * 4
        if a_mode == 'lds':
            self.vA = [v, v + MT * 4]; v += 2 * MT * 4
        self.G = (0 if 'nob' in EXP else self.D) + (0 if 'noa' in EXP else self.DA)
        self.vend = v
        self.rotw = 1
        self.lds_bytes = NS * (self.STAGE + self.ASTAGE)

    def setup(self, vlane, vt0, colmap=None, col0_sgpr=None):
        g = self.g
        t0, t1, t2, t3 = vt0, vt0 + 1, vt0 + 2, vt0 + 3
        magic = (65536 + self.CPR - 1) // self.CPR
        for c in range(self.D * 64):
            assert (c * magic) >> 16 == c // self.CPR
        g.e(f"s_mul_i32 s{S_WB}, s{S_WAVE}, {16*self.S}")
        g.e(f"s_add_u32 s{S_WB}, s{S_WB}, {self.b_base}")
        g.e(f"s_lshl_b32 s{S_T}, s{S_WAVE}, 4")
        for q in range(self.D):
            g.e(f"v_add_u32 v{t0}, {q*64}, v{vlane}")
            g.e(f"v_mul_u32_u24 v{t1}, {magic}, v{t0}")
            g.e(f"v_lshrrev_b32 v{t1}, 16, v{t1}")
            g.e(f"v_mul_u32_u24 v{t2}, {self.CPR}, v{t1}")
            g.e(f"v_sub_u32 v{t0}, v{t0}, v{t2}")
            g.e(f"v_and_b32 v{t2}, 3, v{t1}")
            g.e(f"v_and_b32 v{t3}, 4, v{t1}")
            g.e(f"v_lshl_or_b32 v{t2}, v{t3}, 1, v{t2}")
            g.e(f"v_and_b32 v{t3}, 8, v{t1}")
            g.e(f"v_lshrrev_b32 v{t3}, 1, v{t3}")
            g.e(f"v_or_b32 v{t2}, v{t2}, v{t3}")
            g.e(f"v_add_u32 v{t2}, s{S_T}, v{t2}")
            g.e(f"s_mov_b32 s{S_T+1}, {self.ldb}")
            g.e(f"v_mul_lo_u32 v{t2}, v{t2}, s{S_T+1}")
            if colmap is None:
                g.e(f"v_lshlrev_b32 v{t0}, 4, v{t0}")
            else:
                colmap(g, t0, t1, t3)
            g.e(f"v_add_u32 v{self.vDma+q}, v{t2}, v{t0}")
            if col0_sgpr is not None:
                g.e(f"v_add_u32 v{self.vDma+q}, s{col0_sgpr}, v{self.vDma+q}")
        g.e(f"v_lshrrev_b32 v{t0}, 5, v{vlane}")
        g.e(f"v_lshlrev_b32 v{t0}, 4, v{t0}")
        g.e(f"v_bfe_u32 v{t1}, v{vlane}, 4, 1")
        g.e(f"v_lshl_or_b32 v{t0}, v{t1}, 2, v{t0}")
        g.e(f"v_bfe_u32 v{t1}, v{vlane}, 2, 2")
        g.e(f"v_add_u32 v{t0}, v{t0}, v{t1}")
        g.e(f"v_mul_u32_u24 v{t0}, {self.S}, v{t0}")
        g.e(f"v_and_b32 v{t1}, 3, v{vlane}")
        g.e(f"v_lshl_add_u32 v{t0}, v{t1}, 3, v{t0}")
        for s in range(self.NS):
            g.e(f"v_add_u32 v{self.vBaddr+s}, {self.b_base + s*self.STAGE}, v{t0}")

    def setup_a(self, vlane, vt0, lda, srow0):
        g = self.g
        t0, t1, t2 = vt0, vt0 + 1, vt0 + 2
        g.e(f"s_mul_i32 s{S_WA}, s{S_WAVE}, {self.MT*16*128}")
        if self.a_base:
            g.e(f"s_add_u32 s{S_WA}, s{S_WA}, {self.a_base}")
        g.e(f"v_lshrrev_b32 v{t0}, 3, v{vlane}")
        g.e(f"v_and_b32 v{t1}, 7, v{vlane}")
        g.e(f"v_xor_b32 v{t1}, v{t1}, v{t0}")
        g.e(f"v_add_u32 v{t0}, s{srow0}, v{t0}")
        g.e(f"s_mov_b32 s{S_T}, {lda}")
        g.e(f"v_mul_lo_u32 v{t0}, v{t0}, s{S_T}")
        g.e(f"v_lshl_add_u32 v{t0}, v{t1}, 4, v{t0}")
        for q in range(self.DA):
            g.e(f"v_add_u32 v{self.vDmaA+q}, {8*q*lda}, v{t0}")
        g.e(f"v_and_b32 v{t0}, 15, v{vlane}")
        g.e(f"v_lshrrev_b32 v{t1}, 4, v{vlane}")
        g.e(f"v_and_b32 v{t2}, 7, v{vlane}")
        g.e(f"v_xor_b32 v{t1}, v{t1}, v{t2}")
        g.e(f"v_lshlrev_b32 v{t1}, 4, v{t1}")
        g.e(f"v_lshl_add_u32 v{t0}, v{t0}, 7, v{t1}")
        g.e(f"v_add_u32 v{self.vAaddr}, s{S_WA}, v{t0}")
        g.e(f"v_xor_b32 v{self.vAaddr+1}, 64, v{self.vAaddr}")
        if self.a_multi:
            for sl in range(1, self.NS):
                g.e(f"v_add_u32 v{self.vAaddr+2*sl}, {sl*self.ASTAGE}, v{self.vAaddr}")
                g.e(f"v_add_u32 v{self.vAaddr+2*sl+1}, {sl*self.ASTAGE}, v{self.vAaddr+1}")

    def dma_items(self, slot):
        items = []
        if self.a_mode == 'lds' and 'noa' not in EXP:
            for q in range(self.DA):
                pre = [f"s_add_u32 m0, s{S_WA}, {slot*self.ASTAGE + q*1024}"]
                main = [f"buffer_load_dwordx4 v{self.vDmaA+q}, s[{S_A}:{S_A+3}], s{S_KA} offen lds"]
                items.append((pre, main))
        if 'nob' not in EXP:
            for q in range(self.D):
                pre = [f"s_add_u32 m0, s{S_WB}, {slot*self.STAGE + q*1024}"]
                main = [f"buffer_load_dwordx4 v{self.vDma+q}, s[{S_B}:{S_B+3}], s{S_KB} offen lds"]
                if q == self.nfull:
                    main = ["s_mov_b32 exec_hi, 0"] + main + ["s_mov_b32 exec_hi, -1"]
                if q == self.D - 1:
                    main += self.next_k()
                items.append((pre, main))
        return items

    def next_k(self):
        W = self.rotw
        if W == 0:
            return []
        if W <= 1:
            return [f"s_add_u32 s{S_KB}, s{S_KB}, {64*self.ldb}", f"s_add_u32 s{S_KA}, s{S_KA}, 128"]
        return [f"s_add_u32 s{S_J}, s{S_J}, 1",
                f"s_add_u32 s{S_KA}, s{S_J}, s{S_ROT}",
                f"s_and_b32 s{S_KA}, s{S_KA}, {W-1}",
                f"s_and_b32 s{S_KB}, s{S_J}, {(~(W-1)) & 0xffff}",
                f"s_or_b32 s{S_KA}, s{S_KA}, s{S_KB}",
                f"s_mul_i32 s{S_KB}, s{S_KA}, {64*self.ldb}",
                f"s_lshl_b32 s{S_KA}, s{S_KA}, 7"]

    def init_k(self):
        g = self.g
        g.e(f"s_mov_b32 s{S_J}, 0")
        g.e(f"s_and_b32 s{S_KA}, s{S_ROT}, {max(self.rotw-1,0)}")
        g.e(f"s_mul_i32 s{S_KB}, s{S_KA}, {64*self.ldb}")
        g.e(f"s_lshl_b32 s{S_KA}, s{S_KA}, 7")

    def issue(self, slot):
        for pre, main in self.dma_items(slot):
            for x in pre:
                self.g.e(x)
            self.g.e("s_nop 0")
            for x in main:
                self.g.e(x)

    def reads(self, slot, ks, dst):
        out = []
        if 'nord' in EXP:
            return out
        if self.a_mode == 'lds':
            for mt in range(self.MT):
                r = self.vA[dst] + mt * 4
                if self.a_multi:
                    out.append(f"ds_read_b128 v[{r}:{r+3}], v{self.vAaddr+2*slot+ks} offset:{mt*2048}")
                else:
                    out.append(f"ds_read_b128 v[{r}:{r+3}], v{self.vAaddr+ks} offset:{slot*self.ASTAGE + mt*2048}")
        for nt in range(self.NT):
            for half in range(2):
                r = self.vB[dst] + nt * 4 + half * 2
                off = (32 * ks + 8 * half) * self.S + 32 * nt
                out.append(f"ds_read_b64_tr_b16 v[{r}:{r+1}], v{self.vBaddr+slot} offset:{off}")
        return out

    def phase(self, cur, afr, acc, rd, dma=None, first=0):
        g = self.g
        rd = list(rd)
        dma = list(dma or [])
        mf = [(mt, nt) for nt in range(self.NT) for mt in range(self.MT)]
        n = len(mf)
        pos = {}
        if dma:
            gap = max(2, (n - 1) // len(dma))
            for j, it in enumerate(dma):
                p = min(j * gap + first, n - 2)
                pos.setdefault(p, []).append(('pre', it))
        pend = []
        for i, (mt, nt) in enumerate(mf):
            for _ in range(2):
                if rd:
                    g.e(rd.pop(0))
            b = self.vB[cur] + nt * 4
            a = afr(mt)
            c = acc(mt, nt)
            if 'nomf' not in EXP:
                g.e(f"v_mfma_f32_16x16x32_bf16 {c}, v[{b}:{b+3}], v[{a}:{a+3}], {c}")
            for it in pend:
                for x in it[1]:
                    g.e(x)
            pend = []
            todo = pos.get(i, [])
            for k_, (_, it) in enumerate(todo):
                if k_ > 0:
                    g.e("s_nop 0")
                    for x in pend[0][1]:
                        g.e(x)
                    pend = []
                for x in it[0]:
                    g.e(x)
                pend.append(it)
        for it in pend:
            g.e("s_nop 0")
            for x in it[1]:
                g.e(x)
        for x in rd:
            g.e(x)


def unpack_lo(g, d, s):
    g.e(f"v_lshlrev_b32 v{d}, 16, v{s}")


def unpack_hi(g, d, s):
    g.e(f"v_and_b32 v{d}, 0xffff0000, v{s}")


def gemm_global_kernel(kname, kind):
    g = G()
    if kind == 'k4':
        MT, NT, BN, NS, KT = 2, 9, 144, int(os.environ.get('NS4','4')), 32
        lda, ldb = 4096, 288
        nwg = 256
    else:
        MT, NT, BN, NS, KT = 1, 5, 80, int(os.environ.get('NS5','4')), 36
        lda, ldb = 4608, 160
        nwg = 256
    if 'NWG' in os.environ: nwg = int(os.environ['NWG'])
    prologue(g, kname, nwg)
    g.e("v_and_b32 v1, 63, v0")
    g.e("v_lshrrev_b32 v2, 6, v0")
    g.e("s_nop 0")
    g.e(f"v_readfirstlane_b32 s{S_ROLE}, v2")
    g.e(f"s_and_b32 s{S_WAVE}, s{S_ROLE}, 3")
    g.e(f"s_lshr_b32 s{S_ROLE}, s{S_ROLE}, 2")
    g.e(f"s_and_b32 s{S_T}, s2, 7")
    g.e(f"s_lshr_b32 s{S_T+1}, s2, 3")
    if kind == 'k4':
        g.e(f"s_lshr_b32 s{S_M0}, s{S_T}, 1")
        g.e(f"s_lshl_b32 s{S_M0}, s{S_M0}, 2")
        g.e(f"s_and_b32 s{S_T+2}, s{S_T+1}, 3")
        g.e(f"s_add_u32 s{S_M0}, s{S_M0}, s{S_T+2}")
        g.e(f"s_lshl_b32 s{S_M0}, s{S_M0}, 7")
        g.e(f"s_and_b32 s{S_N0}, s{S_T}, 1")
        g.e(f"s_lshl_b32 s{S_N0}, s{S_N0}, 3")
        g.e(f"s_lshr_b32 s{S_T+2}, s{S_T+1}, 2")
        g.e(f"s_add_u32 s{S_N0}, s{S_N0}, s{S_T+2}")
        g.e(f"s_mul_i32 s{S_N0}, s{S_N0}, 144")
        g.e(f"s_and_b32 s{S_ROT}, s{S_T+1}, 3")
        g.e(f"s_lshl_b32 s{S_ROT}, s{S_ROT}, 1")
        g.e(f"s_add_u32 s{S_ROT}, s{S_ROT}, s{S_T+2}")
        if int(os.environ.get('ROTW', '8')) > 8:
            g.e(f"s_mul_i32 s{S_ROT}, s{S_ROT}, {int(os.environ.get('ROTW', '8'))//8}")
    else:
        g.e(f"s_lshl_b32 s{S_M0}, s{S_T}, 2")
        g.e(f"s_lshr_b32 s{S_T+2}, s{S_T+1}, 3")
        g.e(f"s_add_u32 s{S_M0}, s{S_M0}, s{S_T+2}")
        g.e(f"s_lshl_b32 s{S_M0}, s{S_M0}, 6")
        g.e(f"s_and_b32 s{S_N0}, s{S_T+1}, 7")
        g.e(f"s_mul_i32 s{S_N0}, s{S_N0}, 72")
        g.e(f"s_lshr_b32 s{S_ROT}, s{S_T+1}, 1")
        g.e(f"s_add_u32 s{S_ROT}, s{S_ROT}, s{S_T+2}")
    if 'same' in EXP:
        g.e(f"s_mov_b32 s{S_M0}, 0")
        g.e(f"s_mov_b32 s{S_N0}, 0")
    g.e("s_waitcnt lgkmcnt(0)")
    if kind == 'k4':
        srd(g, S_A, P_WSP, 0, 2048 * 2048 * 2)
        srd(g, S_B, P_WS, Z2N_OFF, Z_SZ)
        srd(g, S_F, P_WS, ST_OFF, ST2_SZ)
        srd(g, S_C, P_WS, Z1_OFF, Z_SZ)
        srd(g, S_O, P_WS, U_OFF, Z_SZ)
        srd(g, S_E, P_BSP, 0, 4096)
    else:
        srd(g, S_A, P_WS, U_OFF, Z_SZ)
        srd(g, S_B, P_WS, TWOUT_OFF, TWOUT_SZ)
        srd(g, S_C, P_WS, H_OFF, H_SZ)
        srd(g, S_O, P_OUT, 0, H_SZ)
    NACC = MT * NT * 4
    vacc = 8
    gm = Gemm(g, MT, NT, BN, NS, ldb, 'lds', vacc + NACC)
    g.e(f"s_mul_i32 s{S_T+3}, s{S_WAVE}, {16*MT}")
    g.e(f"s_add_u32 s{S_T+3}, s{S_T+3}, s{S_M0}")
    g.e(f"s_lshl_b32 s{S_T+4}, s{S_N0}, 1")
    if kind == 'k4':
        g.e(f"s_mul_i32 s{S_T+5}, s{S_N0}, 4096")
        gm.setup(1, 2, col0_sgpr=S_T + 5)
    else:
        g.e(f"s_mul_i32 s{S_T+5}, s{S_N0}, 5120")
        gm.setup(1, 2, col0_sgpr=S_T + 5)
    gm.setup_a(1, 2, lda, S_T + 3)
    gm.rotw = int(os.environ.get('ROTW', '8'))
    if kind == 'k5': gm.rotw = min(gm.rotw, 4)
    gm.init_k()
    g.e(f"s_cmp_eq_u32 s{S_ROLE}, 0")
    g.e(f"s_cbranch_scc1 {kname}_comp")
    NORM4 = False
    if kind == 'k4' and NORM4:
        TAB = gm.lds_bytes
        vst = gm.vB[0]
        vkl = vst + NS * 20
        vwa = vkl + 5
        vtb = vwa + 1
        tq = (vtb + 10 + 3) // 4 * 4
        g.e(f"s_lshl_b32 s{S_T}, s{S_WAVE}, 12")
        g.e(f"v_lshlrev_b32 v{tq}, 6, v1")
        g.e(f"v_add_u32 v{tq}, s{S_T}, v{tq}")
        for i in range(4):
            g.e(f"buffer_load_dwordx4 v[{tq+4+4*i}:{tq+7+4*i}], v{tq}, s[{S_F}:{S_F+3}], 0 offen offset:{16*i}")
        g.e(f"s_lshl_b32 s{S_T}, s{S_WAVE}, 4")
        for q in range(5):
            g.e(f"v_add_u32 v2, {q*64}, v1")
            g.e(f"v_mul_u32_u24 v3, 3641, v2")
            g.e(f"v_lshrrev_b32 v3, 16, v3")
            g.e(f"v_and_b32 v4, 3, v3")
            g.e(f"v_and_b32 v5, 4, v3")
            g.e(f"v_lshl_or_b32 v4, v5, 1, v4")
            g.e(f"v_and_b32 v5, 8, v3")
            g.e(f"v_lshrrev_b32 v5, 1, v5")
            g.e(f"v_or_b32 v4, v4, v5")
            g.e(f"v_add_u32 v4, s{S_T}, v4")
            g.e(f"v_and_b32 v4, 63, v4")
            g.e(f"v_lshlrev_b32 v4, 3, v4")
            g.e(f"v_add_u32 v{vkl+q}, {TAB}, v4")
        g.e(f"v_lshlrev_b32 v{vwa}, 4, v1")
        g.e(f"v_add_u32 v{vwa}, s{S_WB}, v{vwa}")
        S_KQ = 76
        S_JB, S_KB2 = 80, 81
        W_ = gm.rotw
        def issueA(slot):
            for pre, main in gm.dma_items(slot)[:gm.DA]:
                for x in pre: g.e(x)
                g.e("s_nop 0")
                for x in main: g.e(x)
            g.e(f"s_add_u32 s{S_J}, s{S_J}, 1")
            g.e(f"s_add_u32 s{S_KA}, s{S_J}, s{S_ROT}")
            g.e(f"s_and_b32 s{S_KA}, s{S_KA}, {W_-1}")
            g.e(f"s_and_b32 s{S_T}, s{S_J}, {(~(W_-1)) & 0xffff}")
            g.e(f"s_or_b32 s{S_KA}, s{S_KA}, s{S_T}")
            g.e(f"s_lshl_b32 s{S_KA}, s{S_KA}, 7")
        def issueB(slot):
            g.e(f"s_lshl_b32 s{S_KQ+slot}, s{S_KB2}, 9")
            g.e(f"s_mul_i32 s{S_KB}, s{S_KB2}, {64*gm.ldb}")
            for q in range(5):
                r = vst + slot * 20 + q * 4
                if q == 4:
                    g.e("s_mov_b32 exec_hi, 0")
                g.e(f"buffer_load_dwordx4 v[{r}:{r+3}], v{gm.vDma+q}, s[{S_B}:{S_B+3}], s{S_KB} offen")
                if q == 4:
                    g.e("s_mov_b32 exec_hi, -1")
            g.e(f"s_add_u32 s{S_JB}, s{S_JB}, 1")
            g.e(f"s_add_u32 s{S_KB2}, s{S_JB}, s{S_ROT}")
            g.e(f"s_and_b32 s{S_KB2}, s{S_KB2}, {W_-1}")
            g.e(f"s_and_b32 s{S_T}, s{S_JB}, {(~(W_-1)) & 0xffff}")
            g.e(f"s_or_b32 s{S_KB2}, s{S_KB2}, s{S_T}")
        def pre4(slot):
            for q in range(5):
                g.e(f"v_add_u32 v2, s{S_KQ+slot}, v{vkl+q}")
                g.e(f"ds_read_b64 v[{vtb+2*q}:{vtb+2*q+1}], v2")
        def norm4(slot):
            g.e("s_waitcnt lgkmcnt(0)")
            for q in range(5):
                r = vst + slot * 20 + q * 4
                for d in range(4):
                    unpack_lo(g, 2, r + d)
                    unpack_hi(g, 3, r + d)
                    g.e(f"v_pk_fma_f32 v[2:3], v[2:3], v[{vtb+2*q}:{vtb+2*q+1}], v[{vtb+2*q}:{vtb+2*q+1}] op_sel:[0,1,0] op_sel_hi:[1,1,0]")
                    g.e(f"v_cvt_pk_bf16_f32 v{r+d}, v2, v3")
                if q == 4:
                    g.e("s_mov_b32 exec_hi, 0")
                g.e(f"ds_write_b128 v{vwa}, v[{r}:{r+3}] offset:{slot*gm.STAGE + q*1024}")
                if q == 4:
                    g.e("s_mov_b32 exec_hi, -1")
            g.e("s_waitcnt lgkmcnt(0)")
        g.e(f"s_mov_b32 s{S_JB}, 0")
        g.e(f"s_and_b32 s{S_KB2}, s{S_ROT}, {W_-1}")
        issueB(0)
        for j in range(NS - 1):
            issueA(j)
            issueB(j + 1)
        g.e(f"s_waitcnt vmcnt({5 + (NS-1)*9})")
        for i in range(8):
            a_ = tq + 4 + 2 * i
            ln_from_sums(g, a_, a_ + 1, 2304, 4, 5, 6)
            g.e(f"v_mul_f32 v4, v4, v5")
            g.e(f"v_sub_f32 v{a_}, 0, v4")
            g.e(f"v_mov_b32 v{a_+1}, v5")
        g.e(f"v_add_u32 v{tq}, {TAB}, v{tq}")
        for i in range(4):
            g.e(f"ds_write_b128 v{tq}, v[{tq+4+4*i}:{tq+7+4*i}] offset:{16*i}")
        g.e("s_waitcnt lgkmcnt(0)")
        g.e("s_barrier")
        pre4(0)
        g.e(f"s_waitcnt vmcnt({(NS-1)*9})")
        norm4(0)
        issueA(NS - 1)
        issueB(0)
        pre4(1)
        g.e(f"s_waitcnt vmcnt({(NS-1)*9})")
        norm4(1)
        g.e("s_barrier")
        g.e(f"s_mov_b32 s{S_LOOP}, {KT//NS}")
        g.lab(f"{kname}_lloop")
        for s in range(NS):
            g.e(f"s_waitcnt vmcnt({(NS-2)*9 + 5})")
            g.e("s_barrier")
            issueA(s)
            issueB((s + 1) % NS)
            pre4((s + 2) % NS)
            g.e(f"s_waitcnt vmcnt({(NS-1)*9})")
            norm4((s + 2) % NS)
        g.e(f"s_sub_u32 s{S_LOOP}, s{S_LOOP}, 1")
        g.e(f"s_cmp_lg_u32 s{S_LOOP}, 0")
        g.e(f"s_cbranch_scc1 {kname}_lloop")
        g.e("s_waitcnt vmcnt(0)")
        g.e("s_barrier")
        g.e(f"s_branch {kname}_end")
    else:
        for j in range(NS):
            gm.issue(j)
        g.e(f"s_waitcnt vmcnt({(NS-1)*gm.G})")
        g.e("s_barrier")
        g.e(f"s_mov_b32 s{S_LOOP}, {KT//NS}")
        g.lab(f"{kname}_lloop")
        for s in range(NS):
            g.e(f"s_waitcnt vmcnt({(NS-2)*gm.G})")
            g.e("s_barrier")
            gm.issue(s)
        g.e(f"s_sub_u32 s{S_LOOP}, s{S_LOOP}, 1")
        g.e(f"s_cmp_lg_u32 s{S_LOOP}, 0")
        g.e(f"s_cbranch_scc1 {kname}_lloop")
        g.e("s_waitcnt vmcnt(0)")
        if kind == 'k4':
            g.e("s_barrier")
        g.e(f"s_branch {kname}_end")
    g.lab(f"{kname}_comp")
    if kind == 'k4':
        K4_VB = (gm.vend + 1) // 2 * 2
        K4_VQ = K4_VB + 2
        K4_VZ = (K4_VQ + 9 + 3) // 4 * 4
        K4_W = K4_VZ + 36
        assert K4_W + 6 <= 256
        w = K4_W
        g.e(f"v_and_b32 v{w+4}, 15, v1")
        g.e(f"v_add_u32 v{w+4}, s{S_T+3}, v{w+4}")
        for mt in range(MT):
            g.e(f"v_add_u32 v{w+3}, {16*mt}, v{w+4}")
            g.e(f"v_lshlrev_b32 v{w+3}, 1, v{w+3}")
            g.e(f"buffer_load_ushort v{K4_VB+mt}, v{w+3}, s[{S_E}:{S_E+3}], 0 offen")
        g.e(f"s_mul_i32 s{S_T}, s{S_T+3}, 4608")
        g.e(f"s_add_u32 s{S_T}, s{S_T}, s{S_T+4}")
        for q in range(9):
            g.e(f"v_add_u32 v{w}, {q*64}, v1")
            g.e(f"v_mul_u32_u24 v{w+1}, 3641, v{w}")
            g.e(f"v_lshrrev_b32 v{w+1}, 16, v{w+1}")
            g.e(f"v_mul_u32_u24 v{w+2}, 18, v{w+1}")
            g.e(f"v_sub_u32 v{w}, v{w}, v{w+2}")
            g.e(f"v_mul_u32_u24 v{w+1}, 4608, v{w+1}")
            g.e(f"v_lshl_add_u32 v{w}, v{w}, 4, v{w+1}")
            g.e(f"v_add_u32 v{K4_VQ+q}, s{S_T}, v{w}")
    for i in range(NACC):
        g.e(f"v_mov_b32 v{vacc+i}, 0")
    acc = lambda mt, nt: f"v[{vacc+(mt*NT+nt)*4}:{vacc+(mt*NT+nt)*4+3}]"
    if kind == 'k4' and NORM4:
        g.e("s_barrier")
    g.e("s_barrier")
    for x in gm.reads(0, 0, 0):
        g.e(x)
    if 'stamp' in EXP:
        g.e("s_memrealtime s[92:93]")
    g.e(f"s_mov_b32 s{S_LOOP}, {KT//NS}")
    g.lab(f"{kname}_loop")
    if kind == 'k4':
        g.e(f"s_cmp_lg_u32 s{S_LOOP}, 2")
        g.e(f"s_cbranch_scc1 {kname}_noz")
        for q in range(9):
            g.e(f"buffer_load_dwordx4 v[{K4_VZ+4*q}:{K4_VZ+4*q+3}], v{K4_VQ+q}, s[{S_C}:{S_C+3}], 0 offen")
        g.lab(f"{kname}_noz")
    for s in range(NS):
        g.e("s_waitcnt lgkmcnt(0)")
        gm.phase(0, lambda mt: gm.vA[0] + mt * 4, acc, gm.reads(s, 1, 1))
        g.e(f"s_waitcnt lgkmcnt(0)")
        g.e("s_barrier")
        gm.phase(1, lambda mt: gm.vA[1] + mt * 4, acc, gm.reads((s + 1) % NS, 0, 0))
    g.e(f"s_sub_u32 s{S_LOOP}, s{S_LOOP}, 1")
    g.e(f"s_cmp_lg_u32 s{S_LOOP}, 0")
    g.e(f"s_cbranch_scc1 {kname}_loop")
    g.e("s_waitcnt vmcnt(0) lgkmcnt(0)")
    if 'stamp' in EXP:
        g.e("s_memrealtime s[94:95]")
    vt = gm.vB[0]
    voff = vt
    vtmp = vt + 4
    ldc = 4608 if kind == 'k4' else 1152
    g.e(f"v_and_b32 v{vtmp}, 15, v1")
    g.e(f"v_add_u32 v{vtmp}, s{S_T+3}, v{vtmp}")
    g.e(f"s_mov_b32 s{S_T}, {ldc}")
    g.e(f"v_mul_lo_u32 v{vtmp+1}, v{vtmp}, s{S_T}")
    g.e(f"v_lshrrev_b32 v{vtmp+2}, 4, v1")
    g.e(f"v_lshl_add_u32 v{vtmp+1}, v{vtmp+2}, 3, v{vtmp+1}")
    g.e(f"v_add_u32 v{vtmp+1}, s{S_T+4}, v{vtmp+1}")
    for mt in range(MT):
        g.e(f"v_add_u32 v{voff+mt}, {16*mt*ldc}, v{vtmp+1}")
    if kind == 'k4':
        vb, vq, vz, w = K4_VB, K4_VQ, K4_VZ, K4_W
        g.e("s_barrier")
        g.e(f"s_mul_i32 s{S_T+1}, s{S_WAVE}, 9216")
        g.e(f"v_and_b32 v{w}, 15, v1")
        g.e(f"v_mul_u32_u24 v{w}, 288, v{w}")
        g.e(f"v_lshrrev_b32 v{w+1}, 4, v1")
        g.e(f"v_lshl_add_u32 v{w}, v{w+1}, 3, v{w}")
        g.e(f"v_add_u32 v{voff}, s{S_T+1}, v{w}")
        g.e(f"v_lshlrev_b32 v{w}, 4, v1")
        g.e(f"v_add_u32 v{voff+1}, s{S_T+1}, v{w}")
        for mt in range(MT):
            g.e(f"v_lshlrev_b32 v{vb+mt}, 16, v{vb+mt}")
        for mt in range(MT):
            for nt in range(NT):
                a = vacc + (mt * NT + nt) * 4
                for p in range(2):
                    g.e(f"v_cvt_pk_bf16_f32 v{w}, v{a+2*p}, v{a+2*p+1}")
                    unpack_lo(g, w + 2, w)
                    unpack_hi(g, w + 3, w)
                    g.e(f"v_pk_add_f32 v[{w+2}:{w+3}], v[{w+2}:{w+3}], v[{vb}:{vb+1}] op_sel:[0,{mt}] op_sel_hi:[1,{mt}]")
                    g.e(f"v_cvt_pk_bf16_f32 v{a+p}, v{w+2}, v{w+3}")
                g.e(f"ds_write_b64 v{voff}, v[{a}:{a+1}] offset:{mt*16*288 + nt*32}")
        g.e("s_waitcnt lgkmcnt(0)")
        for q in range(9):
            g.e(f"ds_read_b128 v[{vacc+4*q}:{vacc+4*q+3}], v{voff+1} offset:{q*1024}")
        for q in range(9):
            g.e(f"s_waitcnt lgkmcnt({8-q})")
            for d in range(4):
                gq = vacc + 4 * q + d
                z = vz + 4 * q + d
                unpack_lo(g, w + 2, gq)
                unpack_hi(g, w + 3, gq)
                unpack_lo(g, w + 4, z)
                unpack_hi(g, w + 5, z)
                g.e(f"v_pk_mul_f32 v[{w+2}:{w+3}], v[{w+2}:{w+3}], v[{w+4}:{w+5}]")
                g.e(f"v_cvt_pk_bf16_f32 v{z}, v{w+2}, v{w+3}")
            g.e(f"buffer_store_dwordx4 v[{vz+4*q}:{vz+4*q+3}], v{vq+q}, s[{S_O}:{S_O+3}], 0 offen")
        vmax = w + 6
    else:
        vz = (vtmp + 6) // 2 * 2
        vlast = vtmp + 4
        for mt in range(MT):
            for nt in range(NT):
                r = vz + (mt * NT + nt) * 2
                g.e(f"buffer_load_dwordx2 v[{r}:{r+1}], v{voff+mt}, s[{S_C}:{S_C+3}], 0 offen offset:{nt*32}")
        g.e(f"v_cmp_gt_u32 vcc, 32, v1")
        g.e(f"v_mov_b32 v{vtmp+3}, 0x40000000")
        g.e("s_nop 0")
        g.e(f"v_cndmask_b32 v{vlast}, v{vtmp+3}, v{voff}, vcc")
        w = vz + MT * NT * 2
        g.e("s_waitcnt vmcnt(0)")
        for mt in range(MT):
            for nt in range(NT):
                a = vacc + (mt * NT + nt) * 4
                z = vz + (mt * NT + nt) * 2
                for p in range(2):
                    g.e(f"v_cvt_pk_bf16_f32 v{w}, v{a+2*p}, v{a+2*p+1}")
                    unpack_lo(g, w + 1, w)
                    unpack_hi(g, w + 2, w)
                    unpack_lo(g, w + 3, z + p)
                    unpack_hi(g, w + 4, z + p)
                    g.e(f"v_add_f32 v{w+1}, v{w+1}, v{w+3}")
                    g.e(f"v_add_f32 v{w+2}, v{w+2}, v{w+4}")
                    g.e(f"v_cvt_pk_bf16_f32 v{z+p}, v{w+1}, v{w+2}")
                vo = vlast if nt == NT - 1 else voff + mt
                g.e(f"buffer_store_dwordx2 v[{z}:{z+1}], v{vo}, s[{S_O}:{S_O+3}], 0 offen offset:{nt*32}")
        vmax = w + 5
    epilogue(g, kname)
    vmax = max(vmax, gm.vend, 216)
    if kind == 'k4': vmax = 256
    assert vmax <= 256, vmax
    return g.text(), descriptor(kname, vmax), gm.lds_bytes


def wave_setup(g):
    g.e("v_and_b32 v1, 63, v0")
    g.e("v_lshrrev_b32 v2, 6, v0")
    g.e("s_nop 0")
    g.e(f"v_readfirstlane_b32 s{S_ROLE}, v2")
    g.e(f"s_and_b32 s{S_WAVE}, s{S_ROLE}, 3")
    g.e(f"s_lshr_b32 s{S_ROLE}, s{S_ROLE}, 2")


def xor_reduce(g, vals, vtmp, vaddr16, vaddr32):
    for va in (vaddr16, vaddr32):
        for i, v in enumerate(vals):
            g.e(f"ds_bpermute_b32 v{vtmp+i}, v{va}, v{v}")
        g.e("s_waitcnt lgkmcnt(0)")
        for i, v in enumerate(vals):
            g.e(f"v_add_f32 v{v}, v{v}, v{vtmp+i}")


def bf16_round(g, v, t):
    g.e(f"v_cvt_pk_bf16_f32 v{t}, v{v}, v{v}")
    g.e(f"v_lshlrev_b32 v{v}, 16, v{t}")


def ln_from_sums(g, vs, vq, n, vm, vr, t):
    g.e(f"v_mul_f32 v{vm}, {1.0/n!r}, v{vs}")
    g.e(f"v_mul_f32 v{vr}, {1.0/n!r}, v{vq}")
    g.e(f"v_fma_f32 v{vr}, -v{vm}, v{vm}, v{vr}")
    g.e(f"v_max_f32 v{vr}, 0, v{vr}")
    bf16_round(g, vm, t)
    bf16_round(g, vr, t)
    g.e(f"v_add_f32 v{vr}, 0x3727c5ac, v{vr}")
    bf16_round(g, vr, t)
    g.e(f"v_sqrt_f32 v{vr}, v{vr}")
    g.e("s_nop 0")
    bf16_round(g, vr, t)
    g.e(f"v_rcp_f32 v{vr}, v{vr}")
    g.e("s_nop 0")


GK1 = -2.0 * 1.4426950408889634 * 0.7978845608028654
GK2 = GK1 * 0.044715


def gelu_pair(g, x0, x1, vk1, vk2, t):
    assert x1 == x0 + 1 and x0 % 2 == 0 and t % 2 == 0
    k1e, k2e = vk1 & ~1, vk2 & ~1
    s1 = 1 if vk1 & 1 else 0
    s2 = 1 if vk2 & 1 else 0
    X = f"v[{x0}:{x0+1}]"
    Tt = f"v[{t}:{t+1}]"
    g.e(f"v_pk_mul_f32 {Tt}, {X}, {X}")
    g.e(f"v_pk_fma_f32 {Tt}, {Tt}, v[{k2e}:{k2e+1}], v[{k1e}:{k1e+1}] op_sel:[0,{s2},{s1}] op_sel_hi:[1,{s2},{s1}]")
    g.e(f"v_pk_mul_f32 {Tt}, {Tt}, {X}")
    g.e(f"v_exp_f32 v{t}, v{t}")
    g.e(f"v_exp_f32 v{t+1}, v{t+1}")
    g.e("s_nop 0")
    g.e(f"v_pk_add_f32 {Tt}, {Tt}, 1.0 op_sel_hi:[1,0]")
    g.e(f"v_rcp_f32 v{t}, v{t}")
    g.e(f"v_rcp_f32 v{t+1}, v{t+1}")
    g.e("s_nop 0")
    g.e(f"v_pk_mul_f32 {X}, {X}, {Tt}")


import struct
def fhex(x):
    return "0x%08x" % struct.unpack("<I", struct.pack("<f", x))[0]


def k3_kernel():
    kname = "k3_kernel"
    g = G()
    MT, NT, BN, NS = 2, 9, 144, 4
    lda, ldb = 1152, 288
    prologue(g, kname, 256)
    wave_setup(g)
    g.e(f"s_and_b32 s{S_T}, s2, 7")
    g.e(f"s_lshr_b32 s{S_T+1}, s2, 3")
    g.e(f"s_lshr_b32 s{S_M0}, s{S_T}, 1")
    g.e(f"s_lshl_b32 s{S_M0}, s{S_M0}, 2")
    g.e(f"s_and_b32 s{S_T+2}, s{S_T+1}, 3")
    g.e(f"s_add_u32 s{S_M0}, s{S_M0}, s{S_T+2}")
    g.e(f"s_lshl_b32 s{S_M0}, s{S_M0}, 7")
    S_P = S_T + 5
    g.e(f"s_and_b32 s{S_P}, s{S_T}, 1")
    g.e(f"s_lshl_b32 s{S_P}, s{S_P}, 3")
    g.e(f"s_lshr_b32 s{S_T+2}, s{S_T+1}, 2")
    g.e(f"s_add_u32 s{S_P}, s{S_P}, s{S_T+2}")
    g.e(f"s_mul_i32 s{S_N0}, s{S_P}, 288")
    g.e("s_waitcnt lgkmcnt(0)")
    srd(g, S_A, P_WS, H_OFF, H_SZ)
    srd(g, S_B, P_WS, TWIN_OFF, TWIN_SZ)
    srd(g, S_C, P_WS, CS_OFF, CS_SZ)
    srd(g, S_E, P_WS, HST_OFF, HST_SZ)
    srd(g, S_F, P_WS, ST_OFF, ST2_SZ)
    g.e(f"s_cmp_ge_u32 s{S_P}, 8")
    g.e(f"s_mov_b32 s{S_T+1}, {Z1_OFF}")
    g.e(f"s_cselect_b32 s{S_T}, {Z2_OFF}, s{S_T+1}")
    g.e(f"s_add_u32 s{S_O}, s{P_WS}, s{S_T}")
    g.e(f"s_addc_u32 s{S_O+1}, s{P_WS+1}, 0")
    g.e(f"s_and_b32 s{S_O+1}, s{S_O+1}, 0xffff")
    g.e(f"s_mov_b32 s{S_O+2}, {Z_SZ}")
    g.e(f"s_mov_b32 s{S_O+3}, 0x00020000")
    NACC = MT * NT * 4
    vacc = 8
    gm = Gemm(g, MT, NT, BN, NS, ldb, 'lds', vacc + NACC)
    gm.rotw = 0
    S_WR = S_T + 3
    S_CB = S_T + 4
    g.e(f"s_mul_i32 s{S_WR}, s{S_WAVE}, {16*MT}")
    g.e(f"s_add_u32 s{S_WR}, s{S_WR}, s{S_M0}")
    g.e(f"s_mul_i32 s{S_CB}, s{S_P}, {2*165888}")
    gm.setup(1, 2, col0_sgpr=S_CB)
    gm.setup_a(1, 2, lda, S_WR)
    T = 18
    SCR = gm.lds_bytes
    lds_total = SCR + 4 * 4608
    S_RS, S_TI = S_T + 8, S_T + 9
    g.e(f"s_cmp_ge_u32 s{S_P}, 8")
    g.e(f"s_movk_i32 s{S_T+1}, 4608")
    g.e(f"s_cselect_b32 s{S_RS}, 288, s{S_T+1}")
    g.e(f"s_movk_i32 s{S_T+1}, 288")
    g.e(f"s_cselect_b32 s{S_TI}, 589824, s{S_T+1}")
    g.e(f"s_and_b32 s{S_T}, s{S_P}, 7")
    g.e(f"s_lshl_b32 s{S_T+1}, s{S_TI}, 1")
    g.e(f"s_mul_i32 s{S_T}, s{S_T}, s{S_T+1}")
    g.e(f"s_mul_i32 s{S_T+1}, s{S_WR}, s{S_RS}")
    g.e(f"s_add_u32 s{S_T}, s{S_T}, s{S_T+1}")
    v = (gm.vend + 3) // 4 * 4
    vCS = v; v += 36
    vM = v; v += 2
    vR = v; v += 2
    vK = v; v += 2
    vq = v; v += 9
    v = (v + 1) // 2 * 2
    vrw = v; v += 12
    vWr, vRd, vCo = 4, 5, 6
    w = (v + 1) // 2 * 2
    assert w + 8 <= 256, w
    g.e(f"s_lshl_b32 s{S_T+2}, s{S_WAVE}, 8")
    for q in range(9):
        g.e(f"v_add_u32 v{w}, {q*64}, v1")
        g.e(f"v_mul_u32_u24 v{w+1}, 3641, v{w}")
        g.e(f"v_lshrrev_b32 v{w+1}, 16, v{w+1}")
        g.e(f"v_mul_u32_u24 v{w+2}, 18, v{w+1}")
        g.e(f"v_sub_u32 v{w}, v{w}, v{w+2}")
        g.e(f"v_mul_lo_u32 v{w+1}, v{w+1}, s{S_RS}")
        g.e(f"v_lshl_add_u32 v{w}, v{w}, 4, v{w+1}")
        g.e(f"v_add_u32 v{vq+q}, s{S_T}, v{w}")
    g.e(f"s_mul_i32 s{S_T+1}, s{S_WAVE}, 4608")
    g.e(f"s_add_u32 s{S_T+1}, s{S_T+1}, {SCR}")
    g.e(f"v_and_b32 v{w}, 15, v1")
    g.e(f"v_mul_u32_u24 v{w}, 288, v{w}")
    g.e(f"v_lshrrev_b32 v{w+1}, 4, v1")
    g.e(f"v_lshl_add_u32 v{w}, v{w+1}, 3, v{w}")
    g.e(f"v_add_u32 v{vWr}, s{S_T+1}, v{w}")
    g.e(f"v_lshlrev_b32 v{w}, 4, v1")
    g.e(f"v_add_u32 v{vRd}, s{S_T+1}, v{w}")
    g.e(f"v_mov_b32 v{vK}, {fhex(GK1)}")
    g.e(f"v_mov_b32 v{vK+1}, {fhex(GK2)}")

    vS = vrw
    if vS % 2: vS += 1
    vS2 = vS + 4
    assert vS2 % 2 == 0 and vS2 + 8 <= 256
    vP16, vP32 = 2, 3
    g.e(f"v_xor_b32 v{vP16}, 16, v1")
    g.e(f"v_lshlrev_b32 v{vP16}, 2, v{vP16}")
    g.e(f"v_xor_b32 v{vP32}, 32, v1")
    g.e(f"v_lshlrev_b32 v{vP32}, 2, v{vP32}")

    def gelu4(a, mt):
        for p_ in range(2):
            unpack_lo(g, w + 4, a + p_)
            unpack_hi(g, w + 5, a + p_)
            gelu_pair(g, w + 4, w + 5, vK, vK + 1, w)
            g.e(f"v_cvt_pk_bf16_f32 v{a+p_}, v{w+4}, v{w+5}")
            unpack_lo(g, w + 4, a + p_)
            unpack_hi(g, w + 5, a + p_)
            g.e(f"v_pk_add_f32 v[{vS2+4*mt}:{vS2+4*mt+1}], v[{vS2+4*mt}:{vS2+4*mt+1}], v[{w+4}:{w+5}]")
            g.e(f"v_pk_fma_f32 v[{vS2+4*mt+2}:{vS2+4*mt+3}], v[{w+4}:{w+5}], v[{w+4}:{w+5}], v[{vS2+4*mt+2}:{vS2+4*mt+3}]")

    def pieces(ps, base):
        for j, (mt, nt) in enumerate(ps):
            g.e(f"ds_read_b64 v[{base+2*j}:{base+2*j+1}], v{vWr} offset:{mt*16*288 + nt*32}")
        for j, (mt, nt) in enumerate(ps):
            g.e(f"s_waitcnt lgkmcnt({len(ps)-1})")
            gelu4(base + 2 * j, mt)
            g.e(f"ds_write_b64 v{vWr}, v[{base+2*j}:{base+2*j+1}] offset:{mt*16*288 + nt*32}")

    def store_tile(t, base):
        g.e("s_waitcnt lgkmcnt(0)")
        for q in range(9):
            g.e(f"ds_read_b128 v[{base+4*q}:{base+4*q+3}], v{vRd} offset:{q*1024}")
        so = f"s{S_TI}" if t else "0"
        for q in range(9):
            g.e(f"s_waitcnt lgkmcnt({8-q})")
            g.e(f"buffer_store_dwordx4 v[{base+4*q}:{base+4*q+3}], v{vq+q}, s[{S_O}:{S_O+3}], {so} offen")

    def flush_stats(mts, lab):
        g.e(f"s_cmp_lt_u32 s{S_P}, 8")
        g.e(f"s_cbranch_scc1 {lab}")
        for mt in mts:
            g.e(f"v_add_f32 v{vS+2*mt}, v{vS2+4*mt}, v{vS2+4*mt+1}")
            g.e(f"v_add_f32 v{vS+2*mt+1}, v{vS2+4*mt+2}, v{vS2+4*mt+3}")
        xor_reduce(g, [vS + 2 * mt + k_ for mt in mts for k_ in range(2)], w, vP16, vP32)
        g.e(f"v_and_b32 v{w}, 15, v1")
        g.e(f"v_add_u32 v{w}, s{S_WR}, v{w}")
        g.e(f"v_lshlrev_b32 v{w}, 3, v{w}")
        g.e("s_mov_b64 exec, 0xffff")
        for mt in mts:
            g.e(f"buffer_atomic_add_f32 v{vS+2*mt}, v{w}, s[{S_F}:{S_F+3}], 0 offen offset:{mt*128}")
            g.e(f"buffer_atomic_add_f32 v{vS+2*mt+1}, v{w}, s[{S_F}:{S_F+3}], 0 offen offset:{mt*128+4}")
        g.e("s_mov_b64 exec, -1")
        g.lab(lab)

    g.e(f"s_cmp_eq_u32 s{S_ROLE}, 0")
    g.e(f"s_cbranch_scc1 {kname}_comp")
    def grp(i):
        t, ks = i // 9, i % 9
        g.e(f"s_mov_b32 s{S_KA}, {ks*128}")
        g.e(f"s_mov_b32 s{S_KB}, {ks*64*ldb + t*165888}")
        gm.issue(i % NS)
    for j in range(NS):
        grp(j)
    g.e(f"s_waitcnt vmcnt({(NS-1)*gm.G})")
    g.e("s_barrier")
    for i in range(T):
        last = min(i + NS - 1, T - 1)
        g.e(f"s_waitcnt vmcnt({max(last-(i+1),0)*gm.G})")
        g.e("s_barrier")
        if i + NS < T:
            grp(i + NS)
    g.e(f"s_branch {kname}_end")
    g.lab(f"{kname}_comp")
    g.e(f"v_and_b32 v{w}, 15, v1")
    g.e(f"v_add_u32 v{w}, s{S_WR}, v{w}")
    g.e(f"v_mul_u32_u24 v{vCo}, 64, v{w}")
    for mt in range(MT):
        for i in range(4):
            g.e(f"buffer_load_dwordx4 v[{vacc+mt*24+4*i}:{vacc+mt*24+4*i+3}], v{vCo}, s[{S_E}:{S_E+3}], 0 offen offset:{mt*16*64 + 16*i}")
    g.e(f"v_lshrrev_b32 v{w}, 4, v1")
    g.e(f"v_lshlrev_b32 v{w}, 4, v{w}")
    g.e(f"s_lshl_b32 s{S_T}, s{S_N0}, 2")
    g.e(f"v_add_u32 v{vCo}, s{S_T}, v{w}")
    for nt in range(NT):
        g.e(f"buffer_load_dwordx4 v[{vCS+4*nt}:{vCS+4*nt+3}], v{vCo}, s[{S_C}:{S_C+3}], 0 offen offset:{nt*64}")
    g.e("s_waitcnt vmcnt(9)")
    for mt in range(MT):
        b = vacc + mt * 24
        for i in range(1, 8):
            g.e(f"v_add_f32 v{b}, v{b}, v{b+2*i}")
            g.e(f"v_add_f32 v{b+1}, v{b+1}, v{b+2*i+1}")
        ln_from_sums(g, b, b + 1, 576, vM + mt, vR + mt, w)
        g.e(f"v_sub_f32 v{vM+mt}, 0, v{vM+mt}")
    for i in range(NACC):
        g.e(f"v_mov_b32 v{vacc+i}, 0")
    acc = lambda mt, nt: f"v[{vacc+(mt*NT+nt)*4}:{vacc+(mt*NT+nt)*4+3}]"
    g.e("s_barrier")
    for x in gm.reads(0, 0, 0):
        g.e(x)
    if 'stamp' in EXP:
        g.e("s_memrealtime s[92:93]")
    for i in range(T):
        s = i % NS
        g.e("s_waitcnt lgkmcnt(0)")
        gm.phase(0, lambda mt: gm.vA[0] + mt * 4, acc, gm.reads(s, 1, 1))
        g.e(f"s_waitcnt lgkmcnt(0)")
        g.e("s_barrier")
        gm.phase(1, lambda mt: gm.vA[1] + mt * 4, acc, gm.reads((s + 1) % NS, 0, 0) if i + 1 < T else [])
        if i % 9 == 8:
            t = i // 9
            g.e("s_nop 7")
            g.e("s_nop 1")
            if t == 0:
                g.e("s_waitcnt vmcnt(0)")
            else:
                g.e("s_waitcnt vmcnt(0)")
            for k_ in range(8):
                g.e(f"v_mov_b32 v{vS2+k_}, 0")
            so = f"s{S_TI}" if t else "0"
            for mt in range(MT):
                for nt in range(NT):
                    a = vacc + (mt * NT + nt) * 4
                    for r in (0, 2):
                        g.e(f"v_pk_fma_f32 v[{a+r}:{a+r+1}], v[{vCS+4*nt+r}:{vCS+4*nt+r+1}], v[{vM}:{vM+1}], v[{a+r}:{a+r+1}] op_sel:[0,{mt},0] op_sel_hi:[1,{mt},1]")
                    for r in (0, 2):
                        g.e(f"v_pk_mul_f32 v[{a+r}:{a+r+1}], v[{a+r}:{a+r+1}], v[{vR}:{vR+1}] op_sel:[0,{mt}] op_sel_hi:[1,{mt}]")
                    g.e(f"v_cvt_pk_bf16_f32 v{a}, v{a}, v{a+1}")
                    g.e(f"v_cvt_pk_bf16_f32 v{a+1}, v{a+2}, v{a+3}")
                    gelu4(a, mt)
                    g.e(f"ds_write_b64 v{vWr}, v[{a}:{a+1}] offset:{nt*32}")
                g.e("s_waitcnt lgkmcnt(0)")
                base = vacc + mt * 36
                for q in range(5):
                    if q == 4:
                        g.e("s_mov_b32 exec_hi, 0")
                    g.e(f"ds_read_b128 v[{base+4*q}:{base+4*q+3}], v{vRd} offset:{q*1024}")
                    if q == 4:
                        g.e("s_mov_b32 exec_hi, -1")
                for q in range(5):
                    g.e(f"s_waitcnt lgkmcnt({4-q})")
                    if q == 4:
                        g.e("s_mov_b32 exec_hi, 0")
                    g.e(f"buffer_store_dwordx4 v[{base+4*q}:{base+4*q+3}], v{vq+q}, s[{S_O}:{S_O+3}], {so} offen" + ("" if mt == 0 else ""))
                    if q == 4:
                        g.e("s_mov_b32 exec_hi, -1")
                if mt == 0:
                    g.e(f"s_lshl_b32 s{S_T}, s{S_RS}, 4")
                    for q in range(5):
                        g.e(f"v_add_u32 v{vq+q}, s{S_T}, v{vq+q}")
                else:
                    for q in range(5):
                        g.e(f"v_subrev_u32 v{vq+q}, s{S_T}, v{vq+q}")
            if t == 0:
                for nt in range(NT):
                    g.e(f"buffer_load_dwordx4 v[{vCS+4*nt}:{vCS+4*nt+3}], v{vCo}, s[{S_C}:{S_C+3}], 0 offen offset:{nt*64+576}")
            flush_stats([0, 1], f"{kname}_fs{t}")
            if t == 0:
                g.e("s_nop 1")
                for k_ in range(NACC):
                    g.e(f"v_mov_b32 v{vacc+k_}, 0")
    if 'stamp' in EXP:
        g.e("s_memrealtime s[94:95]")
    epilogue(g, kname)
    return g.text(), descriptor(kname, 256), lds_total


def kn_kernel():
    kname = "kn_kernel"
    g = G()
    prologue(g, kname, 256)
    g.e("s_waitcnt lgkmcnt(0)")
    srd(g, S_A, P_WS, Z2_OFF, Z_SZ)
    srd(g, S_O, P_WS, Z2N_OFF, Z_SZ)
    srd(g, S_F, P_WS, ST_OFF, ST2_SZ)
    g.e(f"s_mul_i32 s{S_M0}, s2, 36864")
    g.e(f"s_and_b32 s{S_T}, s2, 15")
    g.e(f"s_lshl_b32 s{S_T}, s{S_T}, 10")
    for q in range(9):
        g.e(f"v_add_u32 v2, {q*256}, v0")
        g.e(f"v_lshlrev_b32 v{10+q}, 4, v2")
        g.e(f"buffer_load_dwordx4 v[{40+4*q}:{43+4*q}], v{10+q}, s[{S_A}:{S_A+3}], s{S_M0} offen")
        g.e(f"v_mul_u32_u24 v3, 3641, v2")
        g.e(f"v_lshrrev_b32 v3, 16, v3")
        g.e(f"v_lshlrev_b32 v3, 3, v3")
        g.e(f"buffer_load_dwordx2 v[{20+2*q}:{21+2*q}], v3, s[{S_F}:{S_F+3}], s{S_T} offen")
    for c in range(2304):
        assert (c * 3641) >> 16 == c // 18
    for q in range(9):
        g.e(f"s_waitcnt vmcnt({16-q})")
        a = 20 + 2 * q
        ln_from_sums(g, a, a + 1, 2304, 6, 7, 4)
        r = 40 + 4 * q
        for d in range(4):
            unpack_lo(g, 2, r + d)
            unpack_hi(g, 3, r + d)
            g.e(f"v_sub_f32 v2, v2, v6")
            g.e(f"v_sub_f32 v3, v3, v6")
            g.e(f"v_cvt_pk_bf16_f32 v{r+d}, v2, v3")
            unpack_lo(g, 2, r + d)
            unpack_hi(g, 3, r + d)
            g.e(f"v_mul_f32 v2, v2, v7")
            g.e(f"v_mul_f32 v3, v3, v7")
            g.e(f"v_cvt_pk_bf16_f32 v{r+d}, v2, v3")
        g.e(f"buffer_store_dwordx4 v[{r}:{r+3}], v{10+q}, s[{S_O}:{S_O+3}], s{S_M0} offen")
    epilogue(g, kname)
    return g.text(), descriptor(kname, 80), 0


def k2_kernel():
    kname = "k2_kernel"
    g = G()
    NS = 4
    prologue(g, kname, 256)
    g.e("v_and_b32 v1, 63, v0")
    g.e("v_lshrrev_b32 v2, 6, v0")
    g.e("s_nop 0")
    S_W8 = 73
    g.e(f"v_readfirstlane_b32 s{S_W8}, v2")
    g.e(f"s_and_b32 s{S_WAVE}, s{S_W8}, 3")
    g.e(f"s_and_b32 s{S_T}, s2, 7")
    g.e(f"s_lshr_b32 s{S_T+1}, s2, 3")
    g.e(f"s_lshl_b32 s{S_M0}, s{S_T}, 3")
    g.e(f"s_lshr_b32 s{S_T+2}, s{S_T+1}, 2")
    g.e(f"s_add_u32 s{S_M0}, s{S_M0}, s{S_T+2}")
    S_CBI = S_T + 5
    g.e(f"s_and_b32 s{S_CBI}, s{S_T+1}, 3")
    g.e(f"s_mul_i32 s{S_N0}, s{S_CBI}, 144")
    g.e("s_waitcnt lgkmcnt(0)")
    srd(g, S_A, P_WS, PHIQ_OFF, PHIQ_SZ)
    srd(g, S_B, P_WS, TWO_OFF, TWO_SZ)
    srd(g, S_C, P_WS, ACC_OFF, ACC_SZ)
    srd(g, S_O, P_WS, H_OFF, H_SZ)
    srd(g, S_E, P_X, 0, H_SZ)
    srd(g, S_F, P_WS, HST_OFF, HST_SZ)
    OST = 1168
    OB = 0
    gm = Gemm(g, 1, 5, 144, NS, 288, 'ext', 8, lds_base=32 * OST)
    gm.rotw = 1
    S_CB = S_T + 4
    g.e(f"s_mul_i32 s{S_CB}, s{S_CBI}, 165888")
    gm.setup(1, 2, col0_sgpr=S_CB)
    g.e(f"s_lshl_b32 s{S_CB}, s{S_N0}, 1")
    S_NH = S_T + 6
    g.e(f"s_lshr_b32 s{S_NH}, s{S_WAVE}, 1")
    g.e(f"s_lshl_b32 s{S_T}, s{S_NH}, 7")
    for s_ in range(NS):
        g.e(f"v_add_u32 v{gm.vBaddr+s_}, s{S_T}, v{gm.vBaddr+s_}")
    g.e(f"s_mov_b32 s{S_KA}, 0")
    g.e(f"s_mov_b32 s{S_KB}, 0")
    v = 236
    vL16 = v; v += 1
    vL8 = v; v += 1
    vL8k = v; v += 1
    vOW = v; v += 1
    vAr = v; v += 1
    w = 242
    vZ = 250
    vF = gm.vB[0]
    vD = vF + 192
    assert vD + 12 <= 232
    vacc = gm.vend + 24
    g.e(f"v_lshlrev_b32 v{vL16}, 4, v1")
    g.e(f"v_and_b32 v{vL8}, 15, v1")
    g.e(f"v_lshlrev_b32 v{vL8}, 3, v{vL8}")
    g.e(f"v_lshlrev_b32 v{vL8k}, 3, v1")
    g.e(f"v_and_b32 v{w}, 15, v1")
    g.e(f"v_mul_u32_u24 v{w}, {OST}, v{w}")
    g.e(f"v_lshrrev_b32 v{w+1}, 4, v1")
    g.e(f"v_lshl_add_u32 v{vOW}, v{w+1}, 3, v{w}")
    g.e(f"s_mul_i32 s{S_T}, s{S_W8}, {4*36}")
    g.e(f"v_add_u32 v{vOW}, s{S_T}, v{vOW}")
    g.e(f"v_lshl_add_u32 v{vAr}, v{w+1}, 4, v{w}")
    g.e(f"s_and_b32 s{S_T}, s{S_WAVE}, 1")
    g.e(f"s_mul_i32 s{S_T}, s{S_T}, {16*OST}")
    g.e(f"v_add_u32 v{vAr}, s{S_T}, v{vAr}")
    S_PH = S_T + 7
    S_KV = S_T + 8
    g.e(f"s_mul_i32 s{S_PH}, s{S_M0}, {2*32*1152}")
    g.e(f"s_mul_i32 s{S_T}, s{S_W8}, {4*1152}")
    g.e(f"s_add_u32 s{S_PH}, s{S_PH}, s{S_T}")
    g.e(f"s_mul_i32 s{S_KV}, s{S_W8}, {4*3072}")
    g.e(f"s_cmp_ge_u32 s{S_W8}, 4")
    g.e(f"s_cbranch_scc1 {kname}_noring")
    for j in range(NS):
        gm.issue(j)
    g.lab(f"{kname}_noring")
    for h in range(4):
        b = vF + h * 24
        for pp in range(3):
            g.e(f"buffer_load_dwordx4 v[{b+4*pp}:{b+4*pp+3}], v{vL16}, s[{S_C}:{S_C+3}], s{S_KV} offen offset:{pp*1024}")
        for mt in range(2):
            g.e(f"s_add_u32 s{S_T}, s{S_PH}, {mt*32*1152}")
            r = b + 12 + 6 * mt
            g.e(f"buffer_load_dwordx4 v[{r}:{r+3}], v{vL16}, s[{S_A}:{S_A+3}], s{S_T} offen")
            g.e(f"buffer_load_dwordx2 v[{r+4}:{r+5}], v{vL8}, s[{S_A}:{S_A+3}], s{S_T} offen offset:1024")
        g.e(f"s_add_u32 s{S_KV}, s{S_KV}, 3072")
        g.e(f"s_add_u32 s{S_PH}, s{S_PH}, 1152")
    def mf(h, db):
        b = vF + h * 24
        z = vZ
        g.e(f"s_waitcnt vmcnt({(3-h)*7})")
        for kc in range(3):
            t = kc * 2 + 1
            g.e(f"v_mov_b32_dpp v{z+2*kc}, v{b+2*t} row_newbcast:2 row_mask:0xf bank_mask:0xf")
            g.e(f"v_mov_b32_dpp v{z+2*kc+1}, v{b+2*t+1} row_newbcast:2 row_mask:0xf bank_mask:0xf")
        g.e("s_nop 1")
        for kc in range(3):
            for mt in range(2):
                pb = b + 12 + 6 * mt + 2 * kc
                for o_, aop in enumerate([b + 2 * (kc * 2), b + 2 * (kc * 2 + 1), z + 2 * kc]):
                    d = db + 12 * mt + 4 * o_
                    c = "0" if kc == 0 else f"v[{d}:{d+3}]"
                    g.e(f"v_mfma_f32_16x16x16_bf16 v[{d}:{d+3}], v[{aop}:{aop+1}], v[{pb}:{pb+1}], {c}")
    def fin(h, db):
        for mt in range(2):
            D = db + 12 * mt
            g.e(f"v_cvt_pk_bf16_f32 v{w}, v{D+8}, v{D+8}")
            g.e(f"v_lshlrev_b32 v{D+8}, 16, v{w}")
            g.e(f"v_add_f32 v{D+8}, 0x358637bd, v{D+8}")
            g.e(f"v_cvt_pk_bf16_f32 v{w}, v{D+8}, v{D+8}")
            g.e(f"v_lshlrev_b32 v{D+8}, 16, v{w}")
            g.e(f"v_rcp_f32 v{D+8}, v{D+8}")
            for p_ in range(3):
                g.e(f"v_cvt_pk_bf16_f32 v{w+1+p_}, v{D+2*p_}, v{D+2*p_+1}")
            for p_ in range(3):
                unpack_lo(g, D + 2 * p_, w + 1 + p_)
                unpack_hi(g, D + 2 * p_ + 1, w + 1 + p_)
            for r in range(6):
                g.e(f"v_mul_f32 v{D+r}, v{D+r}, v{D+8}")
            for p_ in range(3):
                g.e(f"v_cvt_pk_bf16_f32 v{D+9+p_}, v{D+2*p_}, v{D+2*p_+1}")
            off = mt * 16 * OST + 36 * h
            g.e(f"ds_write_b32 v{vOW}, v{D+9} offset:{off}")
            g.e(f"ds_write_b32 v{vOW}, v{D+10} offset:{off+4}")
            g.e("s_mov_b64 exec, 0xffff")
            g.e(f"ds_write_b32 v{vOW}, v{D+11} offset:{off+32}")
            g.e("s_mov_b64 exec, -1")
    DB0 = 212
    def dbuf(h):
        return DB0 if h == 0 else vF + (h - 1) * 24
    mf(0, dbuf(0))
    for h in range(4):
        if h + 1 < 4:
            mf(h + 1, dbuf(h + 1))
        else:
            g.e("s_nop 7")
            g.e("s_nop 3")
        fin(h, dbuf(h))
    if 'stamp' in EXP:
        g.e("s_memrealtime s[92:93]")
    g.e(f"s_cmp_lt_u32 s{S_W8}, 4")
    g.e(f"s_cbranch_scc1 {kname}_gemm")
    g.e("s_waitcnt lgkmcnt(0)")
    g.e("s_barrier")
    g.e(f"s_branch {kname}_end")
    g.lab(f"{kname}_gemm")
    w = 120
    for i in range(20):
        g.e(f"v_mov_b32 v{vacc+i}, 0")
    vX = (gm.vend + 3) // 4 * 4
    vXo = w + 8
    g.e(f"s_and_b32 s{S_T}, s{S_WAVE}, 1")
    g.e(f"s_lshl_b32 s{S_T}, s{S_T}, 4")
    g.e(f"s_lshl_b32 s{S_T+1}, s{S_M0}, 5")
    g.e(f"s_add_u32 s{S_T}, s{S_T}, s{S_T+1}")
    g.e(f"v_and_b32 v{w}, 15, v1")
    g.e(f"v_add_u32 v{w}, s{S_T}, v{w}")
    g.e(f"v_mov_b32 v{w+9}, v{w}")
    g.e(f"v_mul_u32_u24 v{w}, 1152, v{w}")
    g.e(f"v_lshrrev_b32 v{w+1}, 4, v1")
    g.e(f"v_lshl_add_u32 v{w}, v{w+1}, 3, v{w}")
    g.e(f"s_lshl_b32 s{S_T+1}, s{S_NH}, 7")
    g.e(f"s_add_u32 s{S_T+1}, s{S_T+1}, s{S_CB}")
    g.e(f"v_add_u32 v{vXo}, s{S_T+1}, v{w}")
    for nt in range(5):
        g.e(f"buffer_load_dwordx2 v[{vX+2*nt}:{vX+2*nt+1}], v{vXo}, s[{S_E}:{S_E+3}], 0 offen offset:{32*nt}")
    vAf = vX + 12
    acc = lambda mt, nt: f"v[{vacc+nt*4}:{vacc+nt*4+3}]"
    def rd(i, ks, dst):
        r = vAf + dst * 4
        return [f"ds_read_b128 v[{r}:{r+3}], v{vAr} offset:{(i*64+ks*32)*2}"] + gm.reads(i % NS, ks, dst)
    T = 9
    g.e(f"s_waitcnt vmcnt({(NS-1)*gm.D + 5}) lgkmcnt(0)")
    g.e("s_barrier")
    if 'dbgo' in EXP:
        g.e("s_cmp_lg_u32 s2, 0")
        g.e(f"s_cbranch_scc1 {kname}_nodbg")
        srd(g, S_A, P_WS, 0x3C00000, 65536)
        for q in range(37):
            g.e(f"v_lshlrev_b32 v{w}, 2, v0")
            g.e(f"ds_read_b32 v{w+1}, v{w} offset:{q*1024}")
            g.e("s_waitcnt lgkmcnt(0)")
            g.e(f"buffer_store_dword v{w+1}, v{w}, s[{S_A}:{S_A+3}], 0 offen offset:0")
            g.e(f"s_add_u32 s{S_A}, s{S_A}, 1024")
            g.e(f"s_addc_u32 s{S_A+1}, s{S_A+1}, 0")
        g.lab(f"{kname}_nodbg")
    for x in rd(0, 0, 0):
        g.e(x)
    issued = NS
    for i in range(T):
        g.e("s_waitcnt lgkmcnt(0)")
        gm.phase(0, lambda mt: vAf, acc, rd(i, 1, 1))
        if i + 1 < T:
            young = (issued - 1 - (i + 1)) * gm.D + (5 if i + 1 <= NS - 1 else 0)
            g.e(f"s_waitcnt vmcnt({young}) lgkmcnt(0)")
        else:
            g.e("s_waitcnt lgkmcnt(0)")
        g.e("s_barrier")
        if issued < T:
            gm.issue(issued % NS)
            issued += 1
        gm.phase(1, lambda mt: vAf + 4, acc, rd(i + 1, 0, 0) if i + 1 < T else [])
    g.e("s_waitcnt vmcnt(0)")
    if 'stamp' in EXP:
        g.e("s_memrealtime s[94:95]")
    g.e("s_nop 7")
    vS = w + 10
    g.e(f"v_mov_b32 v{vS}, 0")
    g.e(f"v_mov_b32 v{vS+1}, 0")
    g.e(f"s_cmp_eq_u32 s{S_NH}, 1")
    g.e(f"s_cselect_b32 s{S_T}, 0, 1.0")
    for nt in range(5):
        a = vacc + 4 * nt
        for p_ in range(2):
            g.e(f"v_cvt_pk_bf16_f32 v{w}, v{a+2*p_}, v{a+2*p_+1}")
            unpack_lo(g, w + 1, w)
            unpack_hi(g, w + 2, w)
            unpack_lo(g, w + 3, vX + 2 * nt + p_)
            unpack_hi(g, w + 4, vX + 2 * nt + p_)
            g.e(f"v_add_f32 v{w+1}, v{w+1}, v{w+3}")
            g.e(f"v_add_f32 v{w+2}, v{w+2}, v{w+4}")
            g.e(f"v_cvt_pk_bf16_f32 v{vX+2*nt+p_}, v{w+1}, v{w+2}")
            unpack_lo(g, w + 1, vX + 2 * nt + p_)
            unpack_hi(g, w + 2, vX + 2 * nt + p_)
            if nt == 0:
                g.e(f"v_mul_f32 v{w+1}, s{S_T}, v{w+1}")
                g.e(f"v_mul_f32 v{w+2}, s{S_T}, v{w+2}")
            g.e(f"v_add_f32 v{vS}, v{vS}, v{w+1}")
            g.e(f"v_fmac_f32 v{vS+1}, v{w+1}, v{w+1}")
            g.e(f"v_add_f32 v{vS}, v{vS}, v{w+2}")
            g.e(f"v_fmac_f32 v{vS+1}, v{w+2}, v{w+2}")
        g.e(f"buffer_store_dwordx2 v[{vX+2*nt}:{vX+2*nt+1}], v{vXo}, s[{S_O}:{S_O+3}], 0 offen offset:{32*nt}")
    g.e(f"v_xor_b32 v{w+2}, 16, v1")
    g.e(f"v_lshlrev_b32 v{w+2}, 2, v{w+2}")
    g.e(f"v_xor_b32 v{w+3}, 32, v1")
    g.e(f"v_lshlrev_b32 v{w+3}, 2, v{w+3}")
    xor_reduce(g, [vS, vS + 1], w, w + 2, w + 3)
    g.e(f"s_lshl_b32 s{S_T}, s{S_CBI}, 1")
    g.e(f"s_add_u32 s{S_T}, s{S_T}, s{S_NH}")
    g.e(f"s_lshl_b32 s{S_T}, s{S_T}, 3")
    g.e(f"v_lshlrev_b32 v{w}, 6, v{w+9}")
    g.e(f"v_add_u32 v{w}, s{S_T}, v{w}")
    g.e("s_mov_b64 exec, 0xffff")
    g.e(f"buffer_store_dwordx2 v[{vS}:{vS+1}], v{w}, s[{S_F}:{S_F+3}], 0 offen")
    g.e("s_mov_b64 exec, -1")
    epilogue(g, kname)
    return g.text(), descriptor(kname, 256), 32 * OST + gm.lds_bytes


LOG2E = 1.4426950408889634


def retile_jobs(g):
    NTH = 49152
    g.e(f"s_mul_i32 s{S_T}, s2, 192")
    g.e(f"v_add_u32 v2, s{S_T}, v7")

    def map_tile(rowc, tilec, tilebytes, rowbytes):
        def f(vi):
            divmod_const(g, vi, rowc, 5, 7, S_T)
            divmod_const(g, 7, tilec, 6, 24, S_T)
            g.e(f"s_mov_b32 s{S_T}, {tilebytes}")
            g.e(f"v_mul_lo_u32 v6, v6, s{S_T}")
            g.e(f"v_mul_u32_u24 v5, {rowbytes}, v5")
            g.e("v_add_u32 v6, v6, v5")
            g.e("v_lshl_add_u32 v6, v24, 4, v6")
        return f
    jobs = [(P_WO, 576 * 1152, TWO_OFF, TWO_SZ, 576 * 72, map_tile(72, 18, 165888, 288), S_B, S_C),
            (P_WIN, 576 * 9216, TWIN_OFF, TWIN_SZ, 576 * 576, map_tile(576, 18, 165888, 288), 76, 80),
            (P_WOUT, 2304 * 1152, TWOUT_OFF, TWOUT_SZ, 2304 * 72, map_tile(72, 9, 368640, 160), 84, 88)]
    plan = []
    vi, vd = 28, 48
    for (ptr, ssz, doff, dsz, n, mp, ss, sd) in jobs:
        srd(g, ss, ptr, 0, ssz)
        srd(g, sd, P_WS, doff, dsz)
        nj = (n + NTH - 1) // NTH
        for j in range(nj):
            g.e(f"v_add_u32 v{vi}, {NTH*j}, v2")
            g.e(f"v_lshlrev_b32 v6, 4, v{vi}")
            g.e(f"buffer_load_dwordx4 v[{vd}:{vd+3}], v6, s[{ss}:{ss+3}], 0 offen")
            plan.append((vi, vd, sd, mp, n, (j + 1) * NTH > n))
            vi += 1
            vd += 4
    for (vi_, vd_, sd, mp, n, partial) in plan:
        mp(vi_)
        if partial:
            g.e(f"v_cmp_gt_u32 vcc, {n}, v{vi_}")
            g.e("v_mov_b32 v7, 0x40000000")
            g.e("s_nop 0")
            g.e("v_cndmask_b32 v6, v7, v6, vcc")
        g.e(f"v_mov_b32 v{vi_}, v6")
    nl = len(plan)
    for k_, (vi_, vd_, sd, mp, n, partial) in enumerate(plan):
        g.e(f"s_waitcnt vmcnt({nl-1})")
        g.e(f"buffer_store_dwordx4 v[{vd_}:{vd_+3}], v{vi_}, s[{sd}:{sd+3}], 0 offen")
    srd(g, S_A, P_WS, ST_OFF, ST2_SZ)
    for i in range(4):
        g.e(f"v_mov_b32 v{8+i}, 0")
    g.e("v_lshlrev_b32 v6, 4, v2")
    g.e(f"buffer_store_dwordx4 v[8:11], v6, s[{S_A}:{S_A+3}], 0 offen")


def k1_kernel():
    kname = "k1_kernel"
    g = G()
    MT, NT, BN, NS, T = 4, 5, 80, 3, 9
    prologue(g, kname, 256)
    wave_setup(g)
    S_H, S_RB = S_T + 5, S_T + 6
    g.e(f"s_and_b32 s{S_RB}, s2, 7")
    g.e(f"s_lshr_b32 s{S_H}, s2, 3")
    g.e(f"s_lshl_b32 s{S_M0}, s{S_RB}, 8")
    g.e("s_waitcnt lgkmcnt(0)")
    srd(g, S_A, P_X, 0, H_SZ)
    srd(g, S_B, P_WQKV, 0, 576 * 3456)
    srd(g, S_C, P_WPHI, 0, 32 * 648)
    srd(g, S_O, P_WS, PHIQ_OFF, PHIQ_SZ)
    srd(g, S_E, P_WS, KV3_OFF, KV3_SZ)
    srd(g, S_F, P_WS, ACC_OFF, ACC_SZ)
    vacc = 8
    vcs = vacc + 80
    vrs = vcs + 20
    vsq = vrs + 16
    vone = vsq + 16
    LB = 10496
    gm = Gemm(g, MT, NT, BN, NS, 3456, 'lds', vone + 4, lds_base=LB)
    assert gm.vend <= 256
    gm.rotw = 0
    S_WR, S_CB = S_T + 3, S_T + 4
    g.e(f"s_lshl_b32 s{S_WR}, s{S_WAVE}, 6")
    g.e(f"s_add_u32 s{S_WR}, s{S_WR}, s{S_M0}")
    g.e(f"s_mul_i32 s{S_CB}, s{S_H}, 36")

    def colmap(g, vc, t1, t3):
        g.e(f"v_cmp_eq_u32 vcc, 9, v{vc}")
        g.e("s_nop 1")
        g.e(f"v_cndmask_b32 v{vc}, v{vc}, 0, vcc")
        g.e(f"v_mul_u32_u24 v{t1}, 21846, v{vc}")
        g.e(f"v_lshrrev_b32 v{t1}, 16, v{t1}")
        g.e(f"v_mul_u32_u24 v{t3}, 3, v{t1}")
        g.e(f"v_sub_u32 v{vc}, v{vc}, v{t3}")
        g.e(f"v_lshlrev_b32 v{vc}, 4, v{vc}")
        g.e(f"v_mul_u32_u24 v{t1}, 1152, v{t1}")
        g.e(f"v_add_u32 v{vc}, v{vc}, v{t1}")
    for c in range(9):
        assert (c * 21846) >> 16 == c // 3
    gm.setup(1, 2, colmap=colmap, col0_sgpr=S_CB)
    gm.setup_a(1, 2, 1152, S_WR)
    RING = gm.lds_bytes
    QS = 136
    WB = 0
    lds_total = LB + RING
    g.e(f"s_cmp_eq_u32 s{S_ROLE}, 0")
    g.e(f"s_cbranch_scc1 {kname}_comp")
    def grp(i):
        g.e(f"s_mov_b32 s{S_KA}, {i*128}")
        g.e(f"s_mov_b32 s{S_KB}, {i*64*3456}")
        gm.issue(i % NS)
    for j in range(NS):
        grp(j)
    g.e(f"s_waitcnt vmcnt({(NS-1)*gm.G})")
    g.e("s_barrier")
    for i in range(T):
        last = min(i + NS - 1, T - 1)
        g.e(f"s_waitcnt vmcnt({max(last-(i+1),0)*gm.G})")
        g.e("s_barrier")
        if i + NS < T:
            grp(i + NS)
    g.e("s_barrier")
    g.e("v_and_b32 v7, 255, v0")
    g.e(f"s_cmp_eq_u32 s{S_WAVE}, 3")
    g.e(f"s_cbranch_scc1 {kname}_cs")
    retile_jobs(g)
    g.e(f"s_branch {kname}_end")
    g.lab(f"{kname}_cs")
    colsum_job(g, kname, 0)
    g.e(f"s_branch {kname}_end")
    g.lab(f"{kname}_comp")
    g.e(f"s_cmp_lg_u32 s{S_WAVE}, 0")
    g.e(f"s_cbranch_scc1 {kname}_now")
    g.e(f"s_mul_i32 s{S_T+1}, s{S_H}, 648")
    g.e("v_and_b32 v2, 15, v1")
    g.e("v_lshrrev_b32 v3, 4, v1")
    g.e("v_lshlrev_b32 v3, 2, v3")
    g.e("v_mov_b32 v7, 0x40000000")
    opn = 0
    for S_, base in ((0, 0), (1, 24)):
        for ch in range(2):
            tl = ch + S_
            for ft in range(2):
                for j in range(4):
                    r = vacc + opn * 4 + j
                    g.e(f"v_add_u32 v4, {16*tl + j - base}, v3")
                    g.e(f"v_add_u32 v5, {16*ft}, v2")
                    g.e(f"v_mul_u32_u24 v6, 18, v4")
                    g.e(f"v_add_u32 v6, v6, v5")
                    g.e(f"v_lshlrev_b32 v6, 1, v6")
                    g.e(f"v_cmp_gt_u32 vcc, 18, v4")
                    g.e(f"v_cmp_gt_u32 s[{S_T+8}:{S_T+9}], 18, v5")
                    g.e(f"s_and_b64 vcc, vcc, s[{S_T+8}:{S_T+9}]")
                    g.e(f"v_cndmask_b32 v6, v7, v6, vcc")
                    g.e(f"buffer_load_ushort v{r}, v6, s[{S_C}:{S_C+3}], s{S_T+1} offen")
                opn += 1
    g.e("s_waitcnt vmcnt(0)")
    g.e("v_lshlrev_b32 v2, 3, v1")
    for o_ in range(8):
        r = vacc + o_ * 4
        g.e(f"v_lshl_or_b32 v{r}, v{r+1}, 16, v{r}")
        g.e(f"v_lshl_or_b32 v{r+1}, v{r+3}, 16, v{r+2}")
        g.e(f"ds_write_b64 v2, v[{r}:{r+1}] offset:{o_*512}")
    for i in range(4):
        g.e(f"v_mov_b32 v{vacc+i}, 0")
    g.e("v_lshlrev_b32 v2, 4, v1")
    for i in range(7):
        g.e(f"ds_write_b128 v2, v[{vacc}:{vacc+3}] offset:{4096 + i*1024 if i < 6 else 4096 + 5376}")
    g.e("s_waitcnt lgkmcnt(0)")
    g.lab(f"{kname}_now")
    for i in range(80 + 20 + 32):
        g.e(f"v_mov_b32 v{vacc+i}, 0")
    for i in range(4):
        g.e(f"v_mov_b32 v{vone+i}, 0x3f803f80")
    acc = lambda mt, nt: f"v[{vacc+(mt*5+nt)*4}:{vacc+(mt*5+nt)*4+3}]"
    def extra(cur):
        for nt in range(5):
            b = gm.vB[cur] + nt * 4
            c = f"v[{vcs+4*nt}:{vcs+4*nt+3}]"
            g.e(f"v_mfma_f32_16x16x32_bf16 {c}, v[{b}:{b+3}], v[{vone}:{vone+3}], {c}")
        for mt in range(4):
            a = gm.vA[cur] + mt * 4
            c = f"v[{vrs+4*mt}:{vrs+4*mt+3}]"
            g.e(f"v_mfma_f32_16x16x32_bf16 {c}, v[{vone}:{vone+3}], v[{a}:{a+3}], {c}")
            c = f"v[{vsq+4*mt}:{vsq+4*mt+3}]"
            g.e(f"v_mfma_f32_16x16x32_bf16 {c}, v[{a}:{a+3}], v[{a}:{a+3}], {c}")
    g.e("s_barrier")
    for x in gm.reads(0, 0, 0):
        g.e(x)
    for i in range(T):
        s_ = i % NS
        g.e("s_waitcnt lgkmcnt(0)")
        gm.phase(0, lambda mt: gm.vA[0] + 4 * mt, acc, gm.reads(s_, 1, 1))
        extra(0)
        g.e(f"s_waitcnt lgkmcnt(0)")
        g.e("s_barrier")
        gm.phase(1, lambda mt: gm.vA[1] + 4 * mt, acc, gm.reads((s_ + 1) % NS, 0, 0) if i + 1 < T else [])
        extra(1)
    if 'stamp' in EXP:
        g.e("s_memrealtime s[92:93]")
    g.e("s_barrier")
    vt_ = gm.vB[0]
    g.e("v_and_b32 v2, 15, v1")
    g.e("v_lshrrev_b32 v3, 2, v2")
    g.e("v_lshl_add_u32 v3, v3, 4, v2")
    g.e("v_lshlrev_b32 v3, 2, v3")
    g.e("v_and_b32 v4, 3, v1")
    g.e("s_nop 4")
    for mt in range(4):
        q0 = vsq + 4 * mt
        g.e("v_cmp_eq_u32 vcc, 1, v4")
        g.e("s_nop 1")
        g.e(f"v_cndmask_b32 v{vt_+mt}, v{q0}, v{q0+1}, vcc")
        g.e("v_cmp_eq_u32 vcc, 2, v4")
        g.e("s_nop 1")
        g.e(f"v_cndmask_b32 v{vt_+mt}, v{vt_+mt}, v{q0+2}, vcc")
        g.e("v_cmp_eq_u32 vcc, 3, v4")
        g.e("s_nop 1")
        g.e(f"v_cndmask_b32 v{vt_+mt}, v{vt_+mt}, v{q0+3}, vcc")
    for mt in range(4):
        g.e(f"ds_bpermute_b32 v{vt_+4+mt}, v3, v{vt_+mt}")
    g.e("s_waitcnt lgkmcnt(0)")
    for mt in range(4):
        ln_from_sums(g, vrs + 4 * mt, vt_ + 4 + mt, 576, vt_ + 8 + 2 * mt, vt_ + 9 + 2 * mt, 5)
        g.e(f"v_sub_f32 v{vt_+8+2*mt}, 0, v{vt_+8+2*mt}")
    vmr = vt_ + 8
    for mt in range(4):
        for t in range(5):
            a = vacc + 4 * (mt * 5 + t)
            for r in (0, 2):
                g.e(f"v_pk_fma_f32 v[{a+r}:{a+r+1}], v[{vcs+4*t+r}:{vcs+4*t+r+1}], v[{vmr+2*mt}:{vmr+2*mt+1}], v[{a+r}:{a+r+1}] op_sel:[0,0,0] op_sel_hi:[1,0,1]")
            for r in (0, 2):
                g.e(f"v_pk_mul_f32 v[{a+r}:{a+r+1}], v[{a+r}:{a+r+1}], v[{vmr+2*mt}:{vmr+2*mt+1}] op_sel:[0,1] op_sel_hi:[1,1]")
            g.e(f"v_cvt_pk_bf16_f32 v{a}, v{a}, v{a+1}")
            g.e(f"v_cvt_pk_bf16_f32 v{a+1}, v{a+2}, v{a+3}")
    vWo = vcs
    g.e("v_lshlrev_b32 v2, 3, v1")
    for o_ in range(8):
        g.e(f"ds_read_b64 v[{vWo+2*o_}:{vWo+2*o_+1}], v2 offset:{o_*512}")
    g.e(f"s_mul_i32 s{S_T+2}, s{S_WAVE}, {64*160}")
    g.e(f"s_add_u32 s{S_T+2}, s{S_T+2}, {LB + 36864}")
    vz = vrs
    for i in range(4):
        g.e(f"v_mov_b32 v{vz+i}, 0")
    g.e("v_lshlrev_b32 v3, 4, v1")
    g.e(f"v_add_u32 v3, s{S_T+2}, v3")
    for i in range(10):
        g.e(f"ds_write_b128 v3, v[{vz}:{vz+3}] offset:{i*1024}")
    g.e("s_waitcnt lgkmcnt(0)")
    vPD = 144
    for mt in range(4):
        for S_ in range(2):
            for ft in range(2):
                d = vPD + ((mt * 2 + S_) * 2 + ft) * 4
                for ch in range(2):
                    tl = ch + S_
                    pa = vacc + 4 * (mt * 5 + tl)
                    wo = vWo + 2 * ((S_ * 2 + ch) * 2 + ft)
                    c = "0" if ch == 0 else f"v[{d}:{d+3}]"
                    g.e(f"v_mfma_f32_16x16x16_bf16 v[{d}:{d+3}], v[{wo}:{wo+1}], v[{pa}:{pa+1}], {c}")
    vMX = 208
    vTP = 224
    vL2 = 240
    vMask = 241
    vA16, vA32 = 242, 243
    g.e(f"v_mov_b32 v{vL2}, {fhex(LOG2E)}")
    g.e("v_cmp_gt_u32 vcc, 16, v1")
    g.e("s_nop 1")
    g.e(f"v_cndmask_b32 v{vMask}, 0, 1.0, vcc")
    g.e(f"v_xor_b32 v{vA16}, 16, v1")
    g.e(f"v_lshlrev_b32 v{vA16}, 2, v{vA16}")
    g.e(f"v_xor_b32 v{vA32}, 32, v1")
    g.e(f"v_lshlrev_b32 v{vA32}, 2, v{vA32}")
    g.e("s_nop 4")
    for st in range(8):
        d = vPD + st * 8
        for p_ in range(3):
            g.e(f"v_cvt_pk_bf16_f32 v{vTP}, v{d+2*p_}, v{d+2*p_+1}")
            unpack_lo(g, d + 2 * p_, vTP)
            unpack_hi(g, d + 2 * p_ + 1, vTP)
        g.e(f"v_cndmask_b32 v{d+4}, v{d}, v{d+4}, vcc")
        g.e(f"v_cndmask_b32 v{d+5}, v{d}, v{d+5}, vcc")
        g.e(f"v_max3_f32 v{vMX+2*st}, v{d}, v{d+1}, v{d+2}")
        g.e(f"v_max3_f32 v{vMX+2*st}, v{vMX+2*st}, v{d+3}, v{d+4}")
        g.e(f"v_max_f32 v{vMX+2*st}, v{vMX+2*st}, v{d+5}")
        g.e(f"v_min3_f32 v{vMX+2*st+1}, v{d}, v{d+1}, v{d+2}")
        g.e(f"v_min3_f32 v{vMX+2*st+1}, v{vMX+2*st+1}, v{d+3}, v{d+4}")
        g.e(f"v_min_f32 v{vMX+2*st+1}, v{vMX+2*st+1}, v{d+5}")
    for va in (vA16, vA32):
        for i in range(16):
            g.e(f"ds_bpermute_b32 v{vTP+i}, v{va}, v{vMX+i}")
        g.e("s_waitcnt lgkmcnt(0)")
        for st in range(8):
            g.e(f"v_max_f32 v{vMX+2*st}, v{vMX+2*st}, v{vTP+2*st}")
            g.e(f"v_min_f32 v{vMX+2*st+1}, v{vMX+2*st+1}, v{vTP+2*st+1}")
    vE2 = 88
    def e2reg(st, i):
        mt, S_ = st // 2, st % 2
        t = S_ * 3 + i // 2
        return None
    E2 = {}
    free = []
    for mt in range(4):
        for t in range(5):
            a = vacc + 4 * (mt * 5 + t)
            free += [a + 2, a + 3]
    free += list(range(vrs + 4, vrs + 16)) + list(range(vsq, vsq + 16))
    assert len(free) >= 48
    for st in range(8):
        for i in range(6):
            E2[(st, i)] = free[st * 6 + i]
    for st in range(8):
        d = vPD + st * 8
        g.e(f"v_mul_f32 v{vMX+2*st}, v{vMX+2*st}, v{vL2}")
        g.e(f"v_mul_f32 v{vMX+2*st+1}, v{vMX+2*st+1}, v{vL2}")
        for i in range(6):
            g.e(f"v_fma_f32 v{E2[(st,i)]}, -v{d+i}, v{vL2}, v{vMX+2*st+1}")
            g.e(f"v_fma_f32 v{d+i}, v{d+i}, v{vL2}, -v{vMX+2*st}")
        for i in range(6):
            g.e(f"v_exp_f32 v{E2[(st,i)]}, v{E2[(st,i)]}")
            g.e(f"v_exp_f32 v{d+i}, v{d+i}")
    g.e("s_nop 0")
    for st in range(8):
        d = vPD + st * 8
        for sg, R_ in ((0, [d + i for i in range(6)]), (1, [E2[(st, i)] for i in range(6)])):
            sreg = vMX + 2 * st + sg
            g.e(f"v_add_f32 v{sreg}, v{R_[4]}, v{R_[5]}")
            g.e(f"v_mul_f32 v{sreg}, v{sreg}, v{vMask}")
            for i in range(4):
                g.e(f"v_add_f32 v{sreg}, v{sreg}, v{R_[i]}")
    for va in (vA16, vA32):
        for i in range(16):
            g.e(f"ds_bpermute_b32 v{vTP+i}, v{va}, v{vMX+i}")
        g.e("s_waitcnt lgkmcnt(0)")
        for i in range(16):
            g.e(f"v_add_f32 v{vMX+i}, v{vMX+i}, v{vTP+i}")
    for i in range(16):
        g.e(f"v_rcp_f32 v{vMX+i}, v{vMX+i}")
    g.e("s_nop 0")
    g.e("v_lshlrev_b32 v4, 4, v1")
    g.e("v_and_b32 v5, 15, v1")
    g.e("v_lshlrev_b32 v5, 3, v5")
    g.e(f"s_lshl_b32 s{S_T}, s{S_RB}, 4")
    g.e(f"s_lshl_b32 s{S_T+1}, s{S_WAVE}, 2")
    g.e(f"s_add_u32 s{S_T}, s{S_T}, s{S_T+1}")
    g.e(f"s_lshl_b32 s{S_T}, s{S_T}, 5")
    g.e(f"s_add_u32 s{S_T}, s{S_T}, s{S_H}")
    g.e(f"s_mul_i32 s{S_T}, s{S_T}, 1152")
    g.e("v_and_b32 v6, 15, v1")
    g.e("v_mul_u32_u24 v6, 160, v6")
    g.e("v_lshrrev_b32 v7, 4, v1")
    g.e("v_lshl_add_u32 v6, v7, 3, v6")
    g.e(f"v_add_u32 v6, s{S_T+2}, v6")
    g.e(f"v_mov_b32 v{vL2}, 0x3f80")
    for st in range(8):
        mt, S_ = st // 2, st % 2
        d = vPD + st * 8
        for i in range(6):
            g.e(f"v_mul_f32 v{d+i}, v{d+i}, v{vMX+2*st}")
            g.e(f"v_mul_f32 v{E2[(st,i)]}, v{E2[(st,i)]}, v{vMX+2*st+1}")
        o = vTP + 8 * (st % 2)
        g.e(f"v_cvt_pk_bf16_f32 v{o}, v{d}, v{d+1}")
        g.e(f"v_cvt_pk_bf16_f32 v{o+1}, v{d+2}, v{d+3}")
        g.e(f"v_cvt_pk_bf16_f32 v{o+2}, v{E2[(st,0)]}, v{E2[(st,1)]}")
        g.e(f"v_cvt_pk_bf16_f32 v{o+3}, v{E2[(st,2)]}, v{E2[(st,3)]}")
        g.e(f"v_cvt_pk_bf16_f32 v{o+4}, v{d+4}, v{d+5}")
        g.e(f"v_cvt_pk_bf16_f32 v{o+5}, v{E2[(st,4)]}, v{E2[(st,5)]}")
        if S_ == 0:
            g.e(f"s_add_u32 s{S_T+1}, s{S_T}, {mt*32*1152}")
            g.e(f"buffer_store_dwordx4 v[{o}:{o+3}], v4, s[{S_O}:{S_O+3}], s{S_T+1} offen")
            g.e("s_mov_b64 exec, 0xffff")
            g.e(f"buffer_store_dwordx2 v[{o+4}:{o+5}], v5, s[{S_O}:{S_O+3}], s{S_T+1} offen offset:1024")
            g.e("s_mov_b64 exec, -1")
        else:
            ko = mt * 16 * 160
            g.e(f"ds_write_b64 v6, v[{o}:{o+1}] offset:{ko}")
            g.e(f"ds_write_b64 v6, v[{o+2}:{o+3}] offset:{ko+32}")
            pv = vacc + 4 * (mt * 5 + 3)
            g.e(f"ds_write_b64 v6, v[{pv}:{pv+1}] offset:{ko+96}")
            pv4 = vacc + 4 * (mt * 5 + 4)
            g.e(f"v_mov_b32 v{pv4+1}, v{vL2}")
            g.e("s_mov_b64 exec, 0xffff")
            g.e(f"ds_write_b64 v6, v[{o+4}:{o+5}] offset:{ko+64}")
            g.e(f"ds_write_b64 v6, v[{pv4}:{pv4+1}] offset:{ko+128}")
            g.e("s_mov_b64 exec, -1")
    g.e("v_lshrrev_b32 v2, 4, v1")
    g.e("v_lshlrev_b32 v2, 2, v2")
    g.e("v_bfe_u32 v3, v1, 2, 2")
    g.e("v_add_u32 v2, v2, v3")
    g.e("v_mul_u32_u24 v2, 160, v2")
    g.e("v_and_b32 v3, 3, v1")
    g.e("v_lshl_add_u32 v2, v3, 3, v2")
    g.e(f"v_add_u32 v2, s{S_T+2}, v2")
    g.e("s_waitcnt lgkmcnt(0)")
    vFr = 144
    for ks in range(2):
        for t in range(5):
            for half in range(2):
                r = vFr + (ks * 5 + t) * 4 + 2 * half
                g.e(f"ds_read_b64_tr_b16 v[{r}:{r+1}], v2 offset:{(32*ks+16*half)*160 + 32*t}")
    g.e("s_waitcnt lgkmcnt(0)")
    vKV = 8
    for ks in range(2):
        for mt in range(3):
            for nt in range(2):
                d = vKV + (mt * 2 + nt) * 4
                a = vFr + (ks * 5 + mt) * 4
                b = vFr + (ks * 5 + 3 + nt) * 4
                c = "0" if ks == 0 else f"v[{d}:{d+3}]"
                g.e(f"v_mfma_f32_16x16x32_bf16 v[{d}:{d+3}], v[{a}:{a+3}], v[{b}:{b+3}], {c}")
    if 'stamp' in EXP:
        g.e("s_memrealtime s[94:95]")
    RB2 = LB + 81920
    g.e(f"s_mul_i32 s{S_T+2}, s{S_WAVE}, 6144")
    g.e(f"s_add_u32 s{S_T+2}, s{S_T+2}, {RB2}")
    g.e("v_lshlrev_b32 v2, 4, v1")
    g.e(f"v_add_u32 v3, s{S_T+2}, v2")
    g.e("s_nop 6")
    for t in range(6):
        g.e(f"ds_write_b128 v3, v[{vKV+4*t}:{vKV+4*t+3}] offset:{t*1024}")
    g.e("s_waitcnt lgkmcnt(0)")
    g.e("v_mov_b32 v3, 0")
    g.e("v_mov_b32 v4, 1")
    g.e("s_mov_b64 exec, 1")
    g.e(f"ds_add_rtn_u32 v4, v3, v4 offset:{4096 + 6144}")
    g.e("s_waitcnt lgkmcnt(0)")
    g.e("s_mov_b64 exec, -1")
    g.e(f"v_readfirstlane_b32 s{S_T}, v4")
    g.e("s_nop 3")
    g.e(f"s_cmp_lg_u32 s{S_T}, 3")
    g.e(f"s_cbranch_scc1 {kname}_fin")
    g.e(f"v_add_u32 v3, {RB2}, v2")
    for wv in range(4):
        for t in range(6):
            r = 32 + (wv * 6 + t) * 4
            g.e(f"ds_read_b128 v[{r}:{r+3}], v3 offset:{wv*6144 + t*1024}")
    g.e("s_waitcnt lgkmcnt(0)")
    for i in range(24):
        g.e(f"v_add_f32 v{vKV+i}, v{32+i}, v{56+i}")
        g.e(f"v_add_f32 v{80+i}, v{80+i}, v{104+i}")
    for i in range(24):
        g.e(f"v_add_f32 v{vKV+i}, v{vKV+i}, v{80+i}")
    g.e(f"s_lshl_b32 s{S_T}, s{S_H}, 3")
    g.e(f"s_add_u32 s{S_T}, s{S_T}, s{S_RB}")
    g.e(f"s_mul_i32 s{S_T}, s{S_T}, 6144")
    for t in range(6):
        g.e(f"s_add_u32 s{S_T+1}, s{S_T}, {t*1024}")
        g.e(f"buffer_store_dwordx4 v[{vKV+4*t}:{vKV+4*t+3}], v2, s[{S_E}:{S_E+3}], s{S_T+1} offen sc1")
    g.e("s_waitcnt vmcnt(0)")
    srd(g, S_A, P_DBG, 0, 256)
    g.e(f"s_lshl_b32 s{S_T}, s{S_H}, 2")
    g.e(f"v_mov_b32 v3, s{S_T}")
    g.e("v_mov_b32 v4, 1")
    g.e("s_mov_b64 exec, 1")
    g.e(f"buffer_atomic_add v4, v3, s[{S_A}:{S_A+3}], 0 offen sc0")
    g.e("s_waitcnt vmcnt(0)")
    g.e("s_mov_b64 exec, -1")
    g.e(f"v_readfirstlane_b32 s{S_T}, v4")
    g.e("s_nop 3")
    g.e(f"s_cmp_lg_u32 s{S_T}, 7")
    g.e(f"s_cbranch_scc1 {kname}_fin")
    g.e(f"s_mul_i32 s{S_T}, s{S_H}, {8*6144}")
    for j in range(8):
        for t in range(6):
            r = 32 + (j * 6 + t) * 4
            g.e(f"s_add_u32 s{S_T+1}, s{S_T}, {j*6144 + t*1024}")
            g.e(f"buffer_load_dwordx4 v[{r}:{r+3}], v2, s[{S_E}:{S_E+3}], s{S_T+1} offen sc1")
    for j in range(8):
        g.e(f"s_waitcnt vmcnt({(7-j)*6})")
        for i in range(24):
            if j == 0:
                g.e(f"v_mov_b32 v{vKV+i}, v{32+i}")
            else:
                g.e(f"v_add_f32 v{vKV+i}, v{vKV+i}, v{32+j*24+i}")
    g.e(f"s_mul_i32 s{S_T}, s{S_H}, 3072")
    for pp in range(3):
        d = vKV + 8 * pp
        g.e(f"v_cvt_pk_bf16_f32 v{d}, v{d}, v{d+1}")
        g.e(f"v_cvt_pk_bf16_f32 v{d+1}, v{d+2}, v{d+3}")
        g.e(f"v_cvt_pk_bf16_f32 v{d+2}, v{d+4}, v{d+5}")
        g.e(f"v_cvt_pk_bf16_f32 v{d+3}, v{d+6}, v{d+7}")
        g.e(f"buffer_store_dwordx4 v[{d}:{d+3}], v2, s[{S_F}:{S_F+3}], s{S_T} offen offset:{pp*1024}")
    g.lab(f"{kname}_fin")
    epilogue(g, kname)
    return g.text(), descriptor(kname, 256), lds_total


def divmod_const(g, vx, d, vq, vr, st):
    magic = (2**32 + d - 1) // d
    g.e(f"s_mov_b32 s{st}, {magic}")
    g.e(f"v_mul_hi_u32 v{vq}, v{vx}, s{st}")
    g.e(f"v_mul_u32_u24 v{vr}, {d}, v{vq}")
    g.e(f"v_sub_u32 v{vr}, v{vx}, v{vr}")


def k0_kernel():
    kname = "k0_kernel"
    g = G()
    prologue(g, kname, 256)
    g.e("v_and_b32 v1, 63, v0")
    g.e("v_lshrrev_b32 v2, 6, v0")
    g.e("s_nop 0")
    g.e(f"v_readfirstlane_b32 s{S_WAVE}, v2")
    g.e(f"s_lshl_b32 s{S_T}, s2, 8")
    g.e(f"v_add_u32 v2, s{S_T}, v0")
    g.e("s_waitcnt lgkmcnt(0)")
    srd(g, S_A, P_X, 0, H_SZ)
    srd(g, S_O, P_WS, XN_OFF, H_SZ)
    g.e(f"s_lshl_b32 s{S_M0}, s2, 3")
    g.e(f"s_lshl_b32 s{S_T}, s{S_WAVE}, 1")
    g.e(f"s_add_u32 s{S_M0}, s{S_M0}, s{S_T}")
    g.e(f"s_mul_i32 s{S_M0}, s{S_M0}, 1152")
    g.e("v_lshlrev_b32 v3, 4, v1")
    g.e("v_add_u32 v4, 1024, v3")
    g.e("v_cmp_gt_u32 vcc, 8, v1")
    g.e("v_mov_b32 v5, 0x40000000")
    g.e("v_cndmask_b32 v4, v5, v4, vcc")
    for rr in range(2):
        g.e(f"s_add_u32 s{S_T}, s{S_M0}, {rr*1152}")
        g.e(f"buffer_load_dwordx4 v[{8+rr*8}:{11+rr*8}], v3, s[{S_A}:{S_A+3}], s{S_T} offen")
        g.e(f"buffer_load_dwordx4 v[{12+rr*8}:{15+rr*8}], v4, s[{S_A}:{S_A+3}], s{S_T} offen")

    def map_tile(rowc, tilec, tilebytes, rowbytes):
        def f(vi):
            divmod_const(g, vi, rowc, 5, 7, S_T)
            divmod_const(g, 7, tilec, 6, 24, S_T)
            g.e(f"s_mov_b32 s{S_T}, {tilebytes}")
            g.e(f"v_mul_lo_u32 v6, v6, s{S_T}")
            g.e(f"v_mul_u32_u24 v5, {rowbytes}, v5")
            g.e("v_add_u32 v6, v6, v5")
            g.e("v_lshl_add_u32 v6, v24, 4, v6")
        return f

    def map_qkv(vi):
        divmod_const(g, vi, 864, 5, 7, S_T)
        divmod_const(g, 7, 288, 25, 24, S_T)
        divmod_const(g, 24, 9, 6, 7, S_T)
        g.e(f"s_mov_b32 s{S_T}, 92160")
        g.e(f"v_mul_lo_u32 v6, v6, s{S_T}")
        g.e("v_mul_u32_u24 v5, 160, v5")
        g.e("v_add_u32 v6, v6, v5")
        g.e("v_mul_u32_u24 v25, 36, v25")
        g.e("v_add_u32 v6, v6, v25")
        g.e("v_lshl_add_u32 v6, v7, 2, v6")
    jobs = [(P_WIN, 576 * 9216, TWIN_OFF, TWIN_SZ, 576 * 576, map_tile(576, 18, 165888, 288), 4, 76, 80),
            (P_WOUT, 2304 * 1152, TWOUT_OFF, TWOUT_SZ, 2304 * 72, map_tile(72, 9, 368640, 160), 4, 84, 88),
            (P_WO, 576 * 1152, TWO_OFF, TWO_SZ, 576 * 72, map_tile(72, 18, 165888, 288), 4, S_B, S_C),
            (P_WQKV, 576 * 3456, TQKV_OFF, TQKV_SZ, 576 * 864, map_qkv, 1, S_E, S_F)]
    vi0, vd0 = 28, 48
    plan = []
    vi, vd = vi0, vd0
    for (ptr, ssz, doff, dsz, n, mp, wd, ss, sd) in jobs:
        srd(g, ss, ptr, 0, ssz)
        srd(g, sd, P_WS, doff, dsz)
        nj = (n + 65535) // 65536
        for j in range(nj):
            g.e(f"v_add_u32 v{vi}, {65536*j}, v2")
            g.e(f"v_lshlrev_b32 v6, {4 if wd == 4 else 2}, v{vi}")
            if wd == 4:
                g.e(f"buffer_load_dwordx4 v[{vd}:{vd+3}], v6, s[{ss}:{ss+3}], 0 offen")
            else:
                g.e(f"buffer_load_dword v{vd}, v6, s[{ss}:{ss+3}], 0 offen")
            plan.append((vi, vd, wd, sd, mp, n, (j + 1) * 65536 > n))
            vi += 1
            vd += wd
        vd = (vd + 3) // 4 * 4
    assert vi <= vd0 and vd <= 110
    nl = len(plan)
    for (vi_, vd_, wd, sd, mp, n, partial) in plan:
        mp(vi_)
        if partial:
            g.e(f"v_cmp_gt_u32 vcc, {n}, v{vi_}")
            g.e("v_mov_b32 v7, 0x40000000")
            g.e("s_nop 0")
            g.e("v_cndmask_b32 v6, v7, v6, vcc")
        g.e(f"v_mov_b32 v{vi_}, v6")
    g.e(f"s_waitcnt vmcnt({nl})")
    vs = 112
    g.e("v_mov_b32 v26, 0x3f803f80")
    for rr in range(2):
        g.e(f"v_mov_b32 v{vs+2*rr}, 0")
        g.e(f"v_mov_b32 v{vs+1+2*rr}, 0")
        for d in range(8):
            r = 8 + rr * 8 + d
            g.e(f"v_dot2_f32_bf16 v{vs+2*rr}, v{r}, v26, v{vs+2*rr}")
            g.e(f"v_dot2_f32_bf16 v{vs+1+2*rr}, v{r}, v{r}, v{vs+1+2*rr}")
    for sw in (0x041F, 0x081F, 0x101F, 0x201F, 0x401F):
        for i in range(4):
            g.e(f"ds_swizzle_b32 v{vs+4+i}, v{vs+i} offset:{sw}")
        g.e("s_waitcnt lgkmcnt(0)")
        for i in range(4):
            g.e(f"v_add_f32 v{vs+i}, v{vs+i}, v{vs+4+i}")
    g.e("v_xor_b32 v26, 32, v1")
    g.e("v_lshlrev_b32 v26, 2, v26")
    for i in range(4):
        g.e(f"ds_bpermute_b32 v{vs+4+i}, v26, v{vs+i}")
    g.e("s_waitcnt lgkmcnt(0)")
    for i in range(4):
        g.e(f"v_add_f32 v{vs+i}, v{vs+i}, v{vs+4+i}")
    for rr in range(2):
        ln_from_sums(g, vs + 2 * rr, vs + 1 + 2 * rr, 576, vs + 4 + 2 * rr, vs + 5 + 2 * rr, 26)
    for rr in range(2):
        vm, vr = vs + 4 + 2 * rr, vs + 5 + 2 * rr
        for d in range(8):
            r = 8 + rr * 8 + d
            unpack_lo(g, 26, r)
            unpack_hi(g, 27, r)
            g.e(f"v_sub_f32 v26, v26, v{vm}")
            g.e(f"v_sub_f32 v27, v27, v{vm}")
            g.e(f"v_cvt_pk_bf16_f32 v{r}, v26, v27")
            unpack_lo(g, 26, r)
            unpack_hi(g, 27, r)
            g.e(f"v_mul_f32 v26, v26, v{vr}")
            g.e(f"v_mul_f32 v27, v27, v{vr}")
            g.e(f"v_cvt_pk_bf16_f32 v{r}, v26, v27")
    for k_, (vi_, vd_, wd, sd, mp, n, partial) in enumerate(plan):
        g.e(f"s_waitcnt vmcnt({nl-1-k_})") if k_ == 0 else None
        if k_ == 0:
            g.e("s_waitcnt vmcnt(0)")
        if wd == 4:
            g.e(f"buffer_store_dwordx4 v[{vd_}:{vd_+3}], v{vi_}, s[{sd}:{sd+3}], 0 offen")
        else:
            g.e(f"buffer_store_dword v{vd_}, v{vi_}, s[{sd}:{sd+3}], 0 offen")
    for rr in range(2):
        g.e(f"s_add_u32 s{S_T}, s{S_M0}, {rr*1152}")
        g.e(f"buffer_store_dwordx4 v[{8+rr*8}:{11+rr*8}], v3, s[{S_O}:{S_O+3}], s{S_T} offen")
        g.e(f"buffer_store_dwordx4 v[{12+rr*8}:{15+rr*8}], v4, s[{S_O}:{S_O+3}], s{S_T} offen")
    srd(g, S_A, P_WS, ST_OFF, ST2_SZ)
    for i in range(4):
        g.e(f"v_mov_b32 v{vs+i}, 0")
    g.e("v_lshlrev_b32 v6, 4, v2")
    g.e(f"buffer_store_dwordx4 v[{vs}:{vs+3}], v6, s[{S_A}:{S_A+3}], 0 offen")
    epilogue(g, kname)
    return g.text(), descriptor(kname, 128), 0


def colsum_job(g, kname, first_wg):
    g.e(f"s_sub_u32 s{S_T}, s2, {first_wg}")
    g.e(f"s_cmp_ge_u32 s{S_T}, 144")
    g.e(f"s_cbranch_scc1 {kname}_end")
    srd(g, S_A, P_WIN, 0, 576 * 4608 * 2)
    srd(g, S_B, P_WS, CS_OFF, CS_SZ)
    g.e(f"s_lshl_b32 s{S_T}, s{S_T}, 6")
    g.e("v_lshrrev_b32 v2, 2, v1")
    g.e("v_mul_u32_u24 v2, 9216, v2")
    g.e("v_and_b32 v3, 3, v1")
    g.e("v_lshl_add_u32 v2, v3, 4, v2")
    g.e(f"v_add_u32 v2, s{S_T}, v2")
    for i in range(8):
        g.e(f"v_mov_b32 v{8+i}, 0")
    for q in range(36):
        g.e(f"s_mov_b32 s{S_T+1}, {q*16*9216}")
        g.e(f"buffer_load_dwordx4 v[{16+4*q}:{19+4*q}], v2, s[{S_A}:{S_A+3}], s{S_T+1} offen")
    for q in range(36):
        g.e(f"s_waitcnt vmcnt({35-q})")
        for d in range(4):
            unpack_lo(g, 4, 16 + 4 * q + d)
            unpack_hi(g, 5, 16 + 4 * q + d)
            g.e(f"v_add_f32 v{8+2*d}, v{8+2*d}, v4")
            g.e(f"v_add_f32 v{9+2*d}, v{9+2*d}, v5")
    for x in (4, 8, 16, 32):
        g.e(f"v_xor_b32 v4, {x}, v1")
        g.e("v_lshlrev_b32 v4, 2, v4")
        for i in range(8):
            g.e(f"ds_bpermute_b32 v{16+i}, v4, v{8+i}")
        g.e("s_waitcnt lgkmcnt(0)")
        for i in range(8):
            g.e(f"v_add_f32 v{8+i}, v{8+i}, v{16+i}")
    g.e(f"s_lshl_b32 s{S_T}, s{S_T}, 1")
    g.e("v_lshlrev_b32 v4, 5, v1")
    g.e(f"v_add_u32 v4, s{S_T}, v4")
    g.e("s_mov_b64 exec, 0xf")
    g.e(f"buffer_store_dwordx4 v[8:11], v4, s[{S_B}:{S_B+3}], 0 offen")
    g.e(f"buffer_store_dwordx4 v[12:15], v4, s[{S_B}:{S_B+3}], 0 offen offset:16")
    g.e("s_mov_b64 exec, -1")


HEADER = open(__file__.replace("dev/gen.py", "cdna_kernels/" + NAME + ".s.ref")).read().split("; Override launch")[0]


def build(which=None):
    kernels = []
    t, d, l = k1_kernel()
    kernels.append(("k1_kernel", 256, 512, l, t, d))
    t, d, l = k2_kernel()
    kernels.append(("k2_kernel", 256, 512, l, t, d))
    t, d, l = k3_kernel()
    kernels.append(("k3_kernel", 256, 512, l, t, d))
    t, d, l = kn_kernel()
    kernels.append(("kn_kernel", 256, 256, l, t, d))
    t, d, l = gemm_global_kernel("k4_kernel", 'k4')
    kernels.append(("k4_kernel", 256, 512, l, t, d))
    t, d, l = gemm_global_kernel("k5_kernel", 'k5')
    kernels.append(("k5_kernel", 256, 512, l, t, d))
    out = HEADER
    for (n, grid, blk, lds, t, d) in kernels:
        out += f"; @launch kernel={n} grid=({grid},1,1) block=({blk},1,1) lds={lds}\n"
    out += '.amdgcn_target "amdgcn-amd-amdhsa--gfx950"\n.text\n'
    for k in kernels:
        out += k[4]
    out += '.section .rodata,"a"\n'
    for k in kernels:
        out += k[5]
    return out


if __name__ == "__main__":
    path = sys.argv[1] if len(sys.argv) > 1 else f"cdna_kernels/{NAME}.s"
    txt = build()
    if os.environ.get('WT', 'sc1') != 'none':
        import re
        fl = os.environ.get('WT', 'sc1')
        txt = re.sub(r'(buffer_store_dwordx4 [^\n]*offen)((?: offset:\d+)?)\n', lambda m: m.group(1) + m.group(2) + ' ' + fl + '\n', txt)
    open(path, "w").write(txt)
    print("wrote", path)
```

```python
import sys, os
EXP = os.environ.get('EXP','')

NAME = "sequential_preLN__linear_kernel_hedgehog__mixer_gmlp__prompt"

PHIQ_OFF, PHIQ_SZ = 0x0000000, 128 * 32 * 1152 + 512
KVP_OFF, KVP_SZ = 0x0600000, 8 * 32 * 4 * 6 * 1024
KVT_OFF, KVT_SZ = 0x0C00000, 32 * 4608
H_OFF, H_SZ = 0x0D00000, 2048 * 576 * 2
Z1_OFF, Z_SZ = 0x1000000, 2048 * 2304 * 2
Z2_OFF = 0x1A00000
Z2N_OFF = 0x2400000
ST_OFF, ST_SZ = 0x2E00000, 2048 * 16 * 2 * 4
U_OFF = 0x3000000
HST_OFF, HST_SZ = 0x3A00000, 2048 * 8 * 8
CS_OFF, CS_SZ = 0x3B00000, 4608 * 4
XN_OFF = 0x0600000
ACC_OFF, ACC_SZ = 0x0C00000, 32 * 3072
KV3_OFF, KV3_SZ = 0x0900000, 32 * 8 * 6144
TQKV_OFF, TQKV_SZ = 0x4000000, 32 * 576 * 160
TWO_OFF, TWO_SZ = 0x4300000, 4 * 576 * 288
TWIN_OFF, TWIN_SZ = 0x4400000, 32 * 576 * 288
TWOUT_OFF, TWOUT_SZ = 0x4A00000, 8 * 2304 * 160
ST2_SZ = 2048 * 8

P_X, P_WQKV, P_WPHI, P_WO, P_BX, P_WIN, P_WSP, P_BSP = 4, 6, 8, 10, 12, 14, 16, 18
P_WOUT, P_OUT, P_DBG, P_WS = 20, 22, 24, 26
S_A, S_B, S_C, S_O, S_E, S_F = 28, 32, 36, 40, 44, 48


class G:
    def __init__(self):
        self.L = []

    def e(self, s):
        self.L.append("    " + s)

    def lab(self, s):
        self.L.append(s + ":")

    def c(self, s):
        self.L.append("    ; " + s)

    def text(self):
        return "\n".join(self.L) + "\n"


def srd(g, sd, ptr, off, size):
    if off:
        g.e(f"s_add_u32 s{sd}, s{ptr}, {off}")
        g.e(f"s_addc_u32 s{sd+1}, s{ptr+1}, 0")
        g.e(f"s_and_b32 s{sd+1}, s{sd+1}, 0xffff")
    else:
        g.e(f"s_mov_b32 s{sd}, s{ptr}")
        g.e(f"s_and_b32 s{sd+1}, s{ptr+1}, 0xffff")
    g.e(f"s_mov_b32 s{sd+2}, {size}")
    g.e(f"s_mov_b32 s{sd+3}, 0x00020000")


def prologue(g, kname, nwg):
    g.L.append(f".globl {kname}")
    g.L.append(".p2align 8")
    g.L.append(f".type {kname},@function")
    g.lab(kname)
    g.e(f"s_cmp_ge_u32 s2, {nwg}")
    g.e(f"s_cbranch_scc1 {kname}_end")
    g.e("s_load_dwordx16 s[4:19], s[0:1], 0")
    g.e("s_load_dwordx8 s[20:27], s[0:1], 64")
    if 'stamp' in EXP:
        g.e("s_memrealtime s[96:97]")
        g.e("s_mov_b32 s92, 0")
        g.e("s_mov_b32 s94, 0")


STAMP_OFF = 0x3F00000
def epilogue(g, kname):
    if 'stamp' in EXP:
        idx = int(kname[1]) if kname[1].isdigit() else 6
        g.e("s_waitcnt vmcnt(0) lgkmcnt(0)")
        g.e("s_memrealtime s[98:99]")
        srd(g, S_F, P_WS, STAMP_OFF + idx * 16384, 16384)
        g.e("s_waitcnt lgkmcnt(0)")
        g.e("v_mov_b32 v2, s96")
        g.e("v_mov_b32 v3, s98")
        g.e("v_mov_b32 v4, s92")
        g.e("v_mov_b32 v5, s94")
        g.e("s_lshl_b32 s96, s2, 4")
        g.e("v_mov_b32 v6, s96")
        g.e("v_cmp_eq_u32 vcc, 0, v0")
        g.e("s_and_saveexec_b64 s[96:97], vcc")
        g.e(f"buffer_store_dwordx4 v[2:5], v6, s[{S_F}:{S_F+3}], 0 offen")
    g.lab(f"{kname}_end")
    g.e("s_endpgm")


def descriptor(kname, vgpr, agpr=0, sgpr=100):
    acc = (vgpr + 3) // 4 * 4
    tot = acc + agpr if agpr else vgpr
    return f""".p2align 6
.amdhsa_kernel {kname}
  .amdhsa_next_free_vgpr {tot}
  .amdhsa_next_free_sgpr {sgpr}
  .amdhsa_accum_offset {acc}
  .amdhsa_group_segment_fixed_size 0
  .amdhsa_kernarg_size 96
  .amdhsa_user_sgpr_count 2
  .amdhsa_user_sgpr_kernarg_segment_ptr 1
  .amdhsa_system_sgpr_workgroup_id_x 1
.end_amdhsa_kernel
"""


def swap23(r):
    return (r & 3) | ((r & 4) << 1) | ((r & 8) >> 1)


S_WAVE = 52
S_WB = 53
S_KB = 54
S_KA = 55
S_LOOP = 56
S_M0 = 57
S_N0 = 58
S_WA = 59
S_T = 60
S_J = 70
S_ROT = 71
S_ROLE = 72


class Gemm:
    def __init__(self, g, MT, NT, BN, NS, ldb, a_mode, vbase, lds_base=0):
        self.g = g
        self.MT, self.NT, self.BN, self.NS = MT, NT, BN, NS
        self.ldb = ldb
        self.a_mode = a_mode
        self.S = BN * 2
        self.CPR = BN // 8
        self.STAGE = 64 * self.S
        self.ASTAGE = 4 * MT * 16 * 128 if a_mode == 'lds' else 0
        self.a_base = lds_base
        self.b_base = lds_base + NS * self.ASTAGE
        nch = 16 * self.CPR
        self.nfull = nch // 64
        self.half = (nch % 64) // 32
        assert nch % 32 == 0
        self.D = self.nfull + self.half
        self.DA = 2 * MT if a_mode == 'lds' else 0
        v = vbase
        self.vDma = v; v += self.D
        self.vBaddr = v; v += NS
        if a_mode == 'lds':
            self.vDmaA = v; v += self.DA
            self.a_multi = NS * self.ASTAGE > 65536
            self.vAaddr = v; v += 2 * (NS if self.a_multi else 1)
        v = (v + 3) // 4 * 4
        self.vB = [v, v + NT * 4]; v += 2 * NT * 4
        if a_mode == 'lds':
            self.vA = [v, v + MT * 4]; v += 2 * MT * 4
        self.G = (0 if 'nob' in EXP else self.D) + (0 if 'noa' in EXP else self.DA)
        self.vend = v
        self.rotw = 1
        self.lds_bytes = NS * (self.STAGE + self.ASTAGE)

    def setup(self, vlane, vt0, colmap=None, col0_sgpr=None):
        g = self.g
        t0, t1, t2, t3 = vt0, vt0 + 1, vt0 + 2, vt0 + 3
        magic = (65536 + self.CPR - 1) // self.CPR
        for c in range(self.D * 64):
            assert (c * magic) >> 16 == c // self.CPR
        g.e(f"s_mul_i32 s{S_WB}, s{S_WAVE}, {16*self.S}")
        g.e(f"s_add_u32 s{S_WB}, s{S_WB}, {self.b_base}")
        g.e(f"s_lshl_b32 s{S_T}, s{S_WAVE}, 4")
        for q in range(self.D):
            g.e(f"v_add_u32 v{t0}, {q*64}, v{vlane}")
            g.e(f"v_mul_u32_u24 v{t1}, {magic}, v{t0}")
            g.e(f"v_lshrrev_b32 v{t1}, 16, v{t1}")
            g.e(f"v_mul_u32_u24 v{t2}, {self.CPR}, v{t1}")
            g.e(f"v_sub_u32 v{t0}, v{t0}, v{t2}")
            g.e(f"v_and_b32 v{t2}, 3, v{t1}")
            g.e(f"v_and_b32 v{t3}, 4, v{t1}")
            g.e(f"v_lshl_or_b32 v{t2}, v{t3}, 1, v{t2}")
            g.e(f"v_and_b32 v{t3}, 8, v{t1}")
            g.e(f"v_lshrrev_b32 v{t3}, 1, v{t3}")
            g.e(f"v_or_b32 v{t2}, v{t2}, v{t3}")
            g.e(f"v_add_u32 v{t2}, s{S_T}, v{t2}")
            g.e(f"s_mov_b32 s{S_T+1}, {self.ldb}")
            g.e(f"v_mul_lo_u32 v{t2}, v{t2}, s{S_T+1}")
            if colmap is None:
                g.e(f"v_lshlrev_b32 v{t0}, 4, v{t0}")
            else:
                colmap(g, t0, t1, t3)
            g.e(f"v_add_u32 v{self.vDma+q}, v{t2}, v{t0}")
            if col0_sgpr is not None:
                g.e(f"v_add_u32 v{self.vDma+q}, s{col0_sgpr}, v{self.vDma+q}")
        g.e(f"v_lshrrev_b32 v{t0}, 5, v{vlane}")
        g.e(f"v_lshlrev_b32 v{t0}, 4, v{t0}")
        g.e(f"v_bfe_u32 v{t1}, v{vlane}, 4, 1")
        g.e(f"v_lshl_or_b32 v{t0}, v{t1}, 2, v{t0}")
        g.e(f"v_bfe_u32 v{t1}, v{vlane}, 2, 2")
        g.e(f"v_add_u32 v{t0}, v{t0}, v{t1}")
        g.e(f"v_mul_u32_u24 v{t0}, {self.S}, v{t0}")
        g.e(f"v_and_b32 v{t1}, 3, v{vlane}")
        g.e(f"v_lshl_add_u32 v{t0}, v{t1}, 3, v{t0}")
        for s in range(self.NS):
            g.e(f"v_add_u32 v{self.vBaddr+s}, {self.b_base + s*self.STAGE}, v{t0}")

    def setup_a(self, vlane, vt0, lda, srow0):
        g = self.g
        t0, t1, t2 = vt0, vt0 + 1, vt0 + 2
        g.e(f"s_mul_i32 s{S_WA}, s{S_WAVE}, {self.MT*16*128}")
        if self.a_base:
            g.e(f"s_add_u32 s{S_WA}, s{S_WA}, {self.a_base}")
        g.e(f"v_lshrrev_b32 v{t0}, 3, v{vlane}")
        g.e(f"v_and_b32 v{t1}, 7, v{vlane}")
        g.e(f"v_xor_b32 v{t1}, v{t1}, v{t0}")
        g.e(f"v_add_u32 v{t0}, s{srow0}, v{t0}")
        g.e(f"s_mov_b32 s{S_T}, {lda}")
        g.e(f"v_mul_lo_u32 v{t0}, v{t0}, s{S_T}")
        g.e(f"v_lshl_add_u32 v{t0}, v{t1}, 4, v{t0}")
        for q in range(self.DA):
            g.e(f"v_add_u32 v{self.vDmaA+q}, {8*q*lda}, v{t0}")
        g.e(f"v_and_b32 v{t0}, 15, v{vlane}")
        g.e(f"v_lshrrev_b32 v{t1}, 4, v{vlane}")
        g.e(f"v_and_b32 v{t2}, 7, v{vlane}")
        g.e(f"v_xor_b32 v{t1}, v{t1}, v{t2}")
        g.e(f"v_lshlrev_b32 v{t1}, 4, v{t1}")
        g.e(f"v_lshl_add_u32 v{t0}, v{t0}, 7, v{t1}")
        g.e(f"v_add_u32 v{self.vAaddr}, s{S_WA}, v{t0}")
        g.e(f"v_xor_b32 v{self.vAaddr+1}, 64, v{self.vAaddr}")
        if self.a_multi:
            for sl in range(1, self.NS):
                g.e(f"v_add_u32 v{self.vAaddr+2*sl}, {sl*self.ASTAGE}, v{self.vAaddr}")
                g.e(f"v_add_u32 v{self.vAaddr+2*sl+1}, {sl*self.ASTAGE}, v{self.vAaddr+1}")

    def dma_items(self, slot):
        items = []
        if self.a_mode == 'lds' and 'noa' not in EXP:
            for q in range(self.DA):
                pre = [f"s_add_u32 m0, s{S_WA}, {slot*self.ASTAGE + q*1024}"]
                main = [f"buffer_load_dwordx4 v{self.vDmaA+q}, s[{S_A}:{S_A+3}], s{S_KA} offen lds"]
                items.append((pre, main))
        if 'nob' not in EXP:
            for q in range(self.D):
                pre = [f"s_add_u32 m0, s{S_WB}, {slot*self.STAGE + q*1024}"]
                main = [f"buffer_load_dwordx4 v{self.vDma+q}, s[{S_B}:{S_B+3}], s{S_KB} offen lds"]
                if q == self.nfull:
                    main = ["s_mov_b32 exec_hi, 0"] + main + ["s_mov_b32 exec_hi, -1"]
                if q == self.D - 1:
                    main += self.next_k()
                items.append((pre, main))
        return items

    def next_k(self):
        W = self.rotw
        if W == 0:
            return []
        if W <= 1:
            return [f"s_add_u32 s{S_KB}, s{S_KB}, {64*self.ldb}", f"s_add_u32 s{S_KA}, s{S_KA}, 128"]
        return [f"s_add_u32 s{S_J}, s{S_J}, 1",
                f"s_add_u32 s{S_KA}, s{S_J}, s{S_ROT}",
                f"s_and_b32 s{S_KA}, s{S_KA}, {W-1}",
                f"s_and_b32 s{S_KB}, s{S_J}, {(~(W-1)) & 0xffff}",
                f"s_or_b32 s{S_KA}, s{S_KA}, s{S_KB}",
                f"s_mul_i32 s{S_KB}, s{S_KA}, {64*self.ldb}",
                f"s_lshl_b32 s{S_KA}, s{S_KA}, 7"]

    def init_k(self):
        g = self.g
        g.e(f"s_mov_b32 s{S_J}, 0")
        g.e(f"s_and_b32 s{S_KA}, s{S_ROT}, {max(self.rotw-1,0)}")
        g.e(f"s_mul_i32 s{S_KB}, s{S_KA}, {64*self.ldb}")
        g.e(f"s_lshl_b32 s{S_KA}, s{S_KA}, 7")

    def issue(self, slot):
        for pre, main in self.dma_items(slot):
            for x in pre:
                self.g.e(x)
            self.g.e("s_nop 0")
            for x in main:
                self.g.e(x)

    def reads(self, slot, ks, dst):
        out = []
        if 'nord' in EXP:
            return out
        if self.a_mode == 'lds':
            for mt in range(self.MT):
                r = self.vA[dst] + mt * 4
                if self.a_multi:
                    out.append(f"ds_read_b128 v[{r}:{r+3}], v{self.vAaddr+2*slot+ks} offset:{mt*2048}")
                else:
                    out.append(f"ds_read_b128 v[{r}:{r+3}], v{self.vAaddr+ks} offset:{slot*self.ASTAGE + mt*2048}")
        for nt in range(self.NT):
            for half in range(2):
                r = self.vB[dst] + nt * 4 + half * 2
                off = (32 * ks + 8 * half) * self.S + 32 * nt
                out.append(f"ds_read_b64_tr_b16 v[{r}:{r+1}], v{self.vBaddr+slot} offset:{off}")
        return out

    def phase(self, cur, afr, acc, rd, dma=None, first=0):
        g = self.g
        rd = list(rd)
        dma = list(dma or [])
        mf = [(mt, nt) for nt in range(self.NT) for mt in range(self.MT)]
        n = len(mf)
        pos = {}
        if dma:
            gap = max(2, (n - 1) // len(dma))
            for j, it in enumerate(dma):
                p = min(j * gap + first, n - 2)
                pos.setdefault(p, []).append(('pre', it))
        pend = []
        for i, (mt, nt) in enumerate(mf):
            for _ in range(2):
                if rd:
                    g.e(rd.pop(0))
            b = self.vB[cur] + nt * 4
            a = afr(mt)
            c = acc(mt, nt)
            if 'nomf' not in EXP:
                g.e(f"v_mfma_f32_16x16x32_bf16 {c}, v[{b}:{b+3}], v[{a}:{a+3}], {c}")
            for it in pend:
                for x in it[1]:
                    g.e(x)
            pend = []
            todo = pos.get(i, [])
            for k_, (_, it) in enumerate(todo):
                if k_ > 0:
                    g.e("s_nop 0")
                    for x in pend[0][1]:
                        g.e(x)
                    pend = []
                for x in it[0]:
                    g.e(x)
                pend.append(it)
        for it in pend:
            g.e("s_nop 0")
            for x in it[1]:
                g.e(x)
        for x in rd:
            g.e(x)


def unpack_lo(g, d, s):
    g.e(f"v_lshlrev_b32 v{d}, 16, v{s}")


def unpack_hi(g, d, s):
    g.e(f"v_and_b32 v{d}, 0xffff0000, v{s}")


def gemm_global_kernel(kname, kind):
    g = G()
    if kind == 'k4':
        MT, NT, BN, NS, KT = 2, 9, 144, int(os.environ.get('NS4','4')), 32
        lda, ldb = 4096, 288
        nwg = 256
    else:
        MT, NT, BN, NS, KT = 1, 5, 80, int(os.environ.get('NS5','4')), 36
        lda, ldb = 4608, 160
        nwg = 256
    if 'NWG' in os.environ: nwg = int(os.environ['NWG'])
    prologue(g, kname, nwg)
    g.e("v_and_b32 v1, 63, v0")
    g.e("v_lshrrev_b32 v2, 6, v0")
    g.e("s_nop 0")
    g.e(f"v_readfirstlane_b32 s{S_ROLE}, v2")
    g.e(f"s_and_b32 s{S_WAVE}, s{S_ROLE}, 3")
    g.e(f"s_lshr_b32 s{S_ROLE}, s{S_ROLE}, 2")
    g.e(f"s_and_b32 s{S_T}, s2, 7")
    g.e(f"s_lshr_b32 s{S_T+1}, s2, 3")
    if kind == 'k4':
        MAP = os.environ.get('MAP', '48')
        lm = {'48': 2, '84': 3, '216': 1, '162': 4}[MAP]
        ln_ = 5 - lm
        gm_ = 4 - lm
        g.e(f"s_and_b32 s{S_M0}, s{S_T}, {(1<<gm_)-1}")
        g.e(f"s_lshl_b32 s{S_M0}, s{S_M0}, {lm}")
        g.e(f"s_and_b32 s{S_ROT}, s{S_T+1}, {(1<<lm)-1}")
        g.e(f"s_add_u32 s{S_M0}, s{S_M0}, s{S_ROT}")
        g.e(f"s_lshl_b32 s{S_M0}, s{S_M0}, 7")
        g.e(f"s_lshr_b32 s{S_N0}, s{S_T}, {gm_}")
        g.e(f"s_lshl_b32 s{S_N0}, s{S_N0}, {ln_}")
        g.e(f"s_lshr_b32 s{S_T+2}, s{S_T+1}, {lm}")
        g.e(f"s_add_u32 s{S_N0}, s{S_N0}, s{S_T+2}")
        g.e(f"s_mul_i32 s{S_N0}, s{S_N0}, 144")
        ra, rb_ = map(int, os.environ.get('ROTAB', '1,2').split(','))
        g.e(f"s_mul_i32 s{S_ROT}, s{S_ROT}, {rb_}")
        g.e(f"s_mul_i32 s{S_T+2}, s{S_T+2}, {ra}")
        g.e(f"s_add_u32 s{S_ROT}, s{S_ROT}, s{S_T+2}")
    else:
        g.e(f"s_lshl_b32 s{S_M0}, s{S_T}, 2")
        g.e(f"s_lshr_b32 s{S_T+2}, s{S_T+1}, 3")
        g.e(f"s_add_u32 s{S_M0}, s{S_M0}, s{S_T+2}")
        g.e(f"s_lshl_b32 s{S_M0}, s{S_M0}, 6")
        g.e(f"s_and_b32 s{S_N0}, s{S_T+1}, 7")
        g.e(f"s_mul_i32 s{S_N0}, s{S_N0}, 72")
        g.e(f"s_lshr_b32 s{S_ROT}, s{S_T+1}, 1")
        g.e(f"s_add_u32 s{S_ROT}, s{S_ROT}, s{S_T+2}")
    if 'same' in EXP:
        g.e(f"s_mov_b32 s{S_M0}, 0")
        g.e(f"s_mov_b32 s{S_N0}, 0")
    g.e("s_waitcnt lgkmcnt(0)")
    if kind == 'k4':
        srd(g, S_A, P_WSP, 0, 2048 * 2048 * 2)
        srd(g, S_B, P_WS, Z2N_OFF, Z_SZ)
        srd(g, S_F, P_WS, ST_OFF, ST2_SZ)
        srd(g, S_C, P_WS, Z1_OFF, Z_SZ)
        srd(g, S_O, P_WS, U_OFF, Z_SZ)
        srd(g, S_E, P_BSP, 0, 4096)
    else:
        srd(g, S_A, P_WS, U_OFF, Z_SZ)
        srd(g, S_B, P_WS, TWOUT_OFF, TWOUT_SZ)
        srd(g, S_C, P_WS, H_OFF, H_SZ)
        srd(g, S_O, P_OUT, 0, H_SZ)
    NACC = MT * NT * 4
    vacc = 8
    gm = Gemm(g, MT, NT, BN, NS, ldb, 'lds', vacc + NACC)
    g.e(f"s_mul_i32 s{S_T+3}, s{S_WAVE}, {16*MT}")
    g.e(f"s_add_u32 s{S_T+3}, s{S_T+3}, s{S_M0}")
    g.e(f"s_lshl_b32 s{S_T+4}, s{S_N0}, 1")
    if kind == 'k4':
        g.e(f"s_mul_i32 s{S_T+5}, s{S_N0}, 4096")
        gm.setup(1, 2, col0_sgpr=S_T + 5)
    else:
        g.e(f"s_mul_i32 s{S_T+5}, s{S_N0}, 5120")
        gm.setup(1, 2, col0_sgpr=S_T + 5)
    gm.setup_a(1, 2, lda, S_T + 3)
    gm.rotw = int(os.environ.get('ROTW', '8'))
    if kind == 'k5': gm.rotw = min(gm.rotw, 4)
    gm.init_k()
    g.e(f"s_cmp_eq_u32 s{S_ROLE}, 0")
    g.e(f"s_cbranch_scc1 {kname}_comp")
    NORM4 = False
    if kind == 'k4' and NORM4:
        TAB = gm.lds_bytes
        vst = gm.vB[0]
        vkl = vst + NS * 20
        vwa = vkl + 5
        vtb = vwa + 1
        tq = (vtb + 10 + 3) // 4 * 4
        g.e(f"s_lshl_b32 s{S_T}, s{S_WAVE}, 12")
        g.e(f"v_lshlrev_b32 v{tq}, 6, v1")
        g.e(f"v_add_u32 v{tq}, s{S_T}, v{tq}")
        for i in range(4):
            g.e(f"buffer_load_dwordx4 v[{tq+4+4*i}:{tq+7+4*i}], v{tq}, s[{S_F}:{S_F+3}], 0 offen offset:{16*i}")
        g.e(f"s_lshl_b32 s{S_T}, s{S_WAVE}, 4")
        for q in range(5):
            g.e(f"v_add_u32 v2, {q*64}, v1")
            g.e(f"v_mul_u32_u24 v3, 3641, v2")
            g.e(f"v_lshrrev_b32 v3, 16, v3")
            g.e(f"v_and_b32 v4, 3, v3")
            g.e(f"v_and_b32 v5, 4, v3")
            g.e(f"v_lshl_or_b32 v4, v5, 1, v4")
            g.e(f"v_and_b32 v5, 8, v3")
            g.e(f"v_lshrrev_b32 v5, 1, v5")
            g.e(f"v_or_b32 v4, v4, v5")
            g.e(f"v_add_u32 v4, s{S_T}, v4")
            g.e(f"v_and_b32 v4, 63, v4")
            g.e(f"v_lshlrev_b32 v4, 3, v4")
            g.e(f"v_add_u32 v{vkl+q}, {TAB}, v4")
        g.e(f"v_lshlrev_b32 v{vwa}, 4, v1")
        g.e(f"v_add_u32 v{vwa}, s{S_WB}, v{vwa}")
        S_KQ = 76
        S_JB, S_KB2 = 80, 81
        W_ = gm.rotw
        def issueA(slot):
            for pre, main in gm.dma_items(slot)[:gm.DA]:
                for x in pre: g.e(x)
                g.e("s_nop 0")
                for x in main: g.e(x)
            g.e(f"s_add_u32 s{S_J}, s{S_J}, 1")
            g.e(f"s_add_u32 s{S_KA}, s{S_J}, s{S_ROT}")
            g.e(f"s_and_b32 s{S_KA}, s{S_KA}, {W_-1}")
            g.e(f"s_and_b32 s{S_T}, s{S_J}, {(~(W_-1)) & 0xffff}")
            g.e(f"s_or_b32 s{S_KA}, s{S_KA}, s{S_T}")
            g.e(f"s_lshl_b32 s{S_KA}, s{S_KA}, 7")
        def issueB(slot):
            g.e(f"s_lshl_b32 s{S_KQ+slot}, s{S_KB2}, 9")
            g.e(f"s_mul_i32 s{S_KB}, s{S_KB2}, {64*gm.ldb}")
            for q in range(5):
                r = vst + slot * 20 + q * 4
                if q == 4:
                    g.e("s_mov_b32 exec_hi, 0")
                g.e(f"buffer_load_dwordx4 v[{r}:{r+3}], v{gm.vDma+q}, s[{S_B}:{S_B+3}], s{S_KB} offen")
                if q == 4:
                    g.e("s_mov_b32 exec_hi, -1")
            g.e(f"s_add_u32 s{S_JB}, s{S_JB}, 1")
            g.e(f"s_add_u32 s{S_KB2}, s{S_JB}, s{S_ROT}")
            g.e(f"s_and_b32 s{S_KB2}, s{S_KB2}, {W_-1}")
            g.e(f"s_and_b32 s{S_T}, s{S_JB}, {(~(W_-1)) & 0xffff}")
            g.e(f"s_or_b32 s{S_KB2}, s{S_KB2}, s{S_T}")
        def pre4(slot):
            for q in range(5):
                g.e(f"v_add_u32 v2, s{S_KQ+slot}, v{vkl+q}")
                g.e(f"ds_read_b64 v[{vtb+2*q}:{vtb+2*q+1}], v2")
        def norm4(slot):
            g.e("s_waitcnt lgkmcnt(0)")
            for q in range(5):
                r = vst + slot * 20 + q * 4
                for d in range(4):
                    unpack_lo(g, 2, r + d)
                    unpack_hi(g, 3, r + d)
                    g.e(f"v_pk_fma_f32 v[2:3], v[2:3], v[{vtb+2*q}:{vtb+2*q+1}], v[{vtb+2*q}:{vtb+2*q+1}] op_sel:[0,1,0] op_sel_hi:[1,1,0]")
                    g.e(f"v_cvt_pk_bf16_f32 v{r+d}, v2, v3")
                if q == 4:
                    g.e("s_mov_b32 exec_hi, 0")
                g.e(f"ds_write_b128 v{vwa}, v[{r}:{r+3}] offset:{slot*gm.STAGE + q*1024}")
                if q == 4:
                    g.e("s_mov_b32 exec_hi, -1")
            g.e("s_waitcnt lgkmcnt(0)")
        g.e(f"s_mov_b32 s{S_JB}, 0")
        g.e(f"s_and_b32 s{S_KB2}, s{S_ROT}, {W_-1}")
        issueB(0)
        for j in range(NS - 1):
            issueA(j)
            issueB(j + 1)
        g.e(f"s_waitcnt vmcnt({5 + (NS-1)*9})")
        for i in range(8):
            a_ = tq + 4 + 2 * i
            ln_from_sums(g, a_, a_ + 1, 2304, 4, 5, 6)
            g.e(f"v_mul_f32 v4, v4, v5")
            g.e(f"v_sub_f32 v{a_}, 0, v4")
            g.e(f"v_mov_b32 v{a_+1}, v5")
        g.e(f"v_add_u32 v{tq}, {TAB}, v{tq}")
        for i in range(4):
            g.e(f"ds_write_b128 v{tq}, v[{tq+4+4*i}:{tq+7+4*i}] offset:{16*i}")
        g.e("s_waitcnt lgkmcnt(0)")
        g.e("s_barrier")
        pre4(0)
        g.e(f"s_waitcnt vmcnt({(NS-1)*9})")
        norm4(0)
        issueA(NS - 1)
        issueB(0)
        pre4(1)
        g.e(f"s_waitcnt vmcnt({(NS-1)*9})")
        norm4(1)
        g.e("s_barrier")
        g.e(f"s_mov_b32 s{S_LOOP}, {KT//NS}")
        g.lab(f"{kname}_lloop")
        for s in range(NS):
            g.e(f"s_waitcnt vmcnt({(NS-2)*9 + 5})")
            g.e("s_barrier")
            issueA(s)
            issueB((s + 1) % NS)
            pre4((s + 2) % NS)
            g.e(f"s_waitcnt vmcnt({(NS-1)*9})")
            norm4((s + 2) % NS)
        g.e(f"s_sub_u32 s{S_LOOP}, s{S_LOOP}, 1")
        g.e(f"s_cmp_lg_u32 s{S_LOOP}, 0")
        g.e(f"s_cbranch_scc1 {kname}_lloop")
        g.e("s_waitcnt vmcnt(0)")
        g.e("s_barrier")
        g.e(f"s_branch {kname}_end")
    else:
        for j in range(NS):
            gm.issue(j)
        g.e(f"s_waitcnt vmcnt({(NS-1)*gm.G})")
        g.e("s_barrier")
        g.e(f"s_mov_b32 s{S_LOOP}, {KT//NS}")
        g.lab(f"{kname}_lloop")
        for s in range(NS):
            g.e(f"s_waitcnt vmcnt({(NS-2)*gm.G})")
            g.e("s_barrier")
            gm.issue(s)
        g.e(f"s_sub_u32 s{S_LOOP}, s{S_LOOP}, 1")
        g.e(f"s_cmp_lg_u32 s{S_LOOP}, 0")
        g.e(f"s_cbranch_scc1 {kname}_lloop")
        g.e("s_waitcnt vmcnt(0)")
        if kind == 'k4':
            g.e("s_barrier")
        g.e(f"s_branch {kname}_end")
    g.lab(f"{kname}_comp")
    if kind == 'k4':
        K4_VB = (gm.vend + 1) // 2 * 2
        K4_VQ = K4_VB + 2
        K4_VZ = (K4_VQ + 9 + 3) // 4 * 4
        K4_W = K4_VZ + 36
        assert K4_W + 6 <= 256
        w = K4_W
        g.e(f"v_and_b32 v{w+4}, 15, v1")
        g.e(f"v_add_u32 v{w+4}, s{S_T+3}, v{w+4}")
        for mt in range(MT):
            g.e(f"v_add_u32 v{w+3}, {16*mt}, v{w+4}")
            g.e(f"v_lshlrev_b32 v{w+3}, 1, v{w+3}")
            g.e(f"buffer_load_ushort v{K4_VB+mt}, v{w+3}, s[{S_E}:{S_E+3}], 0 offen")
        g.e(f"s_mul_i32 s{S_T}, s{S_T+3}, 4608")
        g.e(f"s_add_u32 s{S_T}, s{S_T}, s{S_T+4}")
        for q in range(9):
            g.e(f"v_add_u32 v{w}, {q*64}, v1")
            g.e(f"v_mul_u32_u24 v{w+1}, 3641, v{w}")
            g.e(f"v_lshrrev_b32 v{w+1}, 16, v{w+1}")
            g.e(f"v_mul_u32_u24 v{w+2}, 18, v{w+1}")
            g.e(f"v_sub_u32 v{w}, v{w}, v{w+2}")
            g.e(f"v_mul_u32_u24 v{w+1}, 4608, v{w+1}")
            g.e(f"v_lshl_add_u32 v{w}, v{w}, 4, v{w+1}")
            g.e(f"v_add_u32 v{K4_VQ+q}, s{S_T}, v{w}")
    for i in range(NACC):
        g.e(f"v_mov_b32 v{vacc+i}, 0")
    acc = lambda mt, nt: f"v[{vacc+(mt*NT+nt)*4}:{vacc+(mt*NT+nt)*4+3}]"
    if kind == 'k4' and NORM4:
        g.e("s_barrier")
    g.e("s_barrier")
    for x in gm.reads(0, 0, 0):
        g.e(x)
    if 'stamp' in EXP:
        g.e("s_memrealtime s[92:93]")
    g.e(f"s_mov_b32 s{S_LOOP}, {KT//NS}")
    g.lab(f"{kname}_loop")
    if kind == 'k4':
        g.e(f"s_cmp_lg_u32 s{S_LOOP}, 2")
        g.e(f"s_cbranch_scc1 {kname}_noz")
        for q in range(9):
            g.e(f"buffer_load_dwordx4 v[{K4_VZ+4*q}:{K4_VZ+4*q+3}], v{K4_VQ+q}, s[{S_C}:{S_C+3}], 0 offen")
        g.lab(f"{kname}_noz")
    for s in range(NS):
        g.e("s_waitcnt lgkmcnt(0)")
        gm.phase(0, lambda mt: gm.vA[0] + mt * 4, acc, gm.reads(s, 1, 1))
        g.e(f"s_waitcnt lgkmcnt(0)")
        g.e("s_barrier")
        gm.phase(1, lambda mt: gm.vA[1] + mt * 4, acc, gm.reads((s + 1) % NS, 0, 0))
    g.e(f"s_sub_u32 s{S_LOOP}, s{S_LOOP}, 1")
    g.e(f"s_cmp_lg_u32 s{S_LOOP}, 0")
    g.e(f"s_cbranch_scc1 {kname}_loop")
    g.e("s_waitcnt vmcnt(0) lgkmcnt(0)")
    if 'stamp' in EXP:
        g.e("s_memrealtime s[94:95]")
    vt = gm.vB[0]
    voff = vt
    vtmp = vt + 4
    ldc = 4608 if kind == 'k4' else 1152
    g.e(f"v_and_b32 v{vtmp}, 15, v1")
    g.e(f"v_add_u32 v{vtmp}, s{S_T+3}, v{vtmp}")
    g.e(f"s_mov_b32 s{S_T}, {ldc}")
    g.e(f"v_mul_lo_u32 v{vtmp+1}, v{vtmp}, s{S_T}")
    g.e(f"v_lshrrev_b32 v{vtmp+2}, 4, v1")
    g.e(f"v_lshl_add_u32 v{vtmp+1}, v{vtmp+2}, 3, v{vtmp+1}")
    g.e(f"v_add_u32 v{vtmp+1}, s{S_T+4}, v{vtmp+1}")
    for mt in range(MT):
        g.e(f"v_add_u32 v{voff+mt}, {16*mt*ldc}, v{vtmp+1}")
    if kind == 'k4':
        vb, vq, vz, w = K4_VB, K4_VQ, K4_VZ, K4_W
        g.e("s_barrier")
        g.e(f"s_mul_i32 s{S_T+1}, s{S_WAVE}, 9216")
        g.e(f"v_and_b32 v{w}, 15, v1")
        g.e(f"v_mul_u32_u24 v{w}, 288, v{w}")
        g.e(f"v_lshrrev_b32 v{w+1}, 4, v1")
        g.e(f"v_lshl_add_u32 v{w}, v{w+1}, 3, v{w}")
        g.e(f"v_add_u32 v{voff}, s{S_T+1}, v{w}")
        g.e(f"v_lshlrev_b32 v{w}, 4, v1")
        g.e(f"v_add_u32 v{voff+1}, s{S_T+1}, v{w}")
        for mt in range(MT):
            g.e(f"v_lshlrev_b32 v{vb+mt}, 16, v{vb+mt}")
        for mt in range(MT):
            for nt in range(NT):
                a = vacc + (mt * NT + nt) * 4
                for p in range(2):
                    g.e(f"v_cvt_pk_bf16_f32 v{w}, v{a+2*p}, v{a+2*p+1}")
                    unpack_lo(g, w + 2, w)
                    unpack_hi(g, w + 3, w)
                    g.e(f"v_pk_add_f32 v[{w+2}:{w+3}], v[{w+2}:{w+3}], v[{vb}:{vb+1}] op_sel:[0,{mt}] op_sel_hi:[1,{mt}]")
                    g.e(f"v_cvt_pk_bf16_f32 v{a+p}, v{w+2}, v{w+3}")
                g.e(f"ds_write_b64 v{voff}, v[{a}:{a+1}] offset:{mt*16*288 + nt*32}")
        g.e("s_waitcnt lgkmcnt(0)")
        for q in range(9):
            g.e(f"ds_read_b128 v[{vacc+4*q}:{vacc+4*q+3}], v{voff+1} offset:{q*1024}")
        for q in range(9):
            g.e(f"s_waitcnt lgkmcnt({8-q})")
            for d in range(4):
                gq = vacc + 4 * q + d
                z = vz + 4 * q + d
                unpack_lo(g, w + 2, gq)
                unpack_hi(g, w + 3, gq)
                unpack_lo(g, w + 4, z)
                unpack_hi(g, w + 5, z)
                g.e(f"v_pk_mul_f32 v[{w+2}:{w+3}], v[{w+2}:{w+3}], v[{w+4}:{w+5}]")
                g.e(f"v_cvt_pk_bf16_f32 v{z}, v{w+2}, v{w+3}")
            g.e(f"buffer_store_dwordx4 v[{vz+4*q}:{vz+4*q+3}], v{vq+q}, s[{S_O}:{S_O+3}], 0 offen")
        vmax = w + 6
    else:
        vz = (vtmp + 6) // 2 * 2
        vlast = vtmp + 4
        for mt in range(MT):
            for nt in range(NT):
                r = vz + (mt * NT + nt) * 2
                g.e(f"buffer_load_dwordx2 v[{r}:{r+1}], v{voff+mt}, s[{S_C}:{S_C+3}], 0 offen offset:{nt*32}")
        g.e(f"v_cmp_gt_u32 vcc, 32, v1")
        g.e(f"v_mov_b32 v{vtmp+3}, 0x40000000")
        g.e("s_nop 0")
        g.e(f"v_cndmask_b32 v{vlast}, v{vtmp+3}, v{voff}, vcc")
        w = vz + MT * NT * 2
        g.e("s_waitcnt vmcnt(0)")
        for mt in range(MT):
            for nt in range(NT):
                a = vacc + (mt * NT + nt) * 4
                z = vz + (mt * NT + nt) * 2
                for p in range(2):
                    g.e(f"v_cvt_pk_bf16_f32 v{w}, v{a+2*p}, v{a+2*p+1}")
                    unpack_lo(g, w + 1, w)
                    unpack_hi(g, w + 2, w)
                    unpack_lo(g, w + 3, z + p)
                    unpack_hi(g, w + 4, z + p)
                    g.e(f"v_add_f32 v{w+1}, v{w+1}, v{w+3}")
                    g.e(f"v_add_f32 v{w+2}, v{w+2}, v{w+4}")
                    g.e(f"v_cvt_pk_bf16_f32 v{z+p}, v{w+1}, v{w+2}")
                vo = vlast if nt == NT - 1 else voff + mt
                g.e(f"buffer_store_dwordx2 v[{z}:{z+1}], v{vo}, s[{S_O}:{S_O+3}], 0 offen offset:{nt*32}")
        vmax = w + 5
    epilogue(g, kname)
    vmax = max(vmax, gm.vend, 216)
    if kind == 'k4': vmax = 256
    assert vmax <= 256, vmax
    return g.text(), descriptor(kname, vmax), gm.lds_bytes


def wave_setup(g):
    g.e("v_and_b32 v1, 63, v0")
    g.e("v_lshrrev_b32 v2, 6, v0")
    g.e("s_nop 0")
    g.e(f"v_readfirstlane_b32 s{S_ROLE}, v2")
    g.e(f"s_and_b32 s{S_WAVE}, s{S_ROLE}, 3")
    g.e(f"s_lshr_b32 s{S_ROLE}, s{S_ROLE}, 2")


def xor_reduce(g, vals, vtmp, vaddr16, vaddr32):
    for va in (vaddr16, vaddr32):
        for i, v in enumerate(vals):
            g.e(f"ds_bpermute_b32 v{vtmp+i}, v{va}, v{v}")
        g.e("s_waitcnt lgkmcnt(0)")
        for i, v in enumerate(vals):
            g.e(f"v_add_f32 v{v}, v{v}, v{vtmp+i}")


def bf16_round(g, v, t):
    g.e(f"v_cvt_pk_bf16_f32 v{t}, v{v}, v{v}")
    g.e(f"v_lshlrev_b32 v{v}, 16, v{t}")


def ln_from_sums(g, vs, vq, n, vm, vr, t):
    g.e(f"v_mul_f32 v{vm}, {1.0/n!r}, v{vs}")
    g.e(f"v_mul_f32 v{vr}, {1.0/n!r}, v{vq}")
    g.e(f"v_fma_f32 v{vr}, -v{vm}, v{vm}, v{vr}")
    g.e(f"v_max_f32 v{vr}, 0, v{vr}")
    bf16_round(g, vm, t)
    bf16_round(g, vr, t)
    g.e(f"v_add_f32 v{vr}, 0x3727c5ac, v{vr}")
    bf16_round(g, vr, t)
    g.e(f"v_sqrt_f32 v{vr}, v{vr}")
    g.e("s_nop 0")
    bf16_round(g, vr, t)
    g.e(f"v_rcp_f32 v{vr}, v{vr}")
    g.e("s_nop 0")


GK1 = -2.0 * 1.4426950408889634 * 0.7978845608028654
GK2 = GK1 * 0.044715


def gelu_pair(g, x0, x1, vk1, vk2, t):
    assert x1 == x0 + 1 and x0 % 2 == 0 and t % 2 == 0
    k1e, k2e = vk1 & ~1, vk2 & ~1
    s1 = 1 if vk1 & 1 else 0
    s2 = 1 if vk2 & 1 else 0
    X = f"v[{x0}:{x0+1}]"
    Tt = f"v[{t}:{t+1}]"
    g.e(f"v_pk_mul_f32 {Tt}, {X}, {X}")
    g.e(f"v_pk_fma_f32 {Tt}, {Tt}, v[{k2e}:{k2e+1}], v[{k1e}:{k1e+1}] op_sel:[0,{s2},{s1}] op_sel_hi:[1,{s2},{s1}]")
    g.e(f"v_pk_mul_f32 {Tt}, {Tt}, {X}")
    g.e(f"v_exp_f32 v{t}, v{t}")
    g.e(f"v_exp_f32 v{t+1}, v{t+1}")
    g.e("s_nop 0")
    g.e(f"v_pk_add_f32 {Tt}, {Tt}, 1.0 op_sel_hi:[1,0]")
    g.e(f"v_rcp_f32 v{t}, v{t}")
    g.e(f"v_rcp_f32 v{t+1}, v{t+1}")
    g.e("s_nop 0")
    g.e(f"v_pk_mul_f32 {X}, {X}, {Tt}")


import struct
def fhex(x):
    return "0x%08x" % struct.unpack("<I", struct.pack("<f", x))[0]


def k3_kernel():
    kname = "k3_kernel"
    g = G()
    MT, NT, BN, NS = 2, 9, 144, 4
    lda, ldb = 1152, 288
    prologue(g, kname, 256)
    wave_setup(g)
    g.e(f"s_and_b32 s{S_T}, s2, 7")
    g.e(f"s_lshr_b32 s{S_T+1}, s2, 3")
    g.e(f"s_lshr_b32 s{S_M0}, s{S_T}, 1")
    g.e(f"s_lshl_b32 s{S_M0}, s{S_M0}, 2")
    g.e(f"s_and_b32 s{S_T+2}, s{S_T+1}, 3")
    g.e(f"s_add_u32 s{S_M0}, s{S_M0}, s{S_T+2}")
    g.e(f"s_lshl_b32 s{S_M0}, s{S_M0}, 7")
    S_P = S_T + 5
    g.e(f"s_and_b32 s{S_P}, s{S_T}, 1")
    g.e(f"s_lshl_b32 s{S_P}, s{S_P}, 3")
    g.e(f"s_lshr_b32 s{S_T+2}, s{S_T+1}, 2")
    g.e(f"s_add_u32 s{S_P}, s{S_P}, s{S_T+2}")
    g.e(f"s_mul_i32 s{S_N0}, s{S_P}, 288")
    g.e("s_waitcnt lgkmcnt(0)")
    srd(g, S_A, P_WS, H_OFF, H_SZ)
    srd(g, S_B, P_WS, TWIN_OFF, TWIN_SZ)
    srd(g, S_C, P_WS, CS_OFF, CS_SZ)
    srd(g, S_E, P_WS, HST_OFF, HST_SZ)
    srd(g, S_F, P_WS, ST_OFF, ST2_SZ)
    g.e(f"s_cmp_ge_u32 s{S_P}, 8")
    g.e(f"s_mov_b32 s{S_T+1}, {Z1_OFF}")
    g.e(f"s_cselect_b32 s{S_T}, {Z2_OFF}, s{S_T+1}")
    g.e(f"s_add_u32 s{S_O}, s{P_WS}, s{S_T}")
    g.e(f"s_addc_u32 s{S_O+1}, s{P_WS+1}, 0")
    g.e(f"s_and_b32 s{S_O+1}, s{S_O+1}, 0xffff")
    g.e(f"s_mov_b32 s{S_O+2}, {Z_SZ}")
    g.e(f"s_mov_b32 s{S_O+3}, 0x00020000")
    NACC = MT * NT * 4
    vacc = 8
    gm = Gemm(g, MT, NT, BN, NS, ldb, 'lds', vacc + NACC)
    gm.rotw = 0
    S_WR = S_T + 3
    S_CB = S_T + 4
    g.e(f"s_mul_i32 s{S_WR}, s{S_WAVE}, {16*MT}")
    g.e(f"s_add_u32 s{S_WR}, s{S_WR}, s{S_M0}")
    g.e(f"s_mul_i32 s{S_CB}, s{S_P}, {2*165888}")
    gm.setup(1, 2, col0_sgpr=S_CB)
    gm.setup_a(1, 2, lda, S_WR)
    T = 18
    SCR = gm.lds_bytes
    lds_total = SCR + 4 * 4608
    S_RS, S_TI = S_T + 8, S_T + 9
    g.e(f"s_cmp_ge_u32 s{S_P}, 8")
    g.e(f"s_movk_i32 s{S_T+1}, 4608")
    g.e(f"s_cselect_b32 s{S_RS}, 288, s{S_T+1}")
    g.e(f"s_movk_i32 s{S_T+1}, 288")
    g.e(f"s_cselect_b32 s{S_TI}, 589824, s{S_T+1}")
    g.e(f"s_and_b32 s{S_T}, s{S_P}, 7")
    g.e(f"s_lshl_b32 s{S_T+1}, s{S_TI}, 1")
    g.e(f"s_mul_i32 s{S_T}, s{S_T}, s{S_T+1}")
    g.e(f"s_mul_i32 s{S_T+1}, s{S_WR}, s{S_RS}")
    g.e(f"s_add_u32 s{S_T}, s{S_T}, s{S_T+1}")
    v = (gm.vend + 3) // 4 * 4
    vCS = v; v += 36
    vM = v; v += 2
    vR = v; v += 2
    vK = v; v += 2
    vq = v; v += 9
    v = (v + 1) // 2 * 2
    vrw = v; v += 12
    vWr, vRd, vCo = 4, 5, 6
    w = (v + 1) // 2 * 2
    assert w + 8 <= 256, w
    g.e(f"s_lshl_b32 s{S_T+2}, s{S_WAVE}, 8")
    for q in range(9):
        g.e(f"v_add_u32 v{w}, {q*64}, v1")
        g.e(f"v_mul_u32_u24 v{w+1}, 3641, v{w}")
        g.e(f"v_lshrrev_b32 v{w+1}, 16, v{w+1}")
        g.e(f"v_mul_u32_u24 v{w+2}, 18, v{w+1}")
        g.e(f"v_sub_u32 v{w}, v{w}, v{w+2}")
        g.e(f"v_mul_lo_u32 v{w+1}, v{w+1}, s{S_RS}")
        g.e(f"v_lshl_add_u32 v{w}, v{w}, 4, v{w+1}")
        g.e(f"v_add_u32 v{vq+q}, s{S_T}, v{w}")
    g.e(f"s_mul_i32 s{S_T+1}, s{S_WAVE}, 4608")
    g.e(f"s_add_u32 s{S_T+1}, s{S_T+1}, {SCR}")
    g.e(f"v_and_b32 v{w}, 15, v1")
    g.e(f"v_mul_u32_u24 v{w}, 288, v{w}")
    g.e(f"v_lshrrev_b32 v{w+1}, 4, v1")
    g.e(f"v_lshl_add_u32 v{w}, v{w+1}, 3, v{w}")
    g.e(f"v_add_u32 v{vWr}, s{S_T+1}, v{w}")
    g.e(f"v_lshlrev_b32 v{w}, 4, v1")
    g.e(f"v_add_u32 v{vRd}, s{S_T+1}, v{w}")
    g.e(f"v_mov_b32 v{vK}, {fhex(GK1)}")
    g.e(f"v_mov_b32 v{vK+1}, {fhex(GK2)}")

    vS = vrw
    if vS % 2: vS += 1
    vS2 = vS + 4
    assert vS2 % 2 == 0 and vS2 + 8 <= 256
    vP16, vP32 = 2, 3
    g.e(f"v_xor_b32 v{vP16}, 16, v1")
    g.e(f"v_lshlrev_b32 v{vP16}, 2, v{vP16}")
    g.e(f"v_xor_b32 v{vP32}, 32, v1")
    g.e(f"v_lshlrev_b32 v{vP32}, 2, v{vP32}")

    def gelu4(a, mt):
        for p_ in range(2):
            unpack_lo(g, w + 4, a + p_)
            unpack_hi(g, w + 5, a + p_)
            gelu_pair(g, w + 4, w + 5, vK, vK + 1, w)
            g.e(f"v_cvt_pk_bf16_f32 v{a+p_}, v{w+4}, v{w+5}")
            unpack_lo(g, w + 4, a + p_)
            unpack_hi(g, w + 5, a + p_)
            g.e(f"v_pk_add_f32 v[{vS2+4*mt}:{vS2+4*mt+1}], v[{vS2+4*mt}:{vS2+4*mt+1}], v[{w+4}:{w+5}]")
            g.e(f"v_pk_fma_f32 v[{vS2+4*mt+2}:{vS2+4*mt+3}], v[{w+4}:{w+5}], v[{w+4}:{w+5}], v[{vS2+4*mt+2}:{vS2+4*mt+3}]")

    def pieces(ps, base):
        for j, (mt, nt) in enumerate(ps):
            g.e(f"ds_read_b64 v[{base+2*j}:{base+2*j+1}], v{vWr} offset:{mt*16*288 + nt*32}")
        for j, (mt, nt) in enumerate(ps):
            g.e(f"s_waitcnt lgkmcnt({len(ps)-1})")
            gelu4(base + 2 * j, mt)
            g.e(f"ds_write_b64 v{vWr}, v[{base+2*j}:{base+2*j+1}] offset:{mt*16*288 + nt*32}")

    def store_tile(t, base):
        g.e("s_waitcnt lgkmcnt(0)")
        for q in range(9):
            g.e(f"ds_read_b128 v[{base+4*q}:{base+4*q+3}], v{vRd} offset:{q*1024}")
        so = f"s{S_TI}" if t else "0"
        for q in range(9):
            g.e(f"s_waitcnt lgkmcnt({8-q})")
            g.e(f"buffer_store_dwordx4 v[{base+4*q}:{base+4*q+3}], v{vq+q}, s[{S_O}:{S_O+3}], {so} offen")

    def flush_stats(mts, lab):
        g.e(f"s_cmp_lt_u32 s{S_P}, 8")
        g.e(f"s_cbranch_scc1 {lab}")
        for mt in mts:
            g.e(f"v_add_f32 v{vS+2*mt}, v{vS2+4*mt}, v{vS2+4*mt+1}")
            g.e(f"v_add_f32 v{vS+2*mt+1}, v{vS2+4*mt+2}, v{vS2+4*mt+3}")
        xor_reduce(g, [vS + 2 * mt + k_ for mt in mts for k_ in range(2)], w, vP16, vP32)
        g.e(f"v_and_b32 v{w}, 15, v1")
        g.e(f"v_add_u32 v{w}, s{S_WR}, v{w}")
        g.e(f"v_lshlrev_b32 v{w}, 3, v{w}")
        g.e("s_mov_b64 exec, 0xffff")
        for mt in mts:
            g.e(f"buffer_atomic_add_f32 v{vS+2*mt}, v{w}, s[{S_F}:{S_F+3}], 0 offen offset:{mt*128}")
            g.e(f"buffer_atomic_add_f32 v{vS+2*mt+1}, v{w}, s[{S_F}:{S_F+3}], 0 offen offset:{mt*128+4}")
        g.e("s_mov_b64 exec, -1")
        g.lab(lab)

    g.e(f"s_cmp_eq_u32 s{S_ROLE}, 0")
    g.e(f"s_cbranch_scc1 {kname}_comp")
    ROT3 = os.environ.get('ROT3', '0') == '1'
    if ROT3:
        g.e(f"s_lshr_b32 s{S_ROT}, s2, 3")
        g.e(f"s_mul_i32 s{S_J}, s{S_ROT}, 7282")
        g.e(f"s_lshr_b32 s{S_J}, s{S_J}, 16")
        g.e(f"s_mul_i32 s{S_J}, s{S_J}, 9")
        g.e(f"s_sub_u32 s{S_ROT}, s{S_ROT}, s{S_J}")
    def grp(i):
        t, ks = i // 9, i % 9
        if ROT3:
            g.e(f"s_add_u32 s{S_J}, s{S_ROT}, {ks}")
            g.e(f"s_sub_u32 s{S_KA}, s{S_J}, 9")
            g.e(f"s_cmp_ge_u32 s{S_J}, 9")
            g.e(f"s_cselect_b32 s{S_J}, s{S_KA}, s{S_J}")
            g.e(f"s_lshl_b32 s{S_KA}, s{S_J}, 7")
            g.e(f"s_mul_i32 s{S_KB}, s{S_J}, {64*ldb}")
            if t:
                g.e(f"s_add_u32 s{S_KB}, s{S_KB}, {t*165888}")
        else:
            g.e(f"s_mov_b32 s{S_KA}, {ks*128}")
            g.e(f"s_mov_b32 s{S_KB}, {ks*64*ldb + t*165888}")
        gm.issue(i % NS)
    for j in range(NS):
        grp(j)
    g.e(f"s_waitcnt vmcnt({(NS-1)*gm.G})")
    g.e("s_barrier")
    for i in range(T):
        last = min(i + NS - 1, T - 1)
        g.e(f"s_waitcnt vmcnt({max(last-(i+1),0)*gm.G})")
        g.e("s_barrier")
        if i + NS < T:
            grp(i + NS)
    g.e(f"s_branch {kname}_end")
    g.lab(f"{kname}_comp")
    g.e(f"v_and_b32 v{w}, 15, v1")
    g.e(f"v_add_u32 v{w}, s{S_WR}, v{w}")
    g.e(f"v_mul_u32_u24 v{vCo}, 64, v{w}")
    for mt in range(MT):
        for i in range(4):
            g.e(f"buffer_load_dwordx4 v[{vacc+mt*24+4*i}:{vacc+mt*24+4*i+3}], v{vCo}, s[{S_E}:{S_E+3}], 0 offen offset:{mt*16*64 + 16*i}")
    g.e(f"v_lshrrev_b32 v{w}, 4, v1")
    g.e(f"v_lshlrev_b32 v{w}, 4, v{w}")
    g.e(f"s_lshl_b32 s{S_T}, s{S_N0}, 2")
    g.e(f"v_add_u32 v{vCo}, s{S_T}, v{w}")
    for nt in range(NT):
        g.e(f"buffer_load_dwordx4 v[{vCS+4*nt}:{vCS+4*nt+3}], v{vCo}, s[{S_C}:{S_C+3}], 0 offen offset:{nt*64}")
    g.e("s_waitcnt vmcnt(9)")
    for mt in range(MT):
        b = vacc + mt * 24
        for i in range(1, 8):
            g.e(f"v_add_f32 v{b}, v{b}, v{b+2*i}")
            g.e(f"v_add_f32 v{b+1}, v{b+1}, v{b+2*i+1}")
        ln_from_sums(g, b, b + 1, 576, vM + mt, vR + mt, w)
        g.e(f"v_sub_f32 v{vM+mt}, 0, v{vM+mt}")
    for i in range(NACC):
        g.e(f"v_mov_b32 v{vacc+i}, 0")
    acc = lambda mt, nt: f"v[{vacc+(mt*NT+nt)*4}:{vacc+(mt*NT+nt)*4+3}]"
    g.e("s_barrier")
    for x in gm.reads(0, 0, 0):
        g.e(x)
    if 'stamp' in EXP:
        g.e("s_memrealtime s[92:93]")
    for i in range(T):
        s = i % NS
        g.e("s_waitcnt lgkmcnt(0)")
        gm.phase(0, lambda mt: gm.vA[0] + mt * 4, acc, gm.reads(s, 1, 1))
        g.e(f"s_waitcnt lgkmcnt(0)")
        g.e("s_barrier")
        gm.phase(1, lambda mt: gm.vA[1] + mt * 4, acc, gm.reads((s + 1) % NS, 0, 0) if i + 1 < T else [])
        if i % 9 == 8:
            t = i // 9
            g.e("s_nop 7")
            g.e("s_nop 1")
            if t == 0:
                g.e("s_waitcnt vmcnt(0)")
            else:
                g.e("s_waitcnt vmcnt(0)")
            for k_ in range(8):
                g.e(f"v_mov_b32 v{vS2+k_}, 0")
            so = f"s{S_TI}" if t else "0"
            for mt in range(MT):
                for nt in range(NT):
                    a = vacc + (mt * NT + nt) * 4
                    for r in (0, 2):
                        g.e(f"v_pk_fma_f32 v[{a+r}:{a+r+1}], v[{vCS+4*nt+r}:{vCS+4*nt+r+1}], v[{vM}:{vM+1}], v[{a+r}:{a+r+1}] op_sel:[0,{mt},0] op_sel_hi:[1,{mt},1]")
                    for r in (0, 2):
                        g.e(f"v_pk_mul_f32 v[{a+r}:{a+r+1}], v[{a+r}:{a+r+1}], v[{vR}:{vR+1}] op_sel:[0,{mt}] op_sel_hi:[1,{mt}]")
                    g.e(f"v_cvt_pk_bf16_f32 v{a}, v{a}, v{a+1}")
                    g.e(f"v_cvt_pk_bf16_f32 v{a+1}, v{a+2}, v{a+3}")
                    gelu4(a, mt)
                    g.e(f"ds_write_b64 v{vWr}, v[{a}:{a+1}] offset:{nt*32}")
                g.e("s_waitcnt lgkmcnt(0)")
                base = vacc + mt * 36
                for q in range(5):
                    if q == 4:
                        g.e("s_mov_b32 exec_hi, 0")
                    g.e(f"ds_read_b128 v[{base+4*q}:{base+4*q+3}], v{vRd} offset:{q*1024}")
                    if q == 4:
                        g.e("s_mov_b32 exec_hi, -1")
                for q in range(5):
                    g.e(f"s_waitcnt lgkmcnt({4-q})")
                    if q == 4:
                        g.e("s_mov_b32 exec_hi, 0")
                    g.e(f"buffer_store_dwordx4 v[{base+4*q}:{base+4*q+3}], v{vq+q}, s[{S_O}:{S_O+3}], {so} offen" + ("" if mt == 0 else ""))
                    if q == 4:
                        g.e("s_mov_b32 exec_hi, -1")
                if mt == 0:
                    g.e(f"s_lshl_b32 s{S_T}, s{S_RS}, 4")
                    for q in range(5):
                        g.e(f"v_add_u32 v{vq+q}, s{S_T}, v{vq+q}")
                else:
                    for q in range(5):
                        g.e(f"v_subrev_u32 v{vq+q}, s{S_T}, v{vq+q}")
            if t == 0:
                for nt in range(NT):
                    g.e(f"buffer_load_dwordx4 v[{vCS+4*nt}:{vCS+4*nt+3}], v{vCo}, s[{S_C}:{S_C+3}], 0 offen offset:{nt*64+576}")
            flush_stats([0, 1], f"{kname}_fs{t}")
            if t == 0:
                g.e("s_nop 1")
                for k_ in range(NACC):
                    g.e(f"v_mov_b32 v{vacc+k_}, 0")
    if 'stamp' in EXP:
        g.e("s_memrealtime s[94:95]")
    epilogue(g, kname)
    return g.text(), descriptor(kname, 256), lds_total


def kn_kernel():
    kname = "kn_kernel"
    g = G()
    prologue(g, kname, 256)
    g.e("s_waitcnt lgkmcnt(0)")
    srd(g, S_A, P_WS, Z2_OFF, Z_SZ)
    srd(g, S_O, P_WS, Z2N_OFF, Z_SZ)
    srd(g, S_F, P_WS, ST_OFF, ST2_SZ)
    g.e(f"s_mul_i32 s{S_M0}, s2, 36864")
    g.e(f"s_and_b32 s{S_T}, s2, 15")
    g.e(f"s_lshl_b32 s{S_T}, s{S_T}, 10")
    for q in range(9):
        g.e(f"v_add_u32 v2, {q*256}, v0")
        g.e(f"v_lshlrev_b32 v{10+q}, 4, v2")
        g.e(f"buffer_load_dwordx4 v[{40+4*q}:{43+4*q}], v{10+q}, s[{S_A}:{S_A+3}], s{S_M0} offen")
        g.e(f"v_mul_u32_u24 v3, 3641, v2")
        g.e(f"v_lshrrev_b32 v3, 16, v3")
        g.e(f"v_lshlrev_b32 v3, 3, v3")
        g.e(f"buffer_load_dwordx2 v[{20+2*q}:{21+2*q}], v3, s[{S_F}:{S_F+3}], s{S_T} offen")
    for c in range(2304):
        assert (c * 3641) >> 16 == c // 18
    for q in range(9):
        g.e(f"s_waitcnt vmcnt({16-q})")
        a = 20 + 2 * q
        ln_from_sums(g, a, a + 1, 2304, 6, 7, 4)
        r = 40 + 4 * q
        for d in range(4):
            unpack_lo(g, 2, r + d)
            unpack_hi(g, 3, r + d)
            g.e(f"v_sub_f32 v2, v2, v6")
            g.e(f"v_sub_f32 v3, v3, v6")
            g.e(f"v_cvt_pk_bf16_f32 v{r+d}, v2, v3")
            unpack_lo(g, 2, r + d)
            unpack_hi(g, 3, r + d)
            g.e(f"v_mul_f32 v2, v2, v7")
            g.e(f"v_mul_f32 v3, v3, v7")
            g.e(f"v_cvt_pk_bf16_f32 v{r+d}, v2, v3")
        g.e(f"buffer_store_dwordx4 v[{r}:{r+3}], v{10+q}, s[{S_O}:{S_O+3}], s{S_M0} offen")
    epilogue(g, kname)
    return g.text(), descriptor(kname, 80), 0


def k2_kernel():
    kname = "k2_kernel"
    g = G()
    NS = 4
    prologue(g, kname, 256)
    g.e("v_and_b32 v1, 63, v0")
    g.e("v_lshrrev_b32 v2, 6, v0")
    g.e("s_nop 0")
    S_W8 = 73
    g.e(f"v_readfirstlane_b32 s{S_W8}, v2")
    g.e(f"s_and_b32 s{S_WAVE}, s{S_W8}, 3")
    g.e(f"s_and_b32 s{S_T}, s2, 7")
    g.e(f"s_lshr_b32 s{S_T+1}, s2, 3")
    g.e(f"s_lshl_b32 s{S_M0}, s{S_T}, 3")
    g.e(f"s_lshr_b32 s{S_T+2}, s{S_T+1}, 2")
    g.e(f"s_add_u32 s{S_M0}, s{S_M0}, s{S_T+2}")
    S_CBI = S_T + 5
    g.e(f"s_and_b32 s{S_CBI}, s{S_T+1}, 3")
    g.e(f"s_mul_i32 s{S_N0}, s{S_CBI}, 144")
    g.e("s_waitcnt lgkmcnt(0)")
    srd(g, S_A, P_WS, PHIQ_OFF, PHIQ_SZ)
    srd(g, S_B, P_WS, TWO_OFF, TWO_SZ)
    srd(g, S_C, P_WS, ACC_OFF, ACC_SZ)
    srd(g, S_O, P_WS, H_OFF, H_SZ)
    srd(g, S_E, P_X, 0, H_SZ)
    srd(g, S_F, P_WS, HST_OFF, HST_SZ)
    OST = 1168
    OB = 0
    gm = Gemm(g, 1, 5, 144, NS, 288, 'ext', 8, lds_base=32 * OST)
    gm.rotw = 1
    S_CB = S_T + 4
    g.e(f"s_mul_i32 s{S_CB}, s{S_CBI}, 165888")
    gm.setup(1, 2, col0_sgpr=S_CB)
    g.e(f"s_lshl_b32 s{S_CB}, s{S_N0}, 1")
    S_NH = S_T + 6
    g.e(f"s_lshr_b32 s{S_NH}, s{S_WAVE}, 1")
    g.e(f"s_lshl_b32 s{S_T}, s{S_NH}, 7")
    for s_ in range(NS):
        g.e(f"v_add_u32 v{gm.vBaddr+s_}, s{S_T}, v{gm.vBaddr+s_}")
    g.e(f"s_mov_b32 s{S_KA}, 0")
    g.e(f"s_mov_b32 s{S_KB}, 0")
    v = 236
    vL16 = v; v += 1
    vL8 = v; v += 1
    vL8k = v; v += 1
    vOW = v; v += 1
    vAr = v; v += 1
    w = 242
    vZ = 250
    vF = gm.vB[0]
    vD = vF + 192
    assert vD + 12 <= 232
    vacc = gm.vend + 24
    g.e(f"v_lshlrev_b32 v{vL16}, 4, v1")
    g.e(f"v_and_b32 v{vL8}, 15, v1")
    g.e(f"v_lshlrev_b32 v{vL8}, 3, v{vL8}")
    g.e(f"v_lshlrev_b32 v{vL8k}, 3, v1")
    g.e(f"v_and_b32 v{w}, 15, v1")
    g.e(f"v_mul_u32_u24 v{w}, {OST}, v{w}")
    g.e(f"v_lshrrev_b32 v{w+1}, 4, v1")
    g.e(f"v_lshl_add_u32 v{vOW}, v{w+1}, 3, v{w}")
    g.e(f"s_mul_i32 s{S_T}, s{S_W8}, {4*36}")
    g.e(f"v_add_u32 v{vOW}, s{S_T}, v{vOW}")
    g.e(f"v_lshl_add_u32 v{vAr}, v{w+1}, 4, v{w}")
    g.e(f"s_and_b32 s{S_T}, s{S_WAVE}, 1")
    g.e(f"s_mul_i32 s{S_T}, s{S_T}, {16*OST}")
    g.e(f"v_add_u32 v{vAr}, s{S_T}, v{vAr}")
    S_PH = S_T + 7
    S_KV = S_T + 8
    g.e(f"s_mul_i32 s{S_PH}, s{S_M0}, {2*32*1152}")
    g.e(f"s_mul_i32 s{S_T}, s{S_W8}, {4*1152}")
    g.e(f"s_add_u32 s{S_PH}, s{S_PH}, s{S_T}")
    g.e(f"s_mul_i32 s{S_KV}, s{S_W8}, {4*3072}")
    g.e(f"s_cmp_ge_u32 s{S_W8}, 4")
    g.e(f"s_cbranch_scc1 {kname}_noring")
    for j in range(NS):
        gm.issue(j)
    g.lab(f"{kname}_noring")
    for h in range(4):
        b = vF + h * 24
        for pp in range(3):
            g.e(f"buffer_load_dwordx4 v[{b+4*pp}:{b+4*pp+3}], v{vL16}, s[{S_C}:{S_C+3}], s{S_KV} offen offset:{pp*1024}")
        for mt in range(2):
            g.e(f"s_add_u32 s{S_T}, s{S_PH}, {mt*32*1152}")
            r = b + 12 + 6 * mt
            g.e(f"buffer_load_dwordx4 v[{r}:{r+3}], v{vL16}, s[{S_A}:{S_A+3}], s{S_T} offen")
            g.e(f"buffer_load_dwordx2 v[{r+4}:{r+5}], v{vL8}, s[{S_A}:{S_A+3}], s{S_T} offen offset:1024")
        g.e(f"s_add_u32 s{S_KV}, s{S_KV}, 3072")
        g.e(f"s_add_u32 s{S_PH}, s{S_PH}, 1152")
    def mf(h, db):
        b = vF + h * 24
        z = vZ
        g.e(f"s_waitcnt vmcnt({(3-h)*7})")
        for kc in range(3):
            t = kc * 2 + 1
            g.e(f"v_mov_b32_dpp v{z+2*kc}, v{b+2*t} row_newbcast:2 row_mask:0xf bank_mask:0xf")
            g.e(f"v_mov_b32_dpp v{z+2*kc+1}, v{b+2*t+1} row_newbcast:2 row_mask:0xf bank_mask:0xf")
        g.e("s_nop 1")
        for kc in range(3):
            for mt in range(2):
                pb = b + 12 + 6 * mt + 2 * kc
                for o_, aop in enumerate([b + 2 * (kc * 2), b + 2 * (kc * 2 + 1), z + 2 * kc]):
                    d = db + 12 * mt + 4 * o_
                    c = "0" if kc == 0 else f"v[{d}:{d+3}]"
                    g.e(f"v_mfma_f32_16x16x16_bf16 v[{d}:{d+3}], v[{aop}:{aop+1}], v[{pb}:{pb+1}], {c}")
    def fin(h, db):
        for mt in range(2):
            D = db + 12 * mt
            g.e(f"v_cvt_pk_bf16_f32 v{w}, v{D+8}, v{D+8}")
            g.e(f"v_lshlrev_b32 v{D+8}, 16, v{w}")
            g.e(f"v_add_f32 v{D+8}, 0x358637bd, v{D+8}")
            g.e(f"v_cvt_pk_bf16_f32 v{w}, v{D+8}, v{D+8}")
            g.e(f"v_lshlrev_b32 v{D+8}, 16, v{w}")
            g.e(f"v_rcp_f32 v{D+8}, v{D+8}")
            for p_ in range(3):
                g.e(f"v_cvt_pk_bf16_f32 v{w+1+p_}, v{D+2*p_}, v{D+2*p_+1}")
            for p_ in range(3):
                unpack_lo(g, D + 2 * p_, w + 1 + p_)
                unpack_hi(g, D + 2 * p_ + 1, w + 1 + p_)
            for r in range(6):
                g.e(f"v_mul_f32 v{D+r}, v{D+r}, v{D+8}")
            for p_ in range(3):
                g.e(f"v_cvt_pk_bf16_f32 v{D+9+p_}, v{D+2*p_}, v{D+2*p_+1}")
            off = mt * 16 * OST + 36 * h
            g.e(f"ds_write_b32 v{vOW}, v{D+9} offset:{off}")
            g.e(f"ds_write_b32 v{vOW}, v{D+10} offset:{off+4}")
            g.e("s_mov_b64 exec, 0xffff")
            g.e(f"ds_write_b32 v{vOW}, v{D+11} offset:{off+32}")
            g.e("s_mov_b64 exec, -1")
    DB0 = 212
    def dbuf(h):
        return DB0 if h == 0 else vF + (h - 1) * 24
    mf(0, dbuf(0))
    for h in range(4):
        if h + 1 < 4:
            mf(h + 1, dbuf(h + 1))
        else:
            g.e("s_nop 7")
            g.e("s_nop 3")
        fin(h, dbuf(h))
    if 'stamp' in EXP:
        g.e("s_memrealtime s[92:93]")
    g.e(f"s_cmp_lt_u32 s{S_W8}, 4")
    g.e(f"s_cbranch_scc1 {kname}_gemm")
    g.e("s_waitcnt lgkmcnt(0)")
    g.e("s_barrier")
    g.e(f"s_branch {kname}_end")
    g.lab(f"{kname}_gemm")
    w = 120
    for i in range(20):
        g.e(f"v_mov_b32 v{vacc+i}, 0")
    vX = (gm.vend + 3) // 4 * 4
    vXo = w + 8
    g.e(f"s_and_b32 s{S_T}, s{S_WAVE}, 1")
    g.e(f"s_lshl_b32 s{S_T}, s{S_T}, 4")
    g.e(f"s_lshl_b32 s{S_T+1}, s{S_M0}, 5")
    g.e(f"s_add_u32 s{S_T}, s{S_T}, s{S_T+1}")
    g.e(f"v_and_b32 v{w}, 15, v1")
    g.e(f"v_add_u32 v{w}, s{S_T}, v{w}")
    g.e(f"v_mov_b32 v{w+9}, v{w}")
    g.e(f"v_mul_u32_u24 v{w}, 1152, v{w}")
    g.e(f"v_lshrrev_b32 v{w+1}, 4, v1")
    g.e(f"v_lshl_add_u32 v{w}, v{w+1}, 3, v{w}")
    g.e(f"s_lshl_b32 s{S_T+1}, s{S_NH}, 7")
    g.e(f"s_add_u32 s{S_T+1}, s{S_T+1}, s{S_CB}")
    g.e(f"v_add_u32 v{vXo}, s{S_T+1}, v{w}")
    for nt in range(5):
        g.e(f"buffer_load_dwordx2 v[{vX+2*nt}:{vX+2*nt+1}], v{vXo}, s[{S_E}:{S_E+3}], 0 offen offset:{32*nt}")
    vAf = vX + 12
    acc = lambda mt, nt: f"v[{vacc+nt*4}:{vacc+nt*4+3}]"
    def rd(i, ks, dst):
        r = vAf + dst * 4
        return [f"ds_read_b128 v[{r}:{r+3}], v{vAr} offset:{(i*64+ks*32)*2}"] + gm.reads(i % NS, ks, dst)
    T = 9
    g.e(f"s_waitcnt vmcnt({(NS-1)*gm.D + 5}) lgkmcnt(0)")
    g.e("s_barrier")
    if 'dbgo' in EXP:
        g.e("s_cmp_lg_u32 s2, 0")
        g.e(f"s_cbranch_scc1 {kname}_nodbg")
        srd(g, S_A, P_WS, 0x3C00000, 65536)
        for q in range(37):
            g.e(f"v_lshlrev_b32 v{w}, 2, v0")
            g.e(f"ds_read_b32 v{w+1}, v{w} offset:{q*1024}")
            g.e("s_waitcnt lgkmcnt(0)")
            g.e(f"buffer_store_dword v{w+1}, v{w}, s[{S_A}:{S_A+3}], 0 offen offset:0")
            g.e(f"s_add_u32 s{S_A}, s{S_A}, 1024")
            g.e(f"s_addc_u32 s{S_A+1}, s{S_A+1}, 0")
        g.lab(f"{kname}_nodbg")
    for x in rd(0, 0, 0):
        g.e(x)
    issued = NS
    for i in range(T):
        g.e("s_waitcnt lgkmcnt(0)")
        gm.phase(0, lambda mt: vAf, acc, rd(i, 1, 1))
        if i + 1 < T:
            young = (issued - 1 - (i + 1)) * gm.D + (5 if i + 1 <= NS - 1 else 0)
            g.e(f"s_waitcnt vmcnt({young}) lgkmcnt(0)")
        else:
            g.e("s_waitcnt lgkmcnt(0)")
        g.e("s_barrier")
        if issued < T:
            gm.issue(issued % NS)
            issued += 1
        gm.phase(1, lambda mt: vAf + 4, acc, rd(i + 1, 0, 0) if i + 1 < T else [])
    g.e("s_waitcnt vmcnt(0)")
    if 'stamp' in EXP:
        g.e("s_memrealtime s[94:95]")
    g.e("s_nop 7")
    vS = w + 10
    g.e(f"v_mov_b32 v{vS}, 0")
    g.e(f"v_mov_b32 v{vS+1}, 0")
    g.e(f"s_cmp_eq_u32 s{S_NH}, 1")
    g.e(f"s_cselect_b32 s{S_T}, 0, 1.0")
    for nt in range(5):
        a = vacc + 4 * nt
        for p_ in range(2):
            g.e(f"v_cvt_pk_bf16_f32 v{w}, v{a+2*p_}, v{a+2*p_+1}")
            unpack_lo(g, w + 1, w)
            unpack_hi(g, w + 2, w)
            unpack_lo(g, w + 3, vX + 2 * nt + p_)
            unpack_hi(g, w + 4, vX + 2 * nt + p_)
            g.e(f"v_add_f32 v{w+1}, v{w+1}, v{w+3}")
            g.e(f"v_add_f32 v{w+2}, v{w+2}, v{w+4}")
            g.e(f"v_cvt_pk_bf16_f32 v{vX+2*nt+p_}, v{w+1}, v{w+2}")
            unpack_lo(g, w + 1, vX + 2 * nt + p_)
            unpack_hi(g, w + 2, vX + 2 * nt + p_)
            if nt == 0:
                g.e(f"v_mul_f32 v{w+1}, s{S_T}, v{w+1}")
                g.e(f"v_mul_f32 v{w+2}, s{S_T}, v{w+2}")
            g.e(f"v_add_f32 v{vS}, v{vS}, v{w+1}")
            g.e(f"v_fmac_f32 v{vS+1}, v{w+1}, v{w+1}")
            g.e(f"v_add_f32 v{vS}, v{vS}, v{w+2}")
            g.e(f"v_fmac_f32 v{vS+1}, v{w+2}, v{w+2}")
        g.e(f"buffer_store_dwordx2 v[{vX+2*nt}:{vX+2*nt+1}], v{vXo}, s[{S_O}:{S_O+3}], 0 offen offset:{32*nt}")
    g.e(f"v_xor_b32 v{w+2}, 16, v1")
    g.e(f"v_lshlrev_b32 v{w+2}, 2, v{w+2}")
    g.e(f"v_xor_b32 v{w+3}, 32, v1")
    g.e(f"v_lshlrev_b32 v{w+3}, 2, v{w+3}")
    xor_reduce(g, [vS, vS + 1], w, w + 2, w + 3)
    g.e(f"s_lshl_b32 s{S_T}, s{S_CBI}, 1")
    g.e(f"s_add_u32 s{S_T}, s{S_T}, s{S_NH}")
    g.e(f"s_lshl_b32 s{S_T}, s{S_T}, 3")
    g.e(f"v_lshlrev_b32 v{w}, 6, v{w+9}")
    g.e(f"v_add_u32 v{w}, s{S_T}, v{w}")
    g.e("s_mov_b64 exec, 0xffff")
    g.e(f"buffer_store_dwordx2 v[{vS}:{vS+1}], v{w}, s[{S_F}:{S_F+3}], 0 offen")
    g.e("s_mov_b64 exec, -1")
    epilogue(g, kname)
    return g.text(), descriptor(kname, 256), 32 * OST + gm.lds_bytes


LOG2E = 1.4426950408889634


def retile_jobs(g):
    NTH = 49152
    g.e(f"s_mul_i32 s{S_T}, s2, 192")
    g.e(f"v_add_u32 v2, s{S_T}, v7")

    def map_tile(rowc, tilec, tilebytes, rowbytes):
        def f(vi):
            divmod_const(g, vi, rowc, 5, 7, S_T)
            divmod_const(g, 7, tilec, 6, 24, S_T)
            g.e(f"s_mov_b32 s{S_T}, {tilebytes}")
            g.e(f"v_mul_lo_u32 v6, v6, s{S_T}")
            g.e(f"v_mul_u32_u24 v5, {rowbytes}, v5")
            g.e("v_add_u32 v6, v6, v5")
            g.e("v_lshl_add_u32 v6, v24, 4, v6")
        return f
    jobs = [(P_WO, 576 * 1152, TWO_OFF, TWO_SZ, 576 * 72, map_tile(72, 18, 165888, 288), S_B, S_C),
            (P_WIN, 576 * 9216, TWIN_OFF, TWIN_SZ, 576 * 576, map_tile(576, 18, 165888, 288), 76, 80),
            (P_WOUT, 2304 * 1152, TWOUT_OFF, TWOUT_SZ, 2304 * 72, map_tile(72, 9, 368640, 160), 84, 88)]
    plan = []
    vi, vd = 28, 48
    for (ptr, ssz, doff, dsz, n, mp, ss, sd) in jobs:
        srd(g, ss, ptr, 0, ssz)
        srd(g, sd, P_WS, doff, dsz)
        nj = (n + NTH - 1) // NTH
        for j in range(nj):
            g.e(f"v_add_u32 v{vi}, {NTH*j}, v2")
            g.e(f"v_lshlrev_b32 v6, 4, v{vi}")
            g.e(f"buffer_load_dwordx4 v[{vd}:{vd+3}], v6, s[{ss}:{ss+3}], 0 offen")
            plan.append((vi, vd, sd, mp, n, (j + 1) * NTH > n))
            vi += 1
            vd += 4
    for (vi_, vd_, sd, mp, n, partial) in plan:
        mp(vi_)
        if partial:
            g.e(f"v_cmp_gt_u32 vcc, {n}, v{vi_}")
            g.e("v_mov_b32 v7, 0x40000000")
            g.e("s_nop 0")
            g.e("v_cndmask_b32 v6, v7, v6, vcc")
        g.e(f"v_mov_b32 v{vi_}, v6")
    nl = len(plan)
    for k_, (vi_, vd_, sd, mp, n, partial) in enumerate(plan):
        g.e(f"s_waitcnt vmcnt({nl-1})")
        g.e(f"buffer_store_dwordx4 v[{vd_}:{vd_+3}], v{vi_}, s[{sd}:{sd+3}], 0 offen")
    srd(g, S_A, P_WS, ST_OFF, ST2_SZ)
    for i in range(4):
        g.e(f"v_mov_b32 v{8+i}, 0")
    g.e("v_lshlrev_b32 v6, 4, v2")
    g.e(f"buffer_store_dwordx4 v[8:11], v6, s[{S_A}:{S_A+3}], 0 offen")


def k1_kernel():
    kname = "k1_kernel"
    g = G()
    MT, NT, BN, NS, T = 4, 5, 80, 3, 9
    prologue(g, kname, 256)
    wave_setup(g)
    S_H, S_RB = S_T + 5, S_T + 6
    g.e(f"s_and_b32 s{S_RB}, s2, 7")
    g.e(f"s_lshr_b32 s{S_H}, s2, 3")
    g.e(f"s_lshl_b32 s{S_M0}, s{S_RB}, 8")
    g.e("s_waitcnt lgkmcnt(0)")
    srd(g, S_A, P_X, 0, H_SZ)
    srd(g, S_B, P_WQKV, 0, 576 * 3456)
    srd(g, S_C, P_WPHI, 0, 32 * 648)
    srd(g, S_O, P_WS, PHIQ_OFF, PHIQ_SZ)
    srd(g, S_E, P_WS, KV3_OFF, KV3_SZ)
    srd(g, S_F, P_WS, ACC_OFF, ACC_SZ)
    vacc = 8
    vcs = vacc + 80
    vrs = vcs + 20
    vsq = vrs + 16
    vone = vsq + 16
    LB = 10496
    gm = Gemm(g, MT, NT, BN, NS, 3456, 'lds', vone + 4, lds_base=LB)
    assert gm.vend <= 256
    gm.rotw = 0
    S_WR, S_CB = S_T + 3, S_T + 4
    g.e(f"s_lshl_b32 s{S_WR}, s{S_WAVE}, 6")
    g.e(f"s_add_u32 s{S_WR}, s{S_WR}, s{S_M0}")
    g.e(f"s_mul_i32 s{S_CB}, s{S_H}, 36")

    def colmap(g, vc, t1, t3):
        g.e(f"v_cmp_eq_u32 vcc, 9, v{vc}")
        g.e("s_nop 1")
        g.e(f"v_cndmask_b32 v{vc}, v{vc}, 0, vcc")
        g.e(f"v_mul_u32_u24 v{t1}, 21846, v{vc}")
        g.e(f"v_lshrrev_b32 v{t1}, 16, v{t1}")
        g.e(f"v_mul_u32_u24 v{t3}, 3, v{t1}")
        g.e(f"v_sub_u32 v{vc}, v{vc}, v{t3}")
        g.e(f"v_lshlrev_b32 v{vc}, 4, v{vc}")
        g.e(f"v_mul_u32_u24 v{t1}, 1152, v{t1}")
        g.e(f"v_add_u32 v{vc}, v{vc}, v{t1}")
    for c in range(9):
        assert (c * 21846) >> 16 == c // 3
    gm.setup(1, 2, colmap=colmap, col0_sgpr=S_CB)
    gm.setup_a(1, 2, 1152, S_WR)
    RING = gm.lds_bytes
    QS = 136
    WB = 0
    lds_total = LB + RING
    g.e(f"s_cmp_eq_u32 s{S_ROLE}, 0")
    g.e(f"s_cbranch_scc1 {kname}_comp")
    def grp(i):
        g.e(f"s_mov_b32 s{S_KA}, {i*128}")
        g.e(f"s_mov_b32 s{S_KB}, {i*64*3456}")
        gm.issue(i % NS)
    for j in range(NS):
        grp(j)
    g.e(f"s_waitcnt vmcnt({(NS-1)*gm.G})")
    g.e("s_barrier")
    for i in range(T):
        last = min(i + NS - 1, T - 1)
        g.e(f"s_waitcnt vmcnt({max(last-(i+1),0)*gm.G})")
        g.e("s_barrier")
        if i + NS < T:
            grp(i + NS)
    g.e("s_barrier")
    g.e("v_and_b32 v7, 255, v0")
    g.e(f"s_cmp_eq_u32 s{S_WAVE}, 3")
    g.e(f"s_cbranch_scc1 {kname}_cs")
    retile_jobs(g)
    g.e(f"s_branch {kname}_end")
    g.lab(f"{kname}_cs")
    colsum_job(g, kname, 0)
    g.e(f"s_branch {kname}_end")
    g.lab(f"{kname}_comp")
    g.e(f"s_cmp_lg_u32 s{S_WAVE}, 0")
    g.e(f"s_cbranch_scc1 {kname}_now")
    g.e(f"s_mul_i32 s{S_T+1}, s{S_H}, 648")
    g.e("v_and_b32 v2, 15, v1")
    g.e("v_lshrrev_b32 v3, 4, v1")
    g.e("v_lshlrev_b32 v3, 2, v3")
    g.e("v_mov_b32 v7, 0x40000000")
    opn = 0
    for S_, base in ((0, 0), (1, 24)):
        for ch in range(2):
            tl = ch + S_
            for ft in range(2):
                for j in range(4):
                    r = vacc + opn * 4 + j
                    g.e(f"v_add_u32 v4, {16*tl + j - base}, v3")
                    g.e(f"v_add_u32 v5, {16*ft}, v2")
                    g.e(f"v_mul_u32_u24 v6, 18, v4")
                    g.e(f"v_add_u32 v6, v6, v5")
                    g.e(f"v_lshlrev_b32 v6, 1, v6")
                    g.e(f"v_cmp_gt_u32 vcc, 18, v4")
                    g.e(f"v_cmp_gt_u32 s[{S_T+8}:{S_T+9}], 18, v5")
                    g.e(f"s_and_b64 vcc, vcc, s[{S_T+8}:{S_T+9}]")
                    g.e(f"v_cndmask_b32 v6, v7, v6, vcc")
                    g.e(f"buffer_load_ushort v{r}, v6, s[{S_C}:{S_C+3}], s{S_T+1} offen")
                opn += 1
    g.e("s_waitcnt vmcnt(0)")
    g.e("v_lshlrev_b32 v2, 3, v1")
    for o_ in range(8):
        r = vacc + o_ * 4
        g.e(f"v_lshl_or_b32 v{r}, v{r+1}, 16, v{r}")
        g.e(f"v_lshl_or_b32 v{r+1}, v{r+3}, 16, v{r+2}")
        g.e(f"ds_write_b64 v2, v[{r}:{r+1}] offset:{o_*512}")
    for i in range(4):
        g.e(f"v_mov_b32 v{vacc+i}, 0")
    g.e("v_lshlrev_b32 v2, 4, v1")
    for i in range(7):
        g.e(f"ds_write_b128 v2, v[{vacc}:{vacc+3}] offset:{4096 + i*1024 if i < 6 else 4096 + 5376}")
    g.e("s_waitcnt lgkmcnt(0)")
    g.lab(f"{kname}_now")
    for i in range(80 + 20 + 32):
        g.e(f"v_mov_b32 v{vacc+i}, 0")
    for i in range(4):
        g.e(f"v_mov_b32 v{vone+i}, 0x3f803f80")
    acc = lambda mt, nt: f"v[{vacc+(mt*5+nt)*4}:{vacc+(mt*5+nt)*4+3}]"
    def extra(cur):
        for nt in range(5):
            b = gm.vB[cur] + nt * 4
            c = f"v[{vcs+4*nt}:{vcs+4*nt+3}]"
            g.e(f"v_mfma_f32_16x16x32_bf16 {c}, v[{b}:{b+3}], v[{vone}:{vone+3}], {c}")
        for mt in range(4):
            a = gm.vA[cur] + mt * 4
            c = f"v[{vrs+4*mt}:{vrs+4*mt+3}]"
            g.e(f"v_mfma_f32_16x16x32_bf16 {c}, v[{vone}:{vone+3}], v[{a}:{a+3}], {c}")
            c = f"v[{vsq+4*mt}:{vsq+4*mt+3}]"
            g.e(f"v_mfma_f32_16x16x32_bf16 {c}, v[{a}:{a+3}], v[{a}:{a+3}], {c}")
    g.e("s_barrier")
    for x in gm.reads(0, 0, 0):
        g.e(x)
    for i in range(T):
        s_ = i % NS
        g.e("s_waitcnt lgkmcnt(0)")
        gm.phase(0, lambda mt: gm.vA[0] + 4 * mt, acc, gm.reads(s_, 1, 1))
        extra(0)
        g.e(f"s_waitcnt lgkmcnt(0)")
        g.e("s_barrier")
        gm.phase(1, lambda mt: gm.vA[1] + 4 * mt, acc, gm.reads((s_ + 1) % NS, 0, 0) if i + 1 < T else [])
        extra(1)
    if 'stamp' in EXP:
        g.e("s_memrealtime s[92:93]")
    g.e("s_barrier")
    vt_ = gm.vB[0]
    g.e("v_and_b32 v2, 15, v1")
    g.e("v_lshrrev_b32 v3, 2, v2")
    g.e("v_lshl_add_u32 v3, v3, 4, v2")
    g.e("v_lshlrev_b32 v3, 2, v3")
    g.e("v_and_b32 v4, 3, v1")
    g.e("s_nop 4")
    for mt in range(4):
        q0 = vsq + 4 * mt
        g.e("v_cmp_eq_u32 vcc, 1, v4")
        g.e("s_nop 1")
        g.e(f"v_cndmask_b32 v{vt_+mt}, v{q0}, v{q0+1}, vcc")
        g.e("v_cmp_eq_u32 vcc, 2, v4")
        g.e("s_nop 1")
        g.e(f"v_cndmask_b32 v{vt_+mt}, v{vt_+mt}, v{q0+2}, vcc")
        g.e("v_cmp_eq_u32 vcc, 3, v4")
        g.e("s_nop 1")
        g.e(f"v_cndmask_b32 v{vt_+mt}, v{vt_+mt}, v{q0+3}, vcc")
    for mt in range(4):
        g.e(f"ds_bpermute_b32 v{vt_+4+mt}, v3, v{vt_+mt}")
    g.e("s_waitcnt lgkmcnt(0)")
    for mt in range(4):
        ln_from_sums(g, vrs + 4 * mt, vt_ + 4 + mt, 576, vt_ + 8 + 2 * mt, vt_ + 9 + 2 * mt, 5)
        g.e(f"v_sub_f32 v{vt_+8+2*mt}, 0, v{vt_+8+2*mt}")
    vmr = vt_ + 8
    for mt in range(4):
        for t in range(5):
            a = vacc + 4 * (mt * 5 + t)
            for r in (0, 2):
                g.e(f"v_pk_fma_f32 v[{a+r}:{a+r+1}], v[{vcs+4*t+r}:{vcs+4*t+r+1}], v[{vmr+2*mt}:{vmr+2*mt+1}], v[{a+r}:{a+r+1}] op_sel:[0,0,0] op_sel_hi:[1,0,1]")
            for r in (0, 2):
                g.e(f"v_pk_mul_f32 v[{a+r}:{a+r+1}], v[{a+r}:{a+r+1}], v[{vmr+2*mt}:{vmr+2*mt+1}] op_sel:[0,1] op_sel_hi:[1,1]")
            g.e(f"v_cvt_pk_bf16_f32 v{a}, v{a}, v{a+1}")
            g.e(f"v_cvt_pk_bf16_f32 v{a+1}, v{a+2}, v{a+3}")
    vWo = vcs
    g.e("v_lshlrev_b32 v2, 3, v1")
    for o_ in range(8):
        g.e(f"ds_read_b64 v[{vWo+2*o_}:{vWo+2*o_+1}], v2 offset:{o_*512}")
    g.e(f"s_mul_i32 s{S_T+2}, s{S_WAVE}, {64*160}")
    g.e(f"s_add_u32 s{S_T+2}, s{S_T+2}, {LB + 36864}")
    vz = vrs
    for i in range(4):
        g.e(f"v_mov_b32 v{vz+i}, 0")
    g.e("v_lshlrev_b32 v3, 4, v1")
    g.e(f"v_add_u32 v3, s{S_T+2}, v3")
    for i in range(10):
        g.e(f"ds_write_b128 v3, v[{vz}:{vz+3}] offset:{i*1024}")
    g.e("s_waitcnt lgkmcnt(0)")
    vPD = 144
    for mt in range(4):
        for S_ in range(2):
            for ft in range(2):
                d = vPD + ((mt * 2 + S_) * 2 + ft) * 4
                for ch in range(2):
                    tl = ch + S_
                    pa = vacc + 4 * (mt * 5 + tl)
                    wo = vWo + 2 * ((S_ * 2 + ch) * 2 + ft)
                    c = "0" if ch == 0 else f"v[{d}:{d+3}]"
                    g.e(f"v_mfma_f32_16x16x16_bf16 v[{d}:{d+3}], v[{wo}:{wo+1}], v[{pa}:{pa+1}], {c}")
    vMX = 208
    vTP = 224
    vL2 = 240
    vMask = 241
    vA16, vA32 = 242, 243
    g.e(f"v_mov_b32 v{vL2}, {fhex(LOG2E)}")
    g.e("v_cmp_gt_u32 vcc, 16, v1")
    g.e("s_nop 1")
    g.e(f"v_cndmask_b32 v{vMask}, 0, 1.0, vcc")
    g.e(f"v_xor_b32 v{vA16}, 16, v1")
    g.e(f"v_lshlrev_b32 v{vA16}, 2, v{vA16}")
    g.e(f"v_xor_b32 v{vA32}, 32, v1")
    g.e(f"v_lshlrev_b32 v{vA32}, 2, v{vA32}")
    g.e("s_nop 4")
    for st in range(8):
        d = vPD + st * 8
        for p_ in range(3):
            g.e(f"v_cvt_pk_bf16_f32 v{vTP}, v{d+2*p_}, v{d+2*p_+1}")
            unpack_lo(g, d + 2 * p_, vTP)
            unpack_hi(g, d + 2 * p_ + 1, vTP)
        g.e(f"v_cndmask_b32 v{d+4}, v{d}, v{d+4}, vcc")
        g.e(f"v_cndmask_b32 v{d+5}, v{d}, v{d+5}, vcc")
        g.e(f"v_max3_f32 v{vMX+2*st}, v{d}, v{d+1}, v{d+2}")
        g.e(f"v_max3_f32 v{vMX+2*st}, v{vMX+2*st}, v{d+3}, v{d+4}")
        g.e(f"v_max_f32 v{vMX+2*st}, v{vMX+2*st}, v{d+5}")
        g.e(f"v_min3_f32 v{vMX+2*st+1}, v{d}, v{d+1}, v{d+2}")
        g.e(f"v_min3_f32 v{vMX+2*st+1}, v{vMX+2*st+1}, v{d+3}, v{d+4}")
        g.e(f"v_min_f32 v{vMX+2*st+1}, v{vMX+2*st+1}, v{d+5}")
    for va in (vA16, vA32):
        for i in range(16):
            g.e(f"ds_bpermute_b32 v{vTP+i}, v{va}, v{vMX+i}")
        g.e("s_waitcnt lgkmcnt(0)")
        for st in range(8):
            g.e(f"v_max_f32 v{vMX+2*st}, v{vMX+2*st}, v{vTP+2*st}")
            g.e(f"v_min_f32 v{vMX+2*st+1}, v{vMX+2*st+1}, v{vTP+2*st+1}")
    vE2 = 88
    def e2reg(st, i):
        mt, S_ = st // 2, st % 2
        t = S_ * 3 + i // 2
        return None
    E2 = {}
    free = []
    for mt in range(4):
        for t in range(5):
            a = vacc + 4 * (mt * 5 + t)
            free += [a + 2, a + 3]
    free += list(range(vrs + 4, vrs + 16)) + list(range(vsq, vsq + 16))
    assert len(free) >= 48
    for st in range(8):
        for i in range(6):
            E2[(st, i)] = free[st * 6 + i]
    for st in range(8):
        d = vPD + st * 8
        g.e(f"v_mul_f32 v{vMX+2*st}, v{vMX+2*st}, v{vL2}")
        g.e(f"v_mul_f32 v{vMX+2*st+1}, v{vMX+2*st+1}, v{vL2}")
        for i in range(6):
            g.e(f"v_fma_f32 v{E2[(st,i)]}, -v{d+i}, v{vL2}, v{vMX+2*st+1}")
            g.e(f"v_fma_f32 v{d+i}, v{d+i}, v{vL2}, -v{vMX+2*st}")
        for i in range(6):
            g.e(f"v_exp_f32 v{E2[(st,i)]}, v{E2[(st,i)]}")
            g.e(f"v_exp_f32 v{d+i}, v{d+i}")
    g.e("s_nop 0")
    for st in range(8):
        d = vPD + st * 8
        for sg, R_ in ((0, [d + i for i in range(6)]), (1, [E2[(st, i)] for i in range(6)])):
            sreg = vMX + 2 * st + sg
            g.e(f"v_add_f32 v{sreg}, v{R_[4]}, v{R_[5]}")
            g.e(f"v_mul_f32 v{sreg}, v{sreg}, v{vMask}")
            for i in range(4):
                g.e(f"v_add_f32 v{sreg}, v{sreg}, v{R_[i]}")
    for va in (vA16, vA32):
        for i in range(16):
            g.e(f"ds_bpermute_b32 v{vTP+i}, v{va}, v{vMX+i}")
        g.e("s_waitcnt lgkmcnt(0)")
        for i in range(16):
            g.e(f"v_add_f32 v{vMX+i}, v{vMX+i}, v{vTP+i}")
    for i in range(16):
        g.e(f"v_rcp_f32 v{vMX+i}, v{vMX+i}")
    g.e("s_nop 0")
    g.e("v_lshlrev_b32 v4, 4, v1")
    g.e("v_and_b32 v5, 15, v1")
    g.e("v_lshlrev_b32 v5, 3, v5")
    g.e(f"s_lshl_b32 s{S_T}, s{S_RB}, 4")
    g.e(f"s_lshl_b32 s{S_T+1}, s{S_WAVE}, 2")
    g.e(f"s_add_u32 s{S_T}, s{S_T}, s{S_T+1}")
    g.e(f"s_lshl_b32 s{S_T}, s{S_T}, 5")
    g.e(f"s_add_u32 s{S_T}, s{S_T}, s{S_H}")
    g.e(f"s_mul_i32 s{S_T}, s{S_T}, 1152")
    g.e("v_and_b32 v6, 15, v1")
    g.e("v_mul_u32_u24 v6, 160, v6")
    g.e("v_lshrrev_b32 v7, 4, v1")
    g.e("v_lshl_add_u32 v6, v7, 3, v6")
    g.e(f"v_add_u32 v6, s{S_T+2}, v6")
    g.e(f"v_mov_b32 v{vL2}, 0x3f80")
    for st in range(8):
        mt, S_ = st // 2, st % 2
        d = vPD + st * 8
        for i in range(6):
            g.e(f"v_mul_f32 v{d+i}, v{d+i}, v{vMX+2*st}")
            g.e(f"v_mul_f32 v{E2[(st,i)]}, v{E2[(st,i)]}, v{vMX+2*st+1}")
        o = vTP + 8 * (st % 2)
        g.e(f"v_cvt_pk_bf16_f32 v{o}, v{d}, v{d+1}")
        g.e(f"v_cvt_pk_bf16_f32 v{o+1}, v{d+2}, v{d+3}")
        g.e(f"v_cvt_pk_bf16_f32 v{o+2}, v{E2[(st,0)]}, v{E2[(st,1)]}")
        g.e(f"v_cvt_pk_bf16_f32 v{o+3}, v{E2[(st,2)]}, v{E2[(st,3)]}")
        g.e(f"v_cvt_pk_bf16_f32 v{o+4}, v{d+4}, v{d+5}")
        g.e(f"v_cvt_pk_bf16_f32 v{o+5}, v{E2[(st,4)]}, v{E2[(st,5)]}")
        if S_ == 0:
            g.e(f"s_add_u32 s{S_T+1}, s{S_T}, {mt*32*1152}")
            g.e(f"buffer_store_dwordx4 v[{o}:{o+3}], v4, s[{S_O}:{S_O+3}], s{S_T+1} offen")
            g.e("s_mov_b64 exec, 0xffff")
            g.e(f"buffer_store_dwordx2 v[{o+4}:{o+5}], v5, s[{S_O}:{S_O+3}], s{S_T+1} offen offset:1024")
            g.e("s_mov_b64 exec, -1")
        else:
            ko = mt * 16 * 160
            g.e(f"ds_write_b64 v6, v[{o}:{o+1}] offset:{ko}")
            g.e(f"ds_write_b64 v6, v[{o+2}:{o+3}] offset:{ko+32}")
            pv = vacc + 4 * (mt * 5 + 3)
            g.e(f"ds_write_b64 v6, v[{pv}:{pv+1}] offset:{ko+96}")
            pv4 = vacc + 4 * (mt * 5 + 4)
            g.e(f"v_mov_b32 v{pv4+1}, v{vL2}")
            g.e("s_mov_b64 exec, 0xffff")
            g.e(f"ds_write_b64 v6, v[{o+4}:{o+5}] offset:{ko+64}")
            g.e(f"ds_write_b64 v6, v[{pv4}:{pv4+1}] offset:{ko+128}")
            g.e("s_mov_b64 exec, -1")
    g.e("v_lshrrev_b32 v2, 4, v1")
    g.e("v_lshlrev_b32 v2, 2, v2")
    g.e("v_bfe_u32 v3, v1, 2, 2")
    g.e("v_add_u32 v2, v2, v3")
    g.e("v_mul_u32_u24 v2, 160, v2")
    g.e("v_and_b32 v3, 3, v1")
    g.e("v_lshl_add_u32 v2, v3, 3, v2")
    g.e(f"v_add_u32 v2, s{S_T+2}, v2")
    g.e("s_waitcnt lgkmcnt(0)")
    vFr = 144
    for ks in range(2):
        for t in range(5):
            for half in range(2):
                r = vFr + (ks * 5 + t) * 4 + 2 * half
                g.e(f"ds_read_b64_tr_b16 v[{r}:{r+1}], v2 offset:{(32*ks+16*half)*160 + 32*t}")
    g.e("s_waitcnt lgkmcnt(0)")
    vKV = 8
    for ks in range(2):
        for mt in range(3):
            for nt in range(2):
                d = vKV + (mt * 2 + nt) * 4
                a = vFr + (ks * 5 + mt) * 4
                b = vFr + (ks * 5 + 3 + nt) * 4
                c = "0" if ks == 0 else f"v[{d}:{d+3}]"
                g.e(f"v_mfma_f32_16x16x32_bf16 v[{d}:{d+3}], v[{a}:{a+3}], v[{b}:{b+3}], {c}")
    if 'stamp' in EXP:
        g.e("s_memrealtime s[94:95]")
    RB2 = LB + 81920
    g.e(f"s_mul_i32 s{S_T+2}, s{S_WAVE}, 6144")
    g.e(f"s_add_u32 s{S_T+2}, s{S_T+2}, {RB2}")
    g.e("v_lshlrev_b32 v2, 4, v1")
    g.e(f"v_add_u32 v3, s{S_T+2}, v2")
    g.e("s_nop 6")
    for t in range(6):
        g.e(f"ds_write_b128 v3, v[{vKV+4*t}:{vKV+4*t+3}] offset:{t*1024}")
    g.e("s_waitcnt lgkmcnt(0)")
    g.e("v_mov_b32 v3, 0")
    g.e("v_mov_b32 v4, 1")
    g.e("s_mov_b64 exec, 1")
    g.e(f"ds_add_rtn_u32 v4, v3, v4 offset:{4096 + 6144}")
    g.e("s_waitcnt lgkmcnt(0)")
    g.e("s_mov_b64 exec, -1")
    g.e(f"v_readfirstlane_b32 s{S_T}, v4")
    g.e("s_nop 3")
    g.e(f"s_cmp_lg_u32 s{S_T}, 3")
    g.e(f"s_cbranch_scc1 {kname}_fin")
    g.e(f"v_add_u32 v3, {RB2}, v2")
    for wv in range(4):
        for t in range(6):
            r = 32 + (wv * 6 + t) * 4
            g.e(f"ds_read_b128 v[{r}:{r+3}], v3 offset:{wv*6144 + t*1024}")
    g.e("s_waitcnt lgkmcnt(0)")
    for i in range(24):
        g.e(f"v_add_f32 v{vKV+i}, v{32+i}, v{56+i}")
        g.e(f"v_add_f32 v{80+i}, v{80+i}, v{104+i}")
    for i in range(24):
        g.e(f"v_add_f32 v{vKV+i}, v{vKV+i}, v{80+i}")
    g.e(f"s_lshl_b32 s{S_T}, s{S_H}, 3")
    g.e(f"s_add_u32 s{S_T}, s{S_T}, s{S_RB}")
    g.e(f"s_mul_i32 s{S_T}, s{S_T}, 6144")
    for t in range(6):
        g.e(f"s_add_u32 s{S_T+1}, s{S_T}, {t*1024}")
        g.e(f"buffer_store_dwordx4 v[{vKV+4*t}:{vKV+4*t+3}], v2, s[{S_E}:{S_E+3}], s{S_T+1} offen sc1")
    g.e("s_waitcnt vmcnt(0)")
    srd(g, S_A, P_DBG, 0, 256)
    g.e(f"s_lshl_b32 s{S_T}, s{S_H}, 2")
    g.e(f"v_mov_b32 v3, s{S_T}")
    g.e("v_mov_b32 v4, 1")
    g.e("s_mov_b64 exec, 1")
    g.e(f"buffer_atomic_add v4, v3, s[{S_A}:{S_A+3}], 0 offen sc0")
    g.e("s_waitcnt vmcnt(0)")
    g.e("s_mov_b64 exec, -1")
    g.e(f"v_readfirstlane_b32 s{S_T}, v4")
    g.e("s_nop 3")
    g.e(f"s_cmp_lg_u32 s{S_T}, 7")
    g.e(f"s_cbranch_scc1 {kname}_fin")
    g.e(f"s_mul_i32 s{S_T}, s{S_H}, {8*6144}")
    for j in range(8):
        for t in range(6):
            r = 32 + (j * 6 + t) * 4
            g.e(f"s_add_u32 s{S_T+1}, s{S_T}, {j*6144 + t*1024}")
            g.e(f"buffer_load_dwordx4 v[{r}:{r+3}], v2, s[{S_E}:{S_E+3}], s{S_T+1} offen sc1")
    for j in range(8):
        g.e(f"s_waitcnt vmcnt({(7-j)*6})")
        for i in range(24):
            if j == 0:
                g.e(f"v_mov_b32 v{vKV+i}, v{32+i}")
            else:
                g.e(f"v_add_f32 v{vKV+i}, v{vKV+i}, v{32+j*24+i}")
    g.e(f"s_mul_i32 s{S_T}, s{S_H}, 3072")
    for pp in range(3):
        d = vKV + 8 * pp
        g.e(f"v_cvt_pk_bf16_f32 v{d}, v{d}, v{d+1}")
        g.e(f"v_cvt_pk_bf16_f32 v{d+1}, v{d+2}, v{d+3}")
        g.e(f"v_cvt_pk_bf16_f32 v{d+2}, v{d+4}, v{d+5}")
        g.e(f"v_cvt_pk_bf16_f32 v{d+3}, v{d+6}, v{d+7}")
        g.e(f"buffer_store_dwordx4 v[{d}:{d+3}], v2, s[{S_F}:{S_F+3}], s{S_T} offen offset:{pp*1024}")
    g.lab(f"{kname}_fin")
    epilogue(g, kname)
    return g.text(), descriptor(kname, 256), lds_total


def divmod_const(g, vx, d, vq, vr, st):
    magic = (2**32 + d - 1) // d
    g.e(f"s_mov_b32 s{st}, {magic}")
    g.e(f"v_mul_hi_u32 v{vq}, v{vx}, s{st}")
    g.e(f"v_mul_u32_u24 v{vr}, {d}, v{vq}")
    g.e(f"v_sub_u32 v{vr}, v{vx}, v{vr}")


def k0_kernel():
    kname = "k0_kernel"
    g = G()
    prologue(g, kname, 256)
    g.e("v_and_b32 v1, 63, v0")
    g.e("v_lshrrev_b32 v2, 6, v0")
    g.e("s_nop 0")
    g.e(f"v_readfirstlane_b32 s{S_WAVE}, v2")
    g.e(f"s_lshl_b32 s{S_T}, s2, 8")
    g.e(f"v_add_u32 v2, s{S_T}, v0")
    g.e("s_waitcnt lgkmcnt(0)")
    srd(g, S_A, P_X, 0, H_SZ)
    srd(g, S_O, P_WS, XN_OFF, H_SZ)
    g.e(f"s_lshl_b32 s{S_M0}, s2, 3")
    g.e(f"s_lshl_b32 s{S_T}, s{S_WAVE}, 1")
    g.e(f"s_add_u32 s{S_M0}, s{S_M0}, s{S_T}")
    g.e(f"s_mul_i32 s{S_M0}, s{S_M0}, 1152")
    g.e("v_lshlrev_b32 v3, 4, v1")
    g.e("v_add_u32 v4, 1024, v3")
    g.e("v_cmp_gt_u32 vcc, 8, v1")
    g.e("v_mov_b32 v5, 0x40000000")
    g.e("v_cndmask_b32 v4, v5, v4, vcc")
    for rr in range(2):
        g.e(f"s_add_u32 s{S_T}, s{S_M0}, {rr*1152}")
        g.e(f"buffer_load_dwordx4 v[{8+rr*8}:{11+rr*8}], v3, s[{S_A}:{S_A+3}], s{S_T} offen")
        g.e(f"buffer_load_dwordx4 v[{12+rr*8}:{15+rr*8}], v4, s[{S_A}:{S_A+3}], s{S_T} offen")

    def map_tile(rowc, tilec, tilebytes, rowbytes):
        def f(vi):
            divmod_const(g, vi, rowc, 5, 7, S_T)
            divmod_const(g, 7, tilec, 6, 24, S_T)
            g.e(f"s_mov_b32 s{S_T}, {tilebytes}")
            g.e(f"v_mul_lo_u32 v6, v6, s{S_T}")
            g.e(f"v_mul_u32_u24 v5, {rowbytes}, v5")
            g.e("v_add_u32 v6, v6, v5")
            g.e("v_lshl_add_u32 v6, v24, 4, v6")
        return f

    def map_qkv(vi):
        divmod_const(g, vi, 864, 5, 7, S_T)
        divmod_const(g, 7, 288, 25, 24, S_T)
        divmod_const(g, 24, 9, 6, 7, S_T)
        g.e(f"s_mov_b32 s{S_T}, 92160")
        g.e(f"v_mul_lo_u32 v6, v6, s{S_T}")
        g.e("v_mul_u32_u24 v5, 160, v5")
        g.e("v_add_u32 v6, v6, v5")
        g.e("v_mul_u32_u24 v25, 36, v25")
        g.e("v_add_u32 v6, v6, v25")
        g.e("v_lshl_add_u32 v6, v7, 2, v6")
    jobs = [(P_WIN, 576 * 9216, TWIN_OFF, TWIN_SZ, 576 * 576, map_tile(576, 18, 165888, 288), 4, 76, 80),
            (P_WOUT, 2304 * 1152, TWOUT_OFF, TWOUT_SZ, 2304 * 72, map_tile(72, 9, 368640, 160), 4, 84, 88),
            (P_WO, 576 * 1152, TWO_OFF, TWO_SZ, 576 * 72, map_tile(72, 18, 165888, 288), 4, S_B, S_C),
            (P_WQKV, 576 * 3456, TQKV_OFF, TQKV_SZ, 576 * 864, map_qkv, 1, S_E, S_F)]
    vi0, vd0 = 28, 48
    plan = []
    vi, vd = vi0, vd0
    for (ptr, ssz, doff, dsz, n, mp, wd, ss, sd) in jobs:
        srd(g, ss, ptr, 0, ssz)
        srd(g, sd, P_WS, doff, dsz)
        nj = (n + 65535) // 65536
        for j in range(nj):
            g.e(f"v_add_u32 v{vi}, {65536*j}, v2")
            g.e(f"v_lshlrev_b32 v6, {4 if wd == 4 else 2}, v{vi}")
            if wd == 4:
                g.e(f"buffer_load_dwordx4 v[{vd}:{vd+3}], v6, s[{ss}:{ss+3}], 0 offen")
            else:
                g.e(f"buffer_load_dword v{vd}, v6, s[{ss}:{ss+3}], 0 offen")
            plan.append((vi, vd, wd, sd, mp, n, (j + 1) * 65536 > n))
            vi += 1
            vd += wd
        vd = (vd + 3) // 4 * 4
    assert vi <= vd0 and vd <= 110
    nl = len(plan)
    for (vi_, vd_, wd, sd, mp, n, partial) in plan:
        mp(vi_)
        if partial:
            g.e(f"v_cmp_gt_u32 vcc, {n}, v{vi_}")
            g.e("v_mov_b32 v7, 0x40000000")
            g.e("s_nop 0")
            g.e("v_cndmask_b32 v6, v7, v6, vcc")
        g.e(f"v_mov_b32 v{vi_}, v6")
    g.e(f"s_waitcnt vmcnt({nl})")
    vs = 112
    g.e("v_mov_b32 v26, 0x3f803f80")
    for rr in range(2):
        g.e(f"v_mov_b32 v{vs+2*rr}, 0")
        g.e(f"v_mov_b32 v{vs+1+2*rr}, 0")
        for d in range(8):
            r = 8 + rr * 8 + d
            g.e(f"v_dot2_f32_bf16 v{vs+2*rr}, v{r}, v26, v{vs+2*rr}")
            g.e(f"v_dot2_f32_bf16 v{vs+1+2*rr}, v{r}, v{r}, v{vs+1+2*rr}")
    for sw in (0x041F, 0x081F, 0x101F, 0x201F, 0x401F):
        for i in range(4):
            g.e(f"ds_swizzle_b32 v{vs+4+i}, v{vs+i} offset:{sw}")
        g.e("s_waitcnt lgkmcnt(0)")
        for i in range(4):
            g.e(f"v_add_f32 v{vs+i}, v{vs+i}, v{vs+4+i}")
    g.e("v_xor_b32 v26, 32, v1")
    g.e("v_lshlrev_b32 v26, 2, v26")
    for i in range(4):
        g.e(f"ds_bpermute_b32 v{vs+4+i}, v26, v{vs+i}")
    g.e("s_waitcnt lgkmcnt(0)")
    for i in range(4):
        g.e(f"v_add_f32 v{vs+i}, v{vs+i}, v{vs+4+i}")
    for rr in range(2):
        ln_from_sums(g, vs + 2 * rr, vs + 1 + 2 * rr, 576, vs + 4 + 2 * rr, vs + 5 + 2 * rr, 26)
    for rr in range(2):
        vm, vr = vs + 4 + 2 * rr, vs + 5 + 2 * rr
        for d in range(8):
            r = 8 + rr * 8 + d
            unpack_lo(g, 26, r)
            unpack_hi(g, 27, r)
            g.e(f"v_sub_f32 v26, v26, v{vm}")
            g.e(f"v_sub_f32 v27, v27, v{vm}")
            g.e(f"v_cvt_pk_bf16_f32 v{r}, v26, v27")
            unpack_lo(g, 26, r)
            unpack_hi(g, 27, r)
            g.e(f"v_mul_f32 v26, v26, v{vr}")
            g.e(f"v_mul_f32 v27, v27, v{vr}")
            g.e(f"v_cvt_pk_bf16_f32 v{r}, v26, v27")
    for k_, (vi_, vd_, wd, sd, mp, n, partial) in enumerate(plan):
        g.e(f"s_waitcnt vmcnt({nl-1-k_})") if k_ == 0 else None
        if k_ == 0:
            g.e("s_waitcnt vmcnt(0)")
        if wd == 4:
            g.e(f"buffer_store_dwordx4 v[{vd_}:{vd_+3}], v{vi_}, s[{sd}:{sd+3}], 0 offen")
        else:
            g.e(f"buffer_store_dword v{vd_}, v{vi_}, s[{sd}:{sd+3}], 0 offen")
    for rr in range(2):
        g.e(f"s_add_u32 s{S_T}, s{S_M0}, {rr*1152}")
        g.e(f"buffer_store_dwordx4 v[{8+rr*8}:{11+rr*8}], v3, s[{S_O}:{S_O+3}], s{S_T} offen")
        g.e(f"buffer_store_dwordx4 v[{12+rr*8}:{15+rr*8}], v4, s[{S_O}:{S_O+3}], s{S_T} offen")
    srd(g, S_A, P_WS, ST_OFF, ST2_SZ)
    for i in range(4):
        g.e(f"v_mov_b32 v{vs+i}, 0")
    g.e("v_lshlrev_b32 v6, 4, v2")
    g.e(f"buffer_store_dwordx4 v[{vs}:{vs+3}], v6, s[{S_A}:{S_A+3}], 0 offen")
    epilogue(g, kname)
    return g.text(), descriptor(kname, 128), 0


def colsum_job(g, kname, first_wg):
    g.e(f"s_sub_u32 s{S_T}, s2, {first_wg}")
    g.e(f"s_cmp_ge_u32 s{S_T}, 144")
    g.e(f"s_cbranch_scc1 {kname}_end")
    srd(g, S_A, P_WIN, 0, 576 * 4608 * 2)
    srd(g, S_B, P_WS, CS_OFF, CS_SZ)
    g.e(f"s_lshl_b32 s{S_T}, s{S_T}, 6")
    g.e("v_lshrrev_b32 v2, 2, v1")
    g.e("v_mul_u32_u24 v2, 9216, v2")
    g.e("v_and_b32 v3, 3, v1")
    g.e("v_lshl_add_u32 v2, v3, 4, v2")
    g.e(f"v_add_u32 v2, s{S_T}, v2")
    for i in range(8):
        g.e(f"v_mov_b32 v{8+i}, 0")
    for q in range(36):
        g.e(f"s_mov_b32 s{S_T+1}, {q*16*9216}")
        g.e(f"buffer_load_dwordx4 v[{16+4*q}:{19+4*q}], v2, s[{S_A}:{S_A+3}], s{S_T+1} offen")
    for q in range(36):
        g.e(f"s_waitcnt vmcnt({35-q})")
        for d in range(4):
            unpack_lo(g, 4, 16 + 4 * q + d)
            unpack_hi(g, 5, 16 + 4 * q + d)
            g.e(f"v_add_f32 v{8+2*d}, v{8+2*d}, v4")
            g.e(f"v_add_f32 v{9+2*d}, v{9+2*d}, v5")
    for x in (4, 8, 16, 32):
        g.e(f"v_xor_b32 v4, {x}, v1")
        g.e("v_lshlrev_b32 v4, 2, v4")
        for i in range(8):
            g.e(f"ds_bpermute_b32 v{16+i}, v4, v{8+i}")
        g.e("s_waitcnt lgkmcnt(0)")
        for i in range(8):
            g.e(f"v_add_f32 v{8+i}, v{8+i}, v{16+i}")
    g.e(f"s_lshl_b32 s{S_T}, s{S_T}, 1")
    g.e("v_lshlrev_b32 v4, 5, v1")
    g.e(f"v_add_u32 v4, s{S_T}, v4")
    g.e("s_mov_b64 exec, 0xf")
    g.e(f"buffer_store_dwordx4 v[8:11], v4, s[{S_B}:{S_B+3}], 0 offen")
    g.e(f"buffer_store_dwordx4 v[12:15], v4, s[{S_B}:{S_B+3}], 0 offen offset:16")
    g.e("s_mov_b64 exec, -1")


HEADER = open(__file__.replace("dev/gen.py", "cdna_kernels/" + NAME + ".s.ref")).read().split("; Override launch")[0]


def build(which=None):
    kernels = []
    t, d, l = k1_kernel()
    kernels.append(("k1_kernel", 256, 512, l, t, d))
    t, d, l = k2_kernel()
    kernels.append(("k2_kernel", 256, 512, l, t, d))
    t, d, l = k3_kernel()
    kernels.append(("k3_kernel", 256, 512, l, t, d))
    t, d, l = kn_kernel()
    kernels.append(("kn_kernel", 256, 256, l, t, d))
    t, d, l = gemm_global_kernel("k4_kernel", 'k4')
    kernels.append(("k4_kernel", 256, 512, l, t, d))
    t, d, l = gemm_global_kernel("k5_kernel", 'k5')
    kernels.append(("k5_kernel", 256, 512, l, t, d))
    out = HEADER
    for (n, grid, blk, lds, t, d) in kernels:
        out += f"; @launch kernel={n} grid=({grid},1,1) block=({blk},1,1) lds={lds}\n"
    out += '.amdgcn_target "amdgcn-amd-amdhsa--gfx950"\n.text\n'
    for k in kernels:
        out += k[4]
    out += '.section .rodata,"a"\n'
    for k in kernels:
        out += k[5]
    return out


if __name__ == "__main__":
    path = sys.argv[1] if len(sys.argv) > 1 else f"cdna_kernels/{NAME}.s"
    txt = build()
    if os.environ.get('WT', 'sc1') != 'none':
        import re
        fl = os.environ.get('WT', 'sc1')
        txt = re.sub(r'(buffer_store_dwordx4 [^\n]*offen)((?: offset:\d+)?)\n', lambda m: m.group(1) + m.group(2) + ' ' + fl + '\n', txt)
    open(path, "w").write(txt)
    print("wrote", path)
```

```python
import sys, os
EXP = os.environ.get('EXP','')

NAME = "sequential_preLN__linear_kernel_hedgehog__mixer_gmlp__prompt"

PHIQ_OFF, PHIQ_SZ = 0x0000000, 128 * 32 * 1152 + 512
KVP_OFF, KVP_SZ = 0x0600000, 8 * 32 * 4 * 6 * 1024
KVT_OFF, KVT_SZ = 0x0C00000, 32 * 4608
H_OFF, H_SZ = 0x0D00000, 2048 * 576 * 2
Z1_OFF, Z_SZ = 0x1000000, 2048 * 2304 * 2
Z2_OFF = 0x1A00000
Z2N_OFF = 0x2400000
ST_OFF, ST_SZ = 0x2E00000, 2048 * 16 * 2 * 4
U_OFF = 0x3000000
HST_OFF, HST_SZ = 0x3A00000, 2048 * 8 * 8
CS_OFF, CS_SZ = 0x3B00000, 4608 * 4
XN_OFF = 0x0600000
ACC_OFF, ACC_SZ = 0x0C00000, 32 * 3072
KV3_OFF, KV3_SZ = 0x0900000, 32 * 8 * 6144
TQKV_OFF, TQKV_SZ = 0x4000000, 32 * 576 * 160
TWO_OFF, TWO_SZ = 0x4300000, 4 * 576 * 288
TWIN_OFF, TWIN_SZ = 0x4400000, 32 * 576 * 288
TWOUT_OFF, TWOUT_SZ = 0x4A00000, 8 * 2304 * 160
ST2_SZ = 2048 * 8

P_X, P_WQKV, P_WPHI, P_WO, P_BX, P_WIN, P_WSP, P_BSP = 4, 6, 8, 10, 12, 14, 16, 18
P_WOUT, P_OUT, P_DBG, P_WS = 20, 22, 24, 26
S_A, S_B, S_C, S_O, S_E, S_F = 28, 32, 36, 40, 44, 48


class G:
    def __init__(self):
        self.L = []

    def e(self, s):
        self.L.append("    " + s)

    def lab(self, s):
        self.L.append(s + ":")

    def c(self, s):
        self.L.append("    ; " + s)

    def text(self):
        return "\n".join(self.L) + "\n"


def srd(g, sd, ptr, off, size):
    if off:
        g.e(f"s_add_u32 s{sd}, s{ptr}, {off}")
        g.e(f"s_addc_u32 s{sd+1}, s{ptr+1}, 0")
        g.e(f"s_and_b32 s{sd+1}, s{sd+1}, 0xffff")
    else:
        g.e(f"s_mov_b32 s{sd}, s{ptr}")
        g.e(f"s_and_b32 s{sd+1}, s{ptr+1}, 0xffff")
    g.e(f"s_mov_b32 s{sd+2}, {size}")
    g.e(f"s_mov_b32 s{sd+3}, 0x00020000")


def prologue(g, kname, nwg):
    g.L.append(f".globl {kname}")
    g.L.append(".p2align 8")
    g.L.append(f".type {kname},@function")
    g.lab(kname)
    g.e(f"s_cmp_ge_u32 s2, {nwg}")
    g.e(f"s_cbranch_scc1 {kname}_end")
    g.e("s_load_dwordx16 s[4:19], s[0:1], 0")
    g.e("s_load_dwordx8 s[20:27], s[0:1], 64")
    if 'stamp' in EXP:
        g.e("s_memrealtime s[96:97]")
        g.e("s_mov_b32 s92, 0")
        g.e("s_mov_b32 s94, 0")


STAMP_OFF = 0x3F00000
def epilogue(g, kname):
    if 'stamp' in EXP:
        idx = int(kname[1]) if kname[1].isdigit() else 6
        g.e("s_waitcnt vmcnt(0) lgkmcnt(0)")
        g.e("s_memrealtime s[98:99]")
        srd(g, S_F, P_WS, STAMP_OFF + idx * 16384, 16384)
        g.e("s_waitcnt lgkmcnt(0)")
        g.e("v_mov_b32 v2, s96")
        g.e("v_mov_b32 v3, s98")
        g.e("v_mov_b32 v4, s92")
        g.e("v_mov_b32 v5, s94")
        g.e("s_lshl_b32 s96, s2, 4")
        g.e("v_mov_b32 v6, s96")
        g.e("v_cmp_eq_u32 vcc, 0, v0")
        g.e("s_and_saveexec_b64 s[96:97], vcc")
        g.e(f"buffer_store_dwordx4 v[2:5], v6, s[{S_F}:{S_F+3}], 0 offen")
    g.lab(f"{kname}_end")
    g.e("s_endpgm")


def descriptor(kname, vgpr, agpr=0, sgpr=100):
    acc = (vgpr + 3) // 4 * 4
    tot = acc + agpr if agpr else vgpr
    return f""".p2align 6
.amdhsa_kernel {kname}
  .amdhsa_next_free_vgpr {tot}
  .amdhsa_next_free_sgpr {sgpr}
  .amdhsa_accum_offset {acc}
  .amdhsa_group_segment_fixed_size 0
  .amdhsa_kernarg_size 96
  .amdhsa_user_sgpr_count 2
  .amdhsa_user_sgpr_kernarg_segment_ptr 1
  .amdhsa_system_sgpr_workgroup_id_x 1
.end_amdhsa_kernel
"""


def swap23(r):
    return (r & 3) | ((r & 4) << 1) | ((r & 8) >> 1)


S_WAVE = 52
S_WB = 53
S_KB = 54
S_KA = 55
S_LOOP = 56
S_M0 = 57
S_N0 = 58
S_WA = 59
S_T = 60
S_J = 70
S_ROT = 71
S_ROLE = 72


class Gemm:
    def __init__(self, g, MT, NT, BN, NS, ldb, a_mode, vbase, lds_base=0):
        self.g = g
        self.MT, self.NT, self.BN, self.NS = MT, NT, BN, NS
        self.ldb = ldb
        self.a_mode = a_mode
        self.S = BN * 2
        self.CPR = BN // 8
        self.STAGE = 64 * self.S
        self.ASTAGE = 4 * MT * 16 * 128 if a_mode == 'lds' else 0
        self.a_base = lds_base
        self.b_base = lds_base + NS * self.ASTAGE
        nch = 16 * self.CPR
        self.nfull = nch // 64
        self.half = (nch % 64) // 32
        assert nch % 32 == 0
        self.D = self.nfull + self.half
        self.DA = 2 * MT if a_mode == 'lds' else 0
        v = vbase
        self.vDma = v; v += self.D
        self.vBaddr = v; v += NS
        if a_mode == 'lds':
            self.vDmaA = v; v += self.DA
            self.a_multi = NS * self.ASTAGE > 65536
            self.vAaddr = v; v += 2 * (NS if self.a_multi else 1)
        v = (v + 3) // 4 * 4
        self.vB = [v, v + NT * 4]; v += 2 * NT * 4
        if a_mode == 'lds':
            self.vA = [v, v + MT * 4]; v += 2 * MT * 4
        self.G = (0 if 'nob' in EXP else self.D) + (0 if 'noa' in EXP else self.DA)
        self.vend = v
        self.rotw = 1
        self.lds_bytes = NS * (self.STAGE + self.ASTAGE)

    def setup(self, vlane, vt0, colmap=None, col0_sgpr=None):
        g = self.g
        t0, t1, t2, t3 = vt0, vt0 + 1, vt0 + 2, vt0 + 3
        magic = (65536 + self.CPR - 1) // self.CPR
        for c in range(self.D * 64):
            assert (c * magic) >> 16 == c // self.CPR
        g.e(f"s_mul_i32 s{S_WB}, s{S_WAVE}, {16*self.S}")
        g.e(f"s_add_u32 s{S_WB}, s{S_WB}, {self.b_base}")
        g.e(f"s_lshl_b32 s{S_T}, s{S_WAVE}, 4")
        for q in range(self.D):
            g.e(f"v_add_u32 v{t0}, {q*64}, v{vlane}")
            g.e(f"v_mul_u32_u24 v{t1}, {magic}, v{t0}")
            g.e(f"v_lshrrev_b32 v{t1}, 16, v{t1}")
            g.e(f"v_mul_u32_u24 v{t2}, {self.CPR}, v{t1}")
            g.e(f"v_sub_u32 v{t0}, v{t0}, v{t2}")
            g.e(f"v_and_b32 v{t2}, 3, v{t1}")
            g.e(f"v_and_b32 v{t3}, 4, v{t1}")
            g.e(f"v_lshl_or_b32 v{t2}, v{t3}, 1, v{t2}")
            g.e(f"v_and_b32 v{t3}, 8, v{t1}")
            g.e(f"v_lshrrev_b32 v{t3}, 1, v{t3}")
            g.e(f"v_or_b32 v{t2}, v{t2}, v{t3}")
            g.e(f"v_add_u32 v{t2}, s{S_T}, v{t2}")
            g.e(f"s_mov_b32 s{S_T+1}, {self.ldb}")
            g.e(f"v_mul_lo_u32 v{t2}, v{t2}, s{S_T+1}")
            if colmap is None:
                g.e(f"v_lshlrev_b32 v{t0}, 4, v{t0}")
            else:
                colmap(g, t0, t1, t3)
            g.e(f"v_add_u32 v{self.vDma+q}, v{t2}, v{t0}")
            if col0_sgpr is not None:
                g.e(f"v_add_u32 v{self.vDma+q}, s{col0_sgpr}, v{self.vDma+q}")
        g.e(f"v_lshrrev_b32 v{t0}, 5, v{vlane}")
        g.e(f"v_lshlrev_b32 v{t0}, 4, v{t0}")
        g.e(f"v_bfe_u32 v{t1}, v{vlane}, 4, 1")
        g.e(f"v_lshl_or_b32 v{t0}, v{t1}, 2, v{t0}")
        g.e(f"v_bfe_u32 v{t1}, v{vlane}, 2, 2")
        g.e(f"v_add_u32 v{t0}, v{t0}, v{t1}")
        g.e(f"v_mul_u32_u24 v{t0}, {self.S}, v{t0}")
        g.e(f"v_and_b32 v{t1}, 3, v{vlane}")
        g.e(f"v_lshl_add_u32 v{t0}, v{t1}, 3, v{t0}")
        for s in range(self.NS):
            g.e(f"v_add_u32 v{self.vBaddr+s}, {self.b_base + s*self.STAGE}, v{t0}")

    def setup_a(self, vlane, vt0, lda, srow0):
        g = self.g
        t0, t1, t2 = vt0, vt0 + 1, vt0 + 2
        g.e(f"s_mul_i32 s{S_WA}, s{S_WAVE}, {self.MT*16*128}")
        if self.a_base:
            g.e(f"s_add_u32 s{S_WA}, s{S_WA}, {self.a_base}")
        g.e(f"v_lshrrev_b32 v{t0}, 3, v{vlane}")
        g.e(f"v_and_b32 v{t1}, 7, v{vlane}")
        g.e(f"v_xor_b32 v{t1}, v{t1}, v{t0}")
        g.e(f"v_add_u32 v{t0}, s{srow0}, v{t0}")
        g.e(f"s_mov_b32 s{S_T}, {lda}")
        g.e(f"v_mul_lo_u32 v{t0}, v{t0}, s{S_T}")
        g.e(f"v_lshl_add_u32 v{t0}, v{t1}, 4, v{t0}")
        for q in range(self.DA):
            g.e(f"v_add_u32 v{self.vDmaA+q}, {8*q*lda}, v{t0}")
        g.e(f"v_and_b32 v{t0}, 15, v{vlane}")
        g.e(f"v_lshrrev_b32 v{t1}, 4, v{vlane}")
        g.e(f"v_and_b32 v{t2}, 7, v{vlane}")
        g.e(f"v_xor_b32 v{t1}, v{t1}, v{t2}")
        g.e(f"v_lshlrev_b32 v{t1}, 4, v{t1}")
        g.e(f"v_lshl_add_u32 v{t0}, v{t0}, 7, v{t1}")
        g.e(f"v_add_u32 v{self.vAaddr}, s{S_WA}, v{t0}")
        g.e(f"v_xor_b32 v{self.vAaddr+1}, 64, v{self.vAaddr}")
        if self.a_multi:
            for sl in range(1, self.NS):
                g.e(f"v_add_u32 v{self.vAaddr+2*sl}, {sl*self.ASTAGE}, v{self.vAaddr}")
                g.e(f"v_add_u32 v{self.vAaddr+2*sl+1}, {sl*self.ASTAGE}, v{self.vAaddr+1}")

    def dma_items(self, slot):
        items = []
        if self.a_mode == 'lds' and 'noa' not in EXP:
            for q in range(self.DA):
                pre = [f"s_add_u32 m0, s{S_WA}, {slot*self.ASTAGE + q*1024}"]
                main = [f"buffer_load_dwordx4 v{self.vDmaA+q}, s[{S_A}:{S_A+3}], s{S_KA} offen lds"]
                items.append((pre, main))
        if 'nob' not in EXP:
            for q in range(self.D):
                pre = [f"s_add_u32 m0, s{S_WB}, {slot*self.STAGE + q*1024}"]
                main = [f"buffer_load_dwordx4 v{self.vDma+q}, s[{S_B}:{S_B+3}], s{S_KB} offen lds"]
                if q == self.nfull:
                    main = ["s_mov_b32 exec_hi, 0"] + main + ["s_mov_b32 exec_hi, -1"]
                if q == self.D - 1:
                    main += self.next_k()
                items.append((pre, main))
        return items

    def next_k(self):
        W = self.rotw
        if W == 0:
            return []
        if W <= 1:
            return [f"s_add_u32 s{S_KB}, s{S_KB}, {64*self.ldb}", f"s_add_u32 s{S_KA}, s{S_KA}, 128"]
        return [f"s_add_u32 s{S_J}, s{S_J}, 1",
                f"s_add_u32 s{S_KA}, s{S_J}, s{S_ROT}",
                f"s_and_b32 s{S_KA}, s{S_KA}, {W-1}",
                f"s_and_b32 s{S_KB}, s{S_J}, {(~(W-1)) & 0xffff}",
                f"s_or_b32 s{S_KA}, s{S_KA}, s{S_KB}",
                f"s_mul_i32 s{S_KB}, s{S_KA}, {64*self.ldb}",
                f"s_lshl_b32 s{S_KA}, s{S_KA}, 7"]

    def init_k(self):
        g = self.g
        g.e(f"s_mov_b32 s{S_J}, 0")
        g.e(f"s_and_b32 s{S_KA}, s{S_ROT}, {max(self.rotw-1,0)}")
        g.e(f"s_mul_i32 s{S_KB}, s{S_KA}, {64*self.ldb}")
        g.e(f"s_lshl_b32 s{S_KA}, s{S_KA}, 7")

    def issue(self, slot):
        for pre, main in self.dma_items(slot):
            for x in pre:
                self.g.e(x)
            self.g.e("s_nop 0")
            for x in main:
                self.g.e(x)

    def reads(self, slot, ks, dst):
        out = []
        if 'nord' in EXP:
            return out
        if self.a_mode == 'lds':
            for mt in range(self.MT):
                r = self.vA[dst] + mt * 4
                if self.a_multi:
                    out.append(f"ds_read_b128 v[{r}:{r+3}], v{self.vAaddr+2*slot+ks} offset:{mt*2048}")
                else:
                    out.append(f"ds_read_b128 v[{r}:{r+3}], v{self.vAaddr+ks} offset:{slot*self.ASTAGE + mt*2048}")
        for nt in range(self.NT):
            for half in range(2):
                r = self.vB[dst] + nt * 4 + half * 2
                off = (32 * ks + 8 * half) * self.S + 32 * nt
                out.append(f"ds_read_b64_tr_b16 v[{r}:{r+1}], v{self.vBaddr+slot} offset:{off}")
        return out

    def phase(self, cur, afr, acc, rd, dma=None, first=0):
        g = self.g
        rd = list(rd)
        dma = list(dma or [])
        mf = [(mt, nt) for nt in range(self.NT) for mt in range(self.MT)]
        n = len(mf)
        pos = {}
        if dma:
            gap = max(2, (n - 1) // len(dma))
            for j, it in enumerate(dma):
                p = min(j * gap + first, n - 2)
                pos.setdefault(p, []).append(('pre', it))
        pend = []
        for i, (mt, nt) in enumerate(mf):
            for _ in range(2):
                if rd:
                    g.e(rd.pop(0))
            b = self.vB[cur] + nt * 4
            a = afr(mt)
            c = acc(mt, nt)
            if 'nomf' not in EXP:
                g.e(f"v_mfma_f32_16x16x32_bf16 {c}, v[{b}:{b+3}], v[{a}:{a+3}], {c}")
            for it in pend:
                for x in it[1]:
                    g.e(x)
            pend = []
            todo = pos.get(i, [])
            for k_, (_, it) in enumerate(todo):
                if k_ > 0:
                    g.e("s_nop 0")
                    for x in pend[0][1]:
                        g.e(x)
                    pend = []
                for x in it[0]:
                    g.e(x)
                pend.append(it)
        for it in pend:
            g.e("s_nop 0")
            for x in it[1]:
                g.e(x)
        for x in rd:
            g.e(x)


def unpack_lo(g, d, s):
    g.e(f"v_lshlrev_b32 v{d}, 16, v{s}")


def unpack_hi(g, d, s):
    g.e(f"v_and_b32 v{d}, 0xffff0000, v{s}")


def gemm_global_kernel(kname, kind):
    g = G()
    if kind == 'k4':
        MT, NT, BN, NS, KT = 2, 9, 144, int(os.environ.get('NS4','4')), 32
        lda, ldb = 4096, 288
        nwg = 256
    else:
        MT, NT, BN, NS, KT = 1, 5, 80, int(os.environ.get('NS5','4')), 36
        lda, ldb = 4608, 160
        nwg = 256
    if 'NWG' in os.environ: nwg = int(os.environ['NWG'])
    prologue(g, kname, nwg)
    g.e("v_and_b32 v1, 63, v0")
    g.e("v_lshrrev_b32 v2, 6, v0")
    g.e("s_nop 0")
    g.e(f"v_readfirstlane_b32 s{S_ROLE}, v2")
    g.e(f"s_and_b32 s{S_WAVE}, s{S_ROLE}, 3")
    g.e(f"s_lshr_b32 s{S_ROLE}, s{S_ROLE}, 2")
    g.e(f"s_and_b32 s{S_T}, s2, 7")
    g.e(f"s_lshr_b32 s{S_T+1}, s2, 3")
    if kind == 'k4':
        MAP = os.environ.get('MAP', '48')
        lm = {'48': 2, '84': 3, '216': 1, '162': 4}[MAP]
        ln_ = 5 - lm
        gm_ = 4 - lm
        g.e(f"s_and_b32 s{S_M0}, s{S_T}, {(1<<gm_)-1}")
        g.e(f"s_lshl_b32 s{S_M0}, s{S_M0}, {lm}")
        g.e(f"s_and_b32 s{S_ROT}, s{S_T+1}, {(1<<lm)-1}")
        g.e(f"s_add_u32 s{S_M0}, s{S_M0}, s{S_ROT}")
        g.e(f"s_lshl_b32 s{S_M0}, s{S_M0}, 7")
        g.e(f"s_lshr_b32 s{S_N0}, s{S_T}, {gm_}")
        g.e(f"s_lshl_b32 s{S_N0}, s{S_N0}, {ln_}")
        g.e(f"s_lshr_b32 s{S_T+2}, s{S_T+1}, {lm}")
        g.e(f"s_add_u32 s{S_N0}, s{S_N0}, s{S_T+2}")
        g.e(f"s_mul_i32 s{S_N0}, s{S_N0}, 144")
        ra, rb_ = map(int, os.environ.get('ROTAB', '1,2').split(','))
        g.e(f"s_mul_i32 s{S_ROT}, s{S_ROT}, {rb_}")
        g.e(f"s_mul_i32 s{S_T+2}, s{S_T+2}, {ra}")
        g.e(f"s_add_u32 s{S_ROT}, s{S_ROT}, s{S_T+2}")
    else:
        g.e(f"s_lshl_b32 s{S_M0}, s{S_T}, 2")
        g.e(f"s_lshr_b32 s{S_T+2}, s{S_T+1}, 3")
        g.e(f"s_add_u32 s{S_M0}, s{S_M0}, s{S_T+2}")
        g.e(f"s_lshl_b32 s{S_M0}, s{S_M0}, 6")
        g.e(f"s_and_b32 s{S_N0}, s{S_T+1}, 7")
        g.e(f"s_mul_i32 s{S_N0}, s{S_N0}, 72")
        g.e(f"s_lshr_b32 s{S_ROT}, s{S_T+1}, 1")
        g.e(f"s_add_u32 s{S_ROT}, s{S_ROT}, s{S_T+2}")
    if 'same' in EXP:
        g.e(f"s_mov_b32 s{S_M0}, 0")
        g.e(f"s_mov_b32 s{S_N0}, 0")
    g.e("s_waitcnt lgkmcnt(0)")
    if kind == 'k4':
        srd(g, S_A, P_WSP, 0, 2048 * 2048 * 2)
        srd(g, S_B, P_WS, Z2N_OFF, Z_SZ)
        srd(g, S_F, P_WS, ST_OFF, ST2_SZ)
        srd(g, S_C, P_WS, Z1_OFF, Z_SZ)
        srd(g, S_O, P_WS, U_OFF, Z_SZ)
        srd(g, S_E, P_BSP, 0, 4096)
    else:
        srd(g, S_A, P_WS, U_OFF, Z_SZ)
        srd(g, S_B, P_WS, TWOUT_OFF, TWOUT_SZ)
        srd(g, S_C, P_WS, H_OFF, H_SZ)
        srd(g, S_O, P_OUT, 0, H_SZ)
    NACC = MT * NT * 4
    vacc = 8
    gm = Gemm(g, MT, NT, BN, NS, ldb, 'lds', vacc + NACC)
    g.e(f"s_mul_i32 s{S_T+3}, s{S_WAVE}, {16*MT}")
    g.e(f"s_add_u32 s{S_T+3}, s{S_T+3}, s{S_M0}")
    g.e(f"s_lshl_b32 s{S_T+4}, s{S_N0}, 1")
    if kind == 'k4':
        g.e(f"s_mul_i32 s{S_T+5}, s{S_N0}, 4096")
        gm.setup(1, 2, col0_sgpr=S_T + 5)
    else:
        g.e(f"s_mul_i32 s{S_T+5}, s{S_N0}, 5120")
        gm.setup(1, 2, col0_sgpr=S_T + 5)
    gm.setup_a(1, 2, lda, S_T + 3)
    gm.rotw = int(os.environ.get('ROTW', '8'))
    if kind == 'k5': gm.rotw = min(gm.rotw, 4)
    gm.init_k()
    g.e(f"s_cmp_eq_u32 s{S_ROLE}, 0")
    g.e(f"s_cbranch_scc1 {kname}_comp")
    NORM4 = False
    REG4 = os.environ.get('REG4', '0') == '1'
    if kind == 'k4' and REG4:
        vst = gm.vB[0]
        vwa, vwb = 8, 9
        g.e(f"v_lshlrev_b32 v{vwa}, 4, v1")
        g.e(f"v_add_u32 v{vwb}, s{S_WB}, v{vwa}")
        g.e(f"v_add_u32 v{vwa}, s{S_WA}, v{vwa}")
        def issueR(rs):
            b = vst + rs * 36
            for q in range(4):
                g.e(f"buffer_load_dwordx4 v[{b+4*q}:{b+4*q+3}], v{gm.vDmaA+q}, s[{S_A}:{S_A+3}], s{S_KA} offen")
            for q in range(5):
                r = b + 16 + 4 * q
                if q == 4:
                    g.e("s_mov_b32 exec_hi, 0")
                g.e(f"buffer_load_dwordx4 v[{r}:{r+3}], v{gm.vDma+q}, s[{S_B}:{S_B+3}], s{S_KB} offen")
                if q == 4:
                    g.e("s_mov_b32 exec_hi, -1")
            for x in gm.next_k():
                g.e(x)
        def writeR(rs, slot):
            b = vst + rs * 36
            for q in range(4):
                g.e(f"ds_write_b128 v{vwa}, v[{b+4*q}:{b+4*q+3}] offset:{slot*gm.ASTAGE + q*1024}")
            for q in range(5):
                r = b + 16 + 4 * q
                if q == 4:
                    g.e("s_mov_b32 exec_hi, 0")
                g.e(f"ds_write_b128 v{vwb}, v[{r}:{r+3}] offset:{slot*gm.STAGE + q*1024}")
                if q == 4:
                    g.e("s_mov_b32 exec_hi, -1")
            g.e("s_waitcnt lgkmcnt(0)")
        for j in range(4):
            issueR(j)
        for k_ in range(3):
            g.e("s_waitcnt vmcnt(27)")
            writeR(k_, k_)
            issueR(k_)
            if k_ == 0:
                g.e("s_barrier")
        g.e(f"s_mov_b32 s{S_LOOP}, {KT//NS}")
        g.lab(f"{kname}_lloop")
        for s in range(NS):
            g.e("s_barrier")
            g.e("s_waitcnt vmcnt(27)")
            writeR((s + 3) % 4, (s + 3) % 4)
            issueR((s + 3) % 4)
        g.e(f"s_sub_u32 s{S_LOOP}, s{S_LOOP}, 1")
        g.e(f"s_cmp_lg_u32 s{S_LOOP}, 0")
        g.e(f"s_cbranch_scc1 {kname}_lloop")
        g.e("s_waitcnt vmcnt(0)")
        g.e("s_barrier")
        g.e(f"s_branch {kname}_end")
    elif kind == 'k4' and NORM4:
        TAB = gm.lds_bytes
        vst = gm.vB[0]
        vkl = vst + NS * 20
        vwa = vkl + 5
        vtb = vwa + 1
        tq = (vtb + 10 + 3) // 4 * 4
        g.e(f"s_lshl_b32 s{S_T}, s{S_WAVE}, 12")
        g.e(f"v_lshlrev_b32 v{tq}, 6, v1")
        g.e(f"v_add_u32 v{tq}, s{S_T}, v{tq}")
        for i in range(4):
            g.e(f"buffer_load_dwordx4 v[{tq+4+4*i}:{tq+7+4*i}], v{tq}, s[{S_F}:{S_F+3}], 0 offen offset:{16*i}")
        g.e(f"s_lshl_b32 s{S_T}, s{S_WAVE}, 4")
        for q in range(5):
            g.e(f"v_add_u32 v2, {q*64}, v1")
            g.e(f"v_mul_u32_u24 v3, 3641, v2")
            g.e(f"v_lshrrev_b32 v3, 16, v3")
            g.e(f"v_and_b32 v4, 3, v3")
            g.e(f"v_and_b32 v5, 4, v3")
            g.e(f"v_lshl_or_b32 v4, v5, 1, v4")
            g.e(f"v_and_b32 v5, 8, v3")
            g.e(f"v_lshrrev_b32 v5, 1, v5")
            g.e(f"v_or_b32 v4, v4, v5")
            g.e(f"v_add_u32 v4, s{S_T}, v4")
            g.e(f"v_and_b32 v4, 63, v4")
            g.e(f"v_lshlrev_b32 v4, 3, v4")
            g.e(f"v_add_u32 v{vkl+q}, {TAB}, v4")
        g.e(f"v_lshlrev_b32 v{vwa}, 4, v1")
        g.e(f"v_add_u32 v{vwa}, s{S_WB}, v{vwa}")
        S_KQ = 76
        S_JB, S_KB2 = 80, 81
        W_ = gm.rotw
        def issueA(slot):
            for pre, main in gm.dma_items(slot)[:gm.DA]:
                for x in pre: g.e(x)
                g.e("s_nop 0")
                for x in main: g.e(x)
            g.e(f"s_add_u32 s{S_J}, s{S_J}, 1")
            g.e(f"s_add_u32 s{S_KA}, s{S_J}, s{S_ROT}")
            g.e(f"s_and_b32 s{S_KA}, s{S_KA}, {W_-1}")
            g.e(f"s_and_b32 s{S_T}, s{S_J}, {(~(W_-1)) & 0xffff}")
            g.e(f"s_or_b32 s{S_KA}, s{S_KA}, s{S_T}")
            g.e(f"s_lshl_b32 s{S_KA}, s{S_KA}, 7")
        def issueB(slot):
            g.e(f"s_lshl_b32 s{S_KQ+slot}, s{S_KB2}, 9")
            g.e(f"s_mul_i32 s{S_KB}, s{S_KB2}, {64*gm.ldb}")
            for q in range(5):
                r = vst + slot * 20 + q * 4
                if q == 4:
                    g.e("s_mov_b32 exec_hi, 0")
                g.e(f"buffer_load_dwordx4 v[{r}:{r+3}], v{gm.vDma+q}, s[{S_B}:{S_B+3}], s{S_KB} offen")
                if q == 4:
                    g.e("s_mov_b32 exec_hi, -1")
            g.e(f"s_add_u32 s{S_JB}, s{S_JB}, 1")
            g.e(f"s_add_u32 s{S_KB2}, s{S_JB}, s{S_ROT}")
            g.e(f"s_and_b32 s{S_KB2}, s{S_KB2}, {W_-1}")
            g.e(f"s_and_b32 s{S_T}, s{S_JB}, {(~(W_-1)) & 0xffff}")
            g.e(f"s_or_b32 s{S_KB2}, s{S_KB2}, s{S_T}")
        def pre4(slot):
            for q in range(5):
                g.e(f"v_add_u32 v2, s{S_KQ+slot}, v{vkl+q}")
                g.e(f"ds_read_b64 v[{vtb+2*q}:{vtb+2*q+1}], v2")
        def norm4(slot):
            g.e("s_waitcnt lgkmcnt(0)")
            for q in range(5):
                r = vst + slot * 20 + q * 4
                for d in range(4):
                    unpack_lo(g, 2, r + d)
                    unpack_hi(g, 3, r + d)
                    g.e(f"v_pk_fma_f32 v[2:3], v[2:3], v[{vtb+2*q}:{vtb+2*q+1}], v[{vtb+2*q}:{vtb+2*q+1}] op_sel:[0,1,0] op_sel_hi:[1,1,0]")
                    g.e(f"v_cvt_pk_bf16_f32 v{r+d}, v2, v3")
                if q == 4:
                    g.e("s_mov_b32 exec_hi, 0")
                g.e(f"ds_write_b128 v{vwa}, v[{r}:{r+3}] offset:{slot*gm.STAGE + q*1024}")
                if q == 4:
                    g.e("s_mov_b32 exec_hi, -1")
            g.e("s_waitcnt lgkmcnt(0)")
        g.e(f"s_mov_b32 s{S_JB}, 0")
        g.e(f"s_and_b32 s{S_KB2}, s{S_ROT}, {W_-1}")
        issueB(0)
        for j in range(NS - 1):
            issueA(j)
            issueB(j + 1)
        g.e(f"s_waitcnt vmcnt({5 + (NS-1)*9})")
        for i in range(8):
            a_ = tq + 4 + 2 * i
            ln_from_sums(g, a_, a_ + 1, 2304, 4, 5, 6)
            g.e(f"v_mul_f32 v4, v4, v5")
            g.e(f"v_sub_f32 v{a_}, 0, v4")
            g.e(f"v_mov_b32 v{a_+1}, v5")
        g.e(f"v_add_u32 v{tq}, {TAB}, v{tq}")
        for i in range(4):
            g.e(f"ds_write_b128 v{tq}, v[{tq+4+4*i}:{tq+7+4*i}] offset:{16*i}")
        g.e("s_waitcnt lgkmcnt(0)")
        g.e("s_barrier")
        pre4(0)
        g.e(f"s_waitcnt vmcnt({(NS-1)*9})")
        norm4(0)
        issueA(NS - 1)
        issueB(0)
        pre4(1)
        g.e(f"s_waitcnt vmcnt({(NS-1)*9})")
        norm4(1)
        g.e("s_barrier")
        g.e(f"s_mov_b32 s{S_LOOP}, {KT//NS}")
        g.lab(f"{kname}_lloop")
        for s in range(NS):
            g.e(f"s_waitcnt vmcnt({(NS-2)*9 + 5})")
            g.e("s_barrier")
            issueA(s)
            issueB((s + 1) % NS)
            pre4((s + 2) % NS)
            g.e(f"s_waitcnt vmcnt({(NS-1)*9})")
            norm4((s + 2) % NS)
        g.e(f"s_sub_u32 s{S_LOOP}, s{S_LOOP}, 1")
        g.e(f"s_cmp_lg_u32 s{S_LOOP}, 0")
        g.e(f"s_cbranch_scc1 {kname}_lloop")
        g.e("s_waitcnt vmcnt(0)")
        g.e("s_barrier")
        g.e(f"s_branch {kname}_end")
    else:
        for j in range(NS):
            gm.issue(j)
        g.e(f"s_waitcnt vmcnt({(NS-1)*gm.G})")
        g.e("s_barrier")
        g.e(f"s_mov_b32 s{S_LOOP}, {KT//NS}")
        g.lab(f"{kname}_lloop")
        for s in range(NS):
            g.e(f"s_waitcnt vmcnt({(NS-2)*gm.G})")
            g.e("s_barrier")
            gm.issue(s)
        g.e(f"s_sub_u32 s{S_LOOP}, s{S_LOOP}, 1")
        g.e(f"s_cmp_lg_u32 s{S_LOOP}, 0")
        g.e(f"s_cbranch_scc1 {kname}_lloop")
        g.e("s_waitcnt vmcnt(0)")
        if kind == 'k4':
            g.e("s_barrier")
        g.e(f"s_branch {kname}_end")
    g.lab(f"{kname}_comp")
    if kind == 'k4':
        K4_VB = (gm.vend + 1) // 2 * 2
        K4_VQ = K4_VB + 2
        K4_VZ = (K4_VQ + 9 + 3) // 4 * 4
        K4_W = K4_VZ + 36
        assert K4_W + 6 <= 256
        w = K4_W
        g.e(f"v_and_b32 v{w+4}, 15, v1")
        g.e(f"v_add_u32 v{w+4}, s{S_T+3}, v{w+4}")
        for mt in range(MT):
            g.e(f"v_add_u32 v{w+3}, {16*mt}, v{w+4}")
            g.e(f"v_lshlrev_b32 v{w+3}, 1, v{w+3}")
            g.e(f"buffer_load_ushort v{K4_VB+mt}, v{w+3}, s[{S_E}:{S_E+3}], 0 offen")
        g.e(f"s_mul_i32 s{S_T}, s{S_T+3}, 4608")
        g.e(f"s_add_u32 s{S_T}, s{S_T}, s{S_T+4}")
        for q in range(9):
            g.e(f"v_add_u32 v{w}, {q*64}, v1")
            g.e(f"v_mul_u32_u24 v{w+1}, 3641, v{w}")
            g.e(f"v_lshrrev_b32 v{w+1}, 16, v{w+1}")
            g.e(f"v_mul_u32_u24 v{w+2}, 18, v{w+1}")
            g.e(f"v_sub_u32 v{w}, v{w}, v{w+2}")
            g.e(f"v_mul_u32_u24 v{w+1}, 4608, v{w+1}")
            g.e(f"v_lshl_add_u32 v{w}, v{w}, 4, v{w+1}")
            g.e(f"v_add_u32 v{K4_VQ+q}, s{S_T}, v{w}")
    for i in range(NACC):
        g.e(f"v_mov_b32 v{vacc+i}, 0")
    acc = lambda mt, nt: f"v[{vacc+(mt*NT+nt)*4}:{vacc+(mt*NT+nt)*4+3}]"
    if kind == 'k4' and NORM4:
        g.e("s_barrier")
    g.e("s_barrier")
    for x in gm.reads(0, 0, 0):
        g.e(x)
    if 'stamp' in EXP:
        g.e("s_memrealtime s[92:93]")
    g.e(f"s_mov_b32 s{S_LOOP}, {KT//NS}")
    g.lab(f"{kname}_loop")
    if kind == 'k4':
        g.e(f"s_cmp_lg_u32 s{S_LOOP}, 2")
        g.e(f"s_cbranch_scc1 {kname}_noz")
        for q in range(9):
            g.e(f"buffer_load_dwordx4 v[{K4_VZ+4*q}:{K4_VZ+4*q+3}], v{K4_VQ+q}, s[{S_C}:{S_C+3}], 0 offen")
        g.lab(f"{kname}_noz")
    for s in range(NS):
        g.e("s_waitcnt lgkmcnt(0)")
        gm.phase(0, lambda mt: gm.vA[0] + mt * 4, acc, gm.reads(s, 1, 1))
        g.e(f"s_waitcnt lgkmcnt(0)")
        g.e("s_barrier")
        gm.phase(1, lambda mt: gm.vA[1] + mt * 4, acc, gm.reads((s + 1) % NS, 0, 0))
    g.e(f"s_sub_u32 s{S_LOOP}, s{S_LOOP}, 1")
    g.e(f"s_cmp_lg_u32 s{S_LOOP}, 0")
    g.e(f"s_cbranch_scc1 {kname}_loop")
    g.e("s_waitcnt vmcnt(0) lgkmcnt(0)")
    if 'stamp' in EXP:
        g.e("s_memrealtime s[94:95]")
    vt = gm.vB[0]
    voff = vt
    vtmp = vt + 4
    ldc = 4608 if kind == 'k4' else 1152
    g.e(f"v_and_b32 v{vtmp}, 15, v1")
    g.e(f"v_add_u32 v{vtmp}, s{S_T+3}, v{vtmp}")
    g.e(f"s_mov_b32 s{S_T}, {ldc}")
    g.e(f"v_mul_lo_u32 v{vtmp+1}, v{vtmp}, s{S_T}")
    g.e(f"v_lshrrev_b32 v{vtmp+2}, 4, v1")
    g.e(f"v_lshl_add_u32 v{vtmp+1}, v{vtmp+2}, 3, v{vtmp+1}")
    g.e(f"v_add_u32 v{vtmp+1}, s{S_T+4}, v{vtmp+1}")
    for mt in range(MT):
        g.e(f"v_add_u32 v{voff+mt}, {16*mt*ldc}, v{vtmp+1}")
    if kind == 'k4':
        vb, vq, vz, w = K4_VB, K4_VQ, K4_VZ, K4_W
        g.e("s_barrier")
        g.e(f"s_mul_i32 s{S_T+1}, s{S_WAVE}, 9216")
        g.e(f"v_and_b32 v{w}, 15, v1")
        g.e(f"v_mul_u32_u24 v{w}, 288, v{w}")
        g.e(f"v_lshrrev_b32 v{w+1}, 4, v1")
        g.e(f"v_lshl_add_u32 v{w}, v{w+1}, 3, v{w}")
        g.e(f"v_add_u32 v{voff}, s{S_T+1}, v{w}")
        g.e(f"v_lshlrev_b32 v{w}, 4, v1")
        g.e(f"v_add_u32 v{voff+1}, s{S_T+1}, v{w}")
        for mt in range(MT):
            g.e(f"v_lshlrev_b32 v{vb+mt}, 16, v{vb+mt}")
        for mt in range(MT):
            for nt in range(NT):
                a = vacc + (mt * NT + nt) * 4
                for p in range(2):
                    g.e(f"v_cvt_pk_bf16_f32 v{w}, v{a+2*p}, v{a+2*p+1}")
                    unpack_lo(g, w + 2, w)
                    unpack_hi(g, w + 3, w)
                    g.e(f"v_pk_add_f32 v[{w+2}:{w+3}], v[{w+2}:{w+3}], v[{vb}:{vb+1}] op_sel:[0,{mt}] op_sel_hi:[1,{mt}]")
                    g.e(f"v_cvt_pk_bf16_f32 v{a+p}, v{w+2}, v{w+3}")
                g.e(f"ds_write_b64 v{voff}, v[{a}:{a+1}] offset:{mt*16*288 + nt*32}")
        g.e("s_waitcnt lgkmcnt(0)")
        for q in range(9):
            g.e(f"ds_read_b128 v[{vacc+4*q}:{vacc+4*q+3}], v{voff+1} offset:{q*1024}")
        for q in range(9):
            g.e(f"s_waitcnt lgkmcnt({8-q})")
            for d in range(4):
                gq = vacc + 4 * q + d
                z = vz + 4 * q + d
                unpack_lo(g, w + 2, gq)
                unpack_hi(g, w + 3, gq)
                unpack_lo(g, w + 4, z)
                unpack_hi(g, w + 5, z)
                g.e(f"v_pk_mul_f32 v[{w+2}:{w+3}], v[{w+2}:{w+3}], v[{w+4}:{w+5}]")
                g.e(f"v_cvt_pk_bf16_f32 v{z}, v{w+2}, v{w+3}")
            g.e(f"buffer_store_dwordx4 v[{vz+4*q}:{vz+4*q+3}], v{vq+q}, s[{S_O}:{S_O+3}], 0 offen")
        vmax = w + 6
    else:
        vz = (vtmp + 6) // 2 * 2
        vlast = vtmp + 4
        for mt in range(MT):
            for nt in range(NT):
                r = vz + (mt * NT + nt) * 2
                g.e(f"buffer_load_dwordx2 v[{r}:{r+1}], v{voff+mt}, s[{S_C}:{S_C+3}], 0 offen offset:{nt*32}")
        g.e(f"v_cmp_gt_u32 vcc, 32, v1")
        g.e(f"v_mov_b32 v{vtmp+3}, 0x40000000")
        g.e("s_nop 0")
        g.e(f"v_cndmask_b32 v{vlast}, v{vtmp+3}, v{voff}, vcc")
        w = vz + MT * NT * 2
        g.e("s_waitcnt vmcnt(0)")
        for mt in range(MT):
            for nt in range(NT):
                a = vacc + (mt * NT + nt) * 4
                z = vz + (mt * NT + nt) * 2
                for p in range(2):
                    g.e(f"v_cvt_pk_bf16_f32 v{w}, v{a+2*p}, v{a+2*p+1}")
                    unpack_lo(g, w + 1, w)
                    unpack_hi(g, w + 2, w)
                    unpack_lo(g, w + 3, z + p)
                    unpack_hi(g, w + 4, z + p)
                    g.e(f"v_add_f32 v{w+1}, v{w+1}, v{w+3}")
                    g.e(f"v_add_f32 v{w+2}, v{w+2}, v{w+4}")
                    g.e(f"v_cvt_pk_bf16_f32 v{z+p}, v{w+1}, v{w+2}")
                vo = vlast if nt == NT - 1 else voff + mt
                g.e(f"buffer_store_dwordx2 v[{z}:{z+1}], v{vo}, s[{S_O}:{S_O+3}], 0 offen offset:{nt*32}")
        vmax = w + 5
    epilogue(g, kname)
    vmax = max(vmax, gm.vend, 216)
    if kind == 'k4': vmax = 256
    assert vmax <= 256, vmax
    return g.text(), descriptor(kname, vmax), gm.lds_bytes


def wave_setup(g):
    g.e("v_and_b32 v1, 63, v0")
    g.e("v_lshrrev_b32 v2, 6, v0")
    g.e("s_nop 0")
    g.e(f"v_readfirstlane_b32 s{S_ROLE}, v2")
    g.e(f"s_and_b32 s{S_WAVE}, s{S_ROLE}, 3")
    g.e(f"s_lshr_b32 s{S_ROLE}, s{S_ROLE}, 2")


def xor_reduce(g, vals, vtmp, vaddr16, vaddr32):
    for va in (vaddr16, vaddr32):
        for i, v in enumerate(vals):
            g.e(f"ds_bpermute_b32 v{vtmp+i}, v{va}, v{v}")
        g.e("s_waitcnt lgkmcnt(0)")
        for i, v in enumerate(vals):
            g.e(f"v_add_f32 v{v}, v{v}, v{vtmp+i}")


def bf16_round(g, v, t):
    g.e(f"v_cvt_pk_bf16_f32 v{t}, v{v}, v{v}")
    g.e(f"v_lshlrev_b32 v{v}, 16, v{t}")


def ln_from_sums(g, vs, vq, n, vm, vr, t):
    g.e(f"v_mul_f32 v{vm}, {1.0/n!r}, v{vs}")
    g.e(f"v_mul_f32 v{vr}, {1.0/n!r}, v{vq}")
    g.e(f"v_fma_f32 v{vr}, -v{vm}, v{vm}, v{vr}")
    g.e(f"v_max_f32 v{vr}, 0, v{vr}")
    bf16_round(g, vm, t)
    bf16_round(g, vr, t)
    g.e(f"v_add_f32 v{vr}, 0x3727c5ac, v{vr}")
    bf16_round(g, vr, t)
    g.e(f"v_sqrt_f32 v{vr}, v{vr}")
    g.e("s_nop 0")
    bf16_round(g, vr, t)
    g.e(f"v_rcp_f32 v{vr}, v{vr}")
    g.e("s_nop 0")


GK1 = -2.0 * 1.4426950408889634 * 0.7978845608028654
GK2 = GK1 * 0.044715


def gelu_pair(g, x0, x1, vk1, vk2, t):
    assert x1 == x0 + 1 and x0 % 2 == 0 and t % 2 == 0
    k1e, k2e = vk1 & ~1, vk2 & ~1
    s1 = 1 if vk1 & 1 else 0
    s2 = 1 if vk2 & 1 else 0
    X = f"v[{x0}:{x0+1}]"
    Tt = f"v[{t}:{t+1}]"
    g.e(f"v_pk_mul_f32 {Tt}, {X}, {X}")
    g.e(f"v_pk_fma_f32 {Tt}, {Tt}, v[{k2e}:{k2e+1}], v[{k1e}:{k1e+1}] op_sel:[0,{s2},{s1}] op_sel_hi:[1,{s2},{s1}]")
    g.e(f"v_pk_mul_f32 {Tt}, {Tt}, {X}")
    g.e(f"v_exp_f32 v{t}, v{t}")
    g.e(f"v_exp_f32 v{t+1}, v{t+1}")
    g.e("s_nop 0")
    g.e(f"v_pk_add_f32 {Tt}, {Tt}, 1.0 op_sel_hi:[1,0]")
    g.e(f"v_rcp_f32 v{t}, v{t}")
    g.e(f"v_rcp_f32 v{t+1}, v{t+1}")
    g.e("s_nop 0")
    g.e(f"v_pk_mul_f32 {X}, {X}, {Tt}")


import struct
def fhex(x):
    return "0x%08x" % struct.unpack("<I", struct.pack("<f", x))[0]


def k3_kernel():
    kname = "k3_kernel"
    g = G()
    MT, NT, BN, NS = 2, 9, 144, 4
    lda, ldb = 1152, 288
    prologue(g, kname, 256)
    wave_setup(g)
    g.e(f"s_and_b32 s{S_T}, s2, 7")
    g.e(f"s_lshr_b32 s{S_T+1}, s2, 3")
    g.e(f"s_lshr_b32 s{S_M0}, s{S_T}, 1")
    g.e(f"s_lshl_b32 s{S_M0}, s{S_M0}, 2")
    g.e(f"s_and_b32 s{S_T+2}, s{S_T+1}, 3")
    g.e(f"s_add_u32 s{S_M0}, s{S_M0}, s{S_T+2}")
    g.e(f"s_lshl_b32 s{S_M0}, s{S_M0}, 7")
    S_P = S_T + 5
    g.e(f"s_and_b32 s{S_P}, s{S_T}, 1")
    g.e(f"s_lshl_b32 s{S_P}, s{S_P}, 3")
    g.e(f"s_lshr_b32 s{S_T+2}, s{S_T+1}, 2")
    g.e(f"s_add_u32 s{S_P}, s{S_P}, s{S_T+2}")
    g.e(f"s_mul_i32 s{S_N0}, s{S_P}, 288")
    g.e("s_waitcnt lgkmcnt(0)")
    srd(g, S_A, P_WS, H_OFF, H_SZ)
    srd(g, S_B, P_WS, TWIN_OFF, TWIN_SZ)
    srd(g, S_C, P_WS, CS_OFF, CS_SZ)
    srd(g, S_E, P_WS, HST_OFF, HST_SZ)
    srd(g, S_F, P_WS, ST_OFF, ST2_SZ)
    g.e(f"s_cmp_ge_u32 s{S_P}, 8")
    g.e(f"s_mov_b32 s{S_T+1}, {Z1_OFF}")
    g.e(f"s_cselect_b32 s{S_T}, {Z2_OFF}, s{S_T+1}")
    g.e(f"s_add_u32 s{S_O}, s{P_WS}, s{S_T}")
    g.e(f"s_addc_u32 s{S_O+1}, s{P_WS+1}, 0")
    g.e(f"s_and_b32 s{S_O+1}, s{S_O+1}, 0xffff")
    g.e(f"s_mov_b32 s{S_O+2}, {Z_SZ}")
    g.e(f"s_mov_b32 s{S_O+3}, 0x00020000")
    NACC = MT * NT * 4
    vacc = 8
    gm = Gemm(g, MT, NT, BN, NS, ldb, 'lds', vacc + NACC)
    gm.rotw = 0
    S_WR = S_T + 3
    S_CB = S_T + 4
    g.e(f"s_mul_i32 s{S_WR}, s{S_WAVE}, {16*MT}")
    g.e(f"s_add_u32 s{S_WR}, s{S_WR}, s{S_M0}")
    g.e(f"s_mul_i32 s{S_CB}, s{S_P}, {2*165888}")
    gm.setup(1, 2, col0_sgpr=S_CB)
    gm.setup_a(1, 2, lda, S_WR)
    T = 18
    SCR = gm.lds_bytes
    lds_total = SCR + 4 * 4608
    S_RS, S_TI = S_T + 8, S_T + 9
    g.e(f"s_cmp_ge_u32 s{S_P}, 8")
    g.e(f"s_movk_i32 s{S_T+1}, 4608")
    g.e(f"s_cselect_b32 s{S_RS}, 288, s{S_T+1}")
    g.e(f"s_movk_i32 s{S_T+1}, 288")
    g.e(f"s_cselect_b32 s{S_TI}, 589824, s{S_T+1}")
    g.e(f"s_and_b32 s{S_T}, s{S_P}, 7")
    g.e(f"s_lshl_b32 s{S_T+1}, s{S_TI}, 1")
    g.e(f"s_mul_i32 s{S_T}, s{S_T}, s{S_T+1}")
    g.e(f"s_mul_i32 s{S_T+1}, s{S_WR}, s{S_RS}")
    g.e(f"s_add_u32 s{S_T}, s{S_T}, s{S_T+1}")
    v = (gm.vend + 3) // 4 * 4
    vCS = v; v += 36
    vM = v; v += 2
    vR = v; v += 2
    vK = v; v += 2
    vq = v; v += 9
    v = (v + 1) // 2 * 2
    vrw = v; v += 12
    vWr, vRd, vCo = 4, 5, 6
    w = (v + 1) // 2 * 2
    assert w + 8 <= 256, w
    g.e(f"s_lshl_b32 s{S_T+2}, s{S_WAVE}, 8")
    for q in range(9):
        g.e(f"v_add_u32 v{w}, {q*64}, v1")
        g.e(f"v_mul_u32_u24 v{w+1}, 3641, v{w}")
        g.e(f"v_lshrrev_b32 v{w+1}, 16, v{w+1}")
        g.e(f"v_mul_u32_u24 v{w+2}, 18, v{w+1}")
        g.e(f"v_sub_u32 v{w}, v{w}, v{w+2}")
        g.e(f"v_mul_lo_u32 v{w+1}, v{w+1}, s{S_RS}")
        g.e(f"v_lshl_add_u32 v{w}, v{w}, 4, v{w+1}")
        g.e(f"v_add_u32 v{vq+q}, s{S_T}, v{w}")
    g.e(f"s_mul_i32 s{S_T+1}, s{S_WAVE}, 4608")
    g.e(f"s_add_u32 s{S_T+1}, s{S_T+1}, {SCR}")
    g.e(f"v_and_b32 v{w}, 15, v1")
    g.e(f"v_mul_u32_u24 v{w}, 288, v{w}")
    g.e(f"v_lshrrev_b32 v{w+1}, 4, v1")
    g.e(f"v_lshl_add_u32 v{w}, v{w+1}, 3, v{w}")
    g.e(f"v_add_u32 v{vWr}, s{S_T+1}, v{w}")
    g.e(f"v_lshlrev_b32 v{w}, 4, v1")
    g.e(f"v_add_u32 v{vRd}, s{S_T+1}, v{w}")
    g.e(f"v_mov_b32 v{vK}, {fhex(GK1)}")
    g.e(f"v_mov_b32 v{vK+1}, {fhex(GK2)}")

    vS = vrw
    if vS % 2: vS += 1
    vS2 = vS + 4
    assert vS2 % 2 == 0 and vS2 + 8 <= 256
    vP16, vP32 = 2, 3
    g.e(f"v_xor_b32 v{vP16}, 16, v1")
    g.e(f"v_lshlrev_b32 v{vP16}, 2, v{vP16}")
    g.e(f"v_xor_b32 v{vP32}, 32, v1")
    g.e(f"v_lshlrev_b32 v{vP32}, 2, v{vP32}")

    def gelu4(a, mt):
        for p_ in range(2):
            unpack_lo(g, w + 4, a + p_)
            unpack_hi(g, w + 5, a + p_)
            gelu_pair(g, w + 4, w + 5, vK, vK + 1, w)
            g.e(f"v_cvt_pk_bf16_f32 v{a+p_}, v{w+4}, v{w+5}")
            unpack_lo(g, w + 4, a + p_)
            unpack_hi(g, w + 5, a + p_)
            g.e(f"v_pk_add_f32 v[{vS2+4*mt}:{vS2+4*mt+1}], v[{vS2+4*mt}:{vS2+4*mt+1}], v[{w+4}:{w+5}]")
            g.e(f"v_pk_fma_f32 v[{vS2+4*mt+2}:{vS2+4*mt+3}], v[{w+4}:{w+5}], v[{w+4}:{w+5}], v[{vS2+4*mt+2}:{vS2+4*mt+3}]")

    def pieces(ps, base):
        for j, (mt, nt) in enumerate(ps):
            g.e(f"ds_read_b64 v[{base+2*j}:{base+2*j+1}], v{vWr} offset:{mt*16*288 + nt*32}")
        for j, (mt, nt) in enumerate(ps):
            g.e(f"s_waitcnt lgkmcnt({len(ps)-1})")
            gelu4(base + 2 * j, mt)
            g.e(f"ds_write_b64 v{vWr}, v[{base+2*j}:{base+2*j+1}] offset:{mt*16*288 + nt*32}")

    def store_tile(t, base):
        g.e("s_waitcnt lgkmcnt(0)")
        for q in range(9):
            g.e(f"ds_read_b128 v[{base+4*q}:{base+4*q+3}], v{vRd} offset:{q*1024}")
        so = f"s{S_TI}" if t else "0"
        for q in range(9):
            g.e(f"s_waitcnt lgkmcnt({8-q})")
            g.e(f"buffer_store_dwordx4 v[{base+4*q}:{base+4*q+3}], v{vq+q}, s[{S_O}:{S_O+3}], {so} offen")

    def flush_stats(mts, lab):
        g.e(f"s_cmp_lt_u32 s{S_P}, 8")
        g.e(f"s_cbranch_scc1 {lab}")
        for mt in mts:
            g.e(f"v_add_f32 v{vS+2*mt}, v{vS2+4*mt}, v{vS2+4*mt+1}")
            g.e(f"v_add_f32 v{vS+2*mt+1}, v{vS2+4*mt+2}, v{vS2+4*mt+3}")
        xor_reduce(g, [vS + 2 * mt + k_ for mt in mts for k_ in range(2)], w, vP16, vP32)
        g.e(f"v_and_b32 v{w}, 15, v1")
        g.e(f"v_add_u32 v{w}, s{S_WR}, v{w}")
        g.e(f"v_lshlrev_b32 v{w}, 3, v{w}")
        g.e("s_mov_b64 exec, 0xffff")
        for mt in mts:
            g.e(f"buffer_atomic_add_f32 v{vS+2*mt}, v{w}, s[{S_F}:{S_F+3}], 0 offen offset:{mt*128}")
            g.e(f"buffer_atomic_add_f32 v{vS+2*mt+1}, v{w}, s[{S_F}:{S_F+3}], 0 offen offset:{mt*128+4}")
        g.e("s_mov_b64 exec, -1")
        g.lab(lab)

    g.e(f"s_cmp_eq_u32 s{S_ROLE}, 0")
    g.e(f"s_cbranch_scc1 {kname}_comp")
    ROT3 = os.environ.get('ROT3', '0') == '1'
    if ROT3:
        g.e(f"s_lshr_b32 s{S_ROT}, s2, 3")
        g.e(f"s_mul_i32 s{S_J}, s{S_ROT}, 7282")
        g.e(f"s_lshr_b32 s{S_J}, s{S_J}, 16")
        g.e(f"s_mul_i32 s{S_J}, s{S_J}, 9")
        g.e(f"s_sub_u32 s{S_ROT}, s{S_ROT}, s{S_J}")
    def grp(i):
        t, ks = i // 9, i % 9
        if ROT3:
            g.e(f"s_add_u32 s{S_J}, s{S_ROT}, {ks}")
            g.e(f"s_sub_u32 s{S_KA}, s{S_J}, 9")
            g.e(f"s_cmp_ge_u32 s{S_J}, 9")
            g.e(f"s_cselect_b32 s{S_J}, s{S_KA}, s{S_J}")
            g.e(f"s_lshl_b32 s{S_KA}, s{S_J}, 7")
            g.e(f"s_mul_i32 s{S_KB}, s{S_J}, {64*ldb}")
            if t:
                g.e(f"s_add_u32 s{S_KB}, s{S_KB}, {t*165888}")
        else:
            g.e(f"s_mov_b32 s{S_KA}, {ks*128}")
            g.e(f"s_mov_b32 s{S_KB}, {ks*64*ldb + t*165888}")
        gm.issue(i % NS)
    for j in range(NS):
        grp(j)
    g.e(f"s_waitcnt vmcnt({(NS-1)*gm.G})")
    g.e("s_barrier")
    for i in range(T):
        last = min(i + NS - 1, T - 1)
        g.e(f"s_waitcnt vmcnt({max(last-(i+1),0)*gm.G})")
        g.e("s_barrier")
        if i + NS < T:
            grp(i + NS)
    g.e(f"s_branch {kname}_end")
    g.lab(f"{kname}_comp")
    g.e(f"v_and_b32 v{w}, 15, v1")
    g.e(f"v_add_u32 v{w}, s{S_WR}, v{w}")
    g.e(f"v_mul_u32_u24 v{vCo}, 64, v{w}")
    for mt in range(MT):
        for i in range(4):
            g.e(f"buffer_load_dwordx4 v[{vacc+mt*24+4*i}:{vacc+mt*24+4*i+3}], v{vCo}, s[{S_E}:{S_E+3}], 0 offen offset:{mt*16*64 + 16*i}")
    g.e(f"v_lshrrev_b32 v{w}, 4, v1")
    g.e(f"v_lshlrev_b32 v{w}, 4, v{w}")
    g.e(f"s_lshl_b32 s{S_T}, s{S_N0}, 2")
    g.e(f"v_add_u32 v{vCo}, s{S_T}, v{w}")
    for nt in range(NT):
        g.e(f"buffer_load_dwordx4 v[{vCS+4*nt}:{vCS+4*nt+3}], v{vCo}, s[{S_C}:{S_C+3}], 0 offen offset:{nt*64}")
    g.e("s_waitcnt vmcnt(9)")
    for mt in range(MT):
        b = vacc + mt * 24
        for i in range(1, 8):
            g.e(f"v_add_f32 v{b}, v{b}, v{b+2*i}")
            g.e(f"v_add_f32 v{b+1}, v{b+1}, v{b+2*i+1}")
        ln_from_sums(g, b, b + 1, 576, vM + mt, vR + mt, w)
        g.e(f"v_sub_f32 v{vM+mt}, 0, v{vM+mt}")
    for i in range(NACC):
        g.e(f"v_mov_b32 v{vacc+i}, 0")
    acc = lambda mt, nt: f"v[{vacc+(mt*NT+nt)*4}:{vacc+(mt*NT+nt)*4+3}]"
    g.e("s_barrier")
    for x in gm.reads(0, 0, 0):
        g.e(x)
    if 'stamp' in EXP:
        g.e("s_memrealtime s[92:93]")
    for i in range(T):
        s = i % NS
        g.e("s_waitcnt lgkmcnt(0)")
        gm.phase(0, lambda mt: gm.vA[0] + mt * 4, acc, gm.reads(s, 1, 1))
        g.e(f"s_waitcnt lgkmcnt(0)")
        g.e("s_barrier")
        gm.phase(1, lambda mt: gm.vA[1] + mt * 4, acc, gm.reads((s + 1) % NS, 0, 0) if i + 1 < T else [])
        if i % 9 == 8:
            t = i // 9
            g.e("s_nop 7")
            g.e("s_nop 1")
            if t == 0:
                g.e("s_waitcnt vmcnt(0)")
            else:
                g.e("s_waitcnt vmcnt(0)")
            for k_ in range(8):
                g.e(f"v_mov_b32 v{vS2+k_}, 0")
            so = f"s{S_TI}" if t else "0"
            for mt in range(MT):
                for nt in range(NT):
                    a = vacc + (mt * NT + nt) * 4
                    for r in (0, 2):
                        g.e(f"v_pk_fma_f32 v[{a+r}:{a+r+1}], v[{vCS+4*nt+r}:{vCS+4*nt+r+1}], v[{vM}:{vM+1}], v[{a+r}:{a+r+1}] op_sel:[0,{mt},0] op_sel_hi:[1,{mt},1]")
                    for r in (0, 2):
                        g.e(f"v_pk_mul_f32 v[{a+r}:{a+r+1}], v[{a+r}:{a+r+1}], v[{vR}:{vR+1}] op_sel:[0,{mt}] op_sel_hi:[1,{mt}]")
                    g.e(f"v_cvt_pk_bf16_f32 v{a}, v{a}, v{a+1}")
                    g.e(f"v_cvt_pk_bf16_f32 v{a+1}, v{a+2}, v{a+3}")
                    gelu4(a, mt)
                    g.e(f"ds_write_b64 v{vWr}, v[{a}:{a+1}] offset:{nt*32}")
                g.e("s_waitcnt lgkmcnt(0)")
                base = vacc + mt * 36
                for q in range(5):
                    if q == 4:
                        g.e("s_mov_b32 exec_hi, 0")
                    g.e(f"ds_read_b128 v[{base+4*q}:{base+4*q+3}], v{vRd} offset:{q*1024}")
                    if q == 4:
                        g.e("s_mov_b32 exec_hi, -1")
                for q in range(5):
                    g.e(f"s_waitcnt lgkmcnt({4-q})")
                    if q == 4:
                        g.e("s_mov_b32 exec_hi, 0")
                    g.e(f"buffer_store_dwordx4 v[{base+4*q}:{base+4*q+3}], v{vq+q}, s[{S_O}:{S_O+3}], {so} offen" + ("" if mt == 0 else ""))
                    if q == 4:
                        g.e("s_mov_b32 exec_hi, -1")
                if mt == 0:
                    g.e(f"s_lshl_b32 s{S_T}, s{S_RS}, 4")
                    for q in range(5):
                        g.e(f"v_add_u32 v{vq+q}, s{S_T}, v{vq+q}")
                else:
                    for q in range(5):
                        g.e(f"v_subrev_u32 v{vq+q}, s{S_T}, v{vq+q}")
            if t == 0:
                for nt in range(NT):
                    g.e(f"buffer_load_dwordx4 v[{vCS+4*nt}:{vCS+4*nt+3}], v{vCo}, s[{S_C}:{S_C+3}], 0 offen offset:{nt*64+576}")
            flush_stats([0, 1], f"{kname}_fs{t}")
            if t == 0:
                g.e("s_nop 1")
                for k_ in range(NACC):
                    g.e(f"v_mov_b32 v{vacc+k_}, 0")
    if 'stamp' in EXP:
        g.e("s_memrealtime s[94:95]")
    epilogue(g, kname)
    return g.text(), descriptor(kname, 256), lds_total


def kn_kernel():
    kname = "kn_kernel"
    g = G()
    prologue(g, kname, 256)
    g.e("s_waitcnt lgkmcnt(0)")
    srd(g, S_A, P_WS, Z2_OFF, Z_SZ)
    srd(g, S_O, P_WS, Z2N_OFF, Z_SZ)
    srd(g, S_F, P_WS, ST_OFF, ST2_SZ)
    g.e(f"s_mul_i32 s{S_M0}, s2, 36864")
    g.e(f"s_and_b32 s{S_T}, s2, 15")
    g.e(f"s_lshl_b32 s{S_T}, s{S_T}, 10")
    for q in range(9):
        g.e(f"v_add_u32 v2, {q*256}, v0")
        g.e(f"v_lshlrev_b32 v{10+q}, 4, v2")
        g.e(f"buffer_load_dwordx4 v[{40+4*q}:{43+4*q}], v{10+q}, s[{S_A}:{S_A+3}], s{S_M0} offen")
        g.e(f"v_mul_u32_u24 v3, 3641, v2")
        g.e(f"v_lshrrev_b32 v3, 16, v3")
        g.e(f"v_lshlrev_b32 v3, 3, v3")
        g.e(f"buffer_load_dwordx2 v[{20+2*q}:{21+2*q}], v3, s[{S_F}:{S_F+3}], s{S_T} offen")
    for c in range(2304):
        assert (c * 3641) >> 16 == c // 18
    for q in range(9):
        g.e(f"s_waitcnt vmcnt({16-q})")
        a = 20 + 2 * q
        ln_from_sums(g, a, a + 1, 2304, 6, 7, 4)
        r = 40 + 4 * q
        for d in range(4):
            unpack_lo(g, 2, r + d)
            unpack_hi(g, 3, r + d)
            g.e(f"v_sub_f32 v2, v2, v6")
            g.e(f"v_sub_f32 v3, v3, v6")
            g.e(f"v_cvt_pk_bf16_f32 v{r+d}, v2, v3")
            unpack_lo(g, 2, r + d)
            unpack_hi(g, 3, r + d)
            g.e(f"v_mul_f32 v2, v2, v7")
            g.e(f"v_mul_f32 v3, v3, v7")
            g.e(f"v_cvt_pk_bf16_f32 v{r+d}, v2, v3")
        g.e(f"buffer_store_dwordx4 v[{r}:{r+3}], v{10+q}, s[{S_O}:{S_O+3}], s{S_M0} offen")
    epilogue(g, kname)
    return g.text(), descriptor(kname, 80), 0


def k2_kernel():
    kname = "k2_kernel"
    g = G()
    NS = 4
    prologue(g, kname, 256)
    g.e("v_and_b32 v1, 63, v0")
    g.e("v_lshrrev_b32 v2, 6, v0")
    g.e("s_nop 0")
    S_W8 = 73
    g.e(f"v_readfirstlane_b32 s{S_W8}, v2")
    g.e(f"s_and_b32 s{S_WAVE}, s{S_W8}, 3")
    g.e(f"s_and_b32 s{S_T}, s2, 7")
    g.e(f"s_lshr_b32 s{S_T+1}, s2, 3")
    g.e(f"s_lshl_b32 s{S_M0}, s{S_T}, 3")
    g.e(f"s_lshr_b32 s{S_T+2}, s{S_T+1}, 2")
    g.e(f"s_add_u32 s{S_M0}, s{S_M0}, s{S_T+2}")
    S_CBI = S_T + 5
    g.e(f"s_and_b32 s{S_CBI}, s{S_T+1}, 3")
    g.e(f"s_mul_i32 s{S_N0}, s{S_CBI}, 144")
    g.e("s_waitcnt lgkmcnt(0)")
    srd(g, S_A, P_WS, PHIQ_OFF, PHIQ_SZ)
    srd(g, S_B, P_WS, TWO_OFF, TWO_SZ)
    srd(g, S_C, P_WS, ACC_OFF, ACC_SZ)
    srd(g, S_O, P_WS, H_OFF, H_SZ)
    srd(g, S_E, P_X, 0, H_SZ)
    srd(g, S_F, P_WS, HST_OFF, HST_SZ)
    OST = 1168
    OB = 0
    gm = Gemm(g, 1, 5, 144, NS, 288, 'ext', 8, lds_base=32 * OST)
    gm.rotw = 1
    S_CB = S_T + 4
    g.e(f"s_mul_i32 s{S_CB}, s{S_CBI}, 165888")
    gm.setup(1, 2, col0_sgpr=S_CB)
    g.e(f"s_lshl_b32 s{S_CB}, s{S_N0}, 1")
    S_NH = S_T + 6
    g.e(f"s_lshr_b32 s{S_NH}, s{S_WAVE}, 1")
    g.e(f"s_lshl_b32 s{S_T}, s{S_NH}, 7")
    for s_ in range(NS):
        g.e(f"v_add_u32 v{gm.vBaddr+s_}, s{S_T}, v{gm.vBaddr+s_}")
    g.e(f"s_mov_b32 s{S_KA}, 0")
    g.e(f"s_mov_b32 s{S_KB}, 0")
    v = 236
    vL16 = v; v += 1
    vL8 = v; v += 1
    vL8k = v; v += 1
    vOW = v; v += 1
    vAr = v; v += 1
    w = 242
    vZ = 250
    vF = gm.vB[0]
    vD = vF + 192
    assert vD + 12 <= 232
    vacc = gm.vend + 24
    g.e(f"v_lshlrev_b32 v{vL16}, 4, v1")
    g.e(f"v_and_b32 v{vL8}, 15, v1")
    g.e(f"v_lshlrev_b32 v{vL8}, 3, v{vL8}")
    g.e(f"v_lshlrev_b32 v{vL8k}, 3, v1")
    g.e(f"v_and_b32 v{w}, 15, v1")
    g.e(f"v_mul_u32_u24 v{w}, {OST}, v{w}")
    g.e(f"v_lshrrev_b32 v{w+1}, 4, v1")
    g.e(f"v_lshl_add_u32 v{vOW}, v{w+1}, 3, v{w}")
    g.e(f"s_mul_i32 s{S_T}, s{S_W8}, {4*36}")
    g.e(f"v_add_u32 v{vOW}, s{S_T}, v{vOW}")
    g.e(f"v_lshl_add_u32 v{vAr}, v{w+1}, 4, v{w}")
    g.e(f"s_and_b32 s{S_T}, s{S_WAVE}, 1")
    g.e(f"s_mul_i32 s{S_T}, s{S_T}, {16*OST}")
    g.e(f"v_add_u32 v{vAr}, s{S_T}, v{vAr}")
    S_PH = S_T + 7
    S_KV = S_T + 8
    g.e(f"s_mul_i32 s{S_PH}, s{S_M0}, {2*32*1152}")
    g.e(f"s_mul_i32 s{S_T}, s{S_W8}, {4*1152}")
    g.e(f"s_add_u32 s{S_PH}, s{S_PH}, s{S_T}")
    g.e(f"s_mul_i32 s{S_KV}, s{S_W8}, {4*3072}")
    g.e(f"s_cmp_ge_u32 s{S_W8}, 4")
    g.e(f"s_cbranch_scc1 {kname}_noring")
    for j in range(NS):
        gm.issue(j)
    g.lab(f"{kname}_noring")
    for h in range(4):
        b = vF + h * 24
        for pp in range(3):
            g.e(f"buffer_load_dwordx4 v[{b+4*pp}:{b+4*pp+3}], v{vL16}, s[{S_C}:{S_C+3}], s{S_KV} offen offset:{pp*1024}")
        for mt in range(2):
            g.e(f"s_add_u32 s{S_T}, s{S_PH}, {mt*32*1152}")
            r = b + 12 + 6 * mt
            g.e(f"buffer_load_dwordx4 v[{r}:{r+3}], v{vL16}, s[{S_A}:{S_A+3}], s{S_T} offen")
            g.e(f"buffer_load_dwordx2 v[{r+4}:{r+5}], v{vL8}, s[{S_A}:{S_A+3}], s{S_T} offen offset:1024")
        g.e(f"s_add_u32 s{S_KV}, s{S_KV}, 3072")
        g.e(f"s_add_u32 s{S_PH}, s{S_PH}, 1152")
    def mf(h, db):
        b = vF + h * 24
        z = vZ
        g.e(f"s_waitcnt vmcnt({(3-h)*7})")
        for kc in range(3):
            t = kc * 2 + 1
            g.e(f"v_mov_b32_dpp v{z+2*kc}, v{b+2*t} row_newbcast:2 row_mask:0xf bank_mask:0xf")
            g.e(f"v_mov_b32_dpp v{z+2*kc+1}, v{b+2*t+1} row_newbcast:2 row_mask:0xf bank_mask:0xf")
        g.e("s_nop 1")
        for kc in range(3):
            for mt in range(2):
                pb = b + 12 + 6 * mt + 2 * kc
                for o_, aop in enumerate([b + 2 * (kc * 2), b + 2 * (kc * 2 + 1), z + 2 * kc]):
                    d = db + 12 * mt + 4 * o_
                    c = "0" if kc == 0 else f"v[{d}:{d+3}]"
                    g.e(f"v_mfma_f32_16x16x16_bf16 v[{d}:{d+3}], v[{aop}:{aop+1}], v[{pb}:{pb+1}], {c}")
    def fin(h, db):
        for mt in range(2):
            D = db + 12 * mt
            g.e(f"v_cvt_pk_bf16_f32 v{w}, v{D+8}, v{D+8}")
            g.e(f"v_lshlrev_b32 v{D+8}, 16, v{w}")
            g.e(f"v_add_f32 v{D+8}, 0x358637bd, v{D+8}")
            g.e(f"v_cvt_pk_bf16_f32 v{w}, v{D+8}, v{D+8}")
            g.e(f"v_lshlrev_b32 v{D+8}, 16, v{w}")
            g.e(f"v_rcp_f32 v{D+8}, v{D+8}")
            for p_ in range(3):
                g.e(f"v_cvt_pk_bf16_f32 v{w+1+p_}, v{D+2*p_}, v{D+2*p_+1}")
            for p_ in range(3):
                unpack_lo(g, D + 2 * p_, w + 1 + p_)
                unpack_hi(g, D + 2 * p_ + 1, w + 1 + p_)
            for r in range(6):
                g.e(f"v_mul_f32 v{D+r}, v{D+r}, v{D+8}")
            for p_ in range(3):
                g.e(f"v_cvt_pk_bf16_f32 v{D+9+p_}, v{D+2*p_}, v{D+2*p_+1}")
            off = mt * 16 * OST + 36 * h
            g.e(f"ds_write_b32 v{vOW}, v{D+9} offset:{off}")
            g.e(f"ds_write_b32 v{vOW}, v{D+10} offset:{off+4}")
            g.e("s_mov_b64 exec, 0xffff")
            g.e(f"ds_write_b32 v{vOW}, v{D+11} offset:{off+32}")
            g.e("s_mov_b64 exec, -1")
    DB0 = 212
    def dbuf(h):
        return DB0 if h == 0 else vF + (h - 1) * 24
    mf(0, dbuf(0))
    for h in range(4):
        if h + 1 < 4:
            mf(h + 1, dbuf(h + 1))
        else:
            g.e("s_nop 7")
            g.e("s_nop 3")
        fin(h, dbuf(h))
    if 'stamp' in EXP:
        g.e("s_memrealtime s[92:93]")
    g.e(f"s_cmp_lt_u32 s{S_W8}, 4")
    g.e(f"s_cbranch_scc1 {kname}_gemm")
    g.e("s_waitcnt lgkmcnt(0)")
    g.e("s_barrier")
    g.e(f"s_branch {kname}_end")
    g.lab(f"{kname}_gemm")
    w = 120
    for i in range(20):
        g.e(f"v_mov_b32 v{vacc+i}, 0")
    vX = (gm.vend + 3) // 4 * 4
    vXo = w + 8
    g.e(f"s_and_b32 s{S_T}, s{S_WAVE}, 1")
    g.e(f"s_lshl_b32 s{S_T}, s{S_T}, 4")
    g.e(f"s_lshl_b32 s{S_T+1}, s{S_M0}, 5")
    g.e(f"s_add_u32 s{S_T}, s{S_T}, s{S_T+1}")
    g.e(f"v_and_b32 v{w}, 15, v1")
    g.e(f"v_add_u32 v{w}, s{S_T}, v{w}")
    g.e(f"v_mov_b32 v{w+9}, v{w}")
    g.e(f"v_mul_u32_u24 v{w}, 1152, v{w}")
    g.e(f"v_lshrrev_b32 v{w+1}, 4, v1")
    g.e(f"v_lshl_add_u32 v{w}, v{w+1}, 3, v{w}")
    g.e(f"s_lshl_b32 s{S_T+1}, s{S_NH}, 7")
    g.e(f"s_add_u32 s{S_T+1}, s{S_T+1}, s{S_CB}")
    g.e(f"v_add_u32 v{vXo}, s{S_T+1}, v{w}")
    for nt in range(5):
        g.e(f"buffer_load_dwordx2 v[{vX+2*nt}:{vX+2*nt+1}], v{vXo}, s[{S_E}:{S_E+3}], 0 offen offset:{32*nt}")
    vAf = vX + 12
    acc = lambda mt, nt: f"v[{vacc+nt*4}:{vacc+nt*4+3}]"
    def rd(i, ks, dst):
        r = vAf + dst * 4
        return [f"ds_read_b128 v[{r}:{r+3}], v{vAr} offset:{(i*64+ks*32)*2}"] + gm.reads(i % NS, ks, dst)
    T = 9
    g.e(f"s_waitcnt vmcnt({(NS-1)*gm.D + 5}) lgkmcnt(0)")
    g.e("s_barrier")
    if 'dbgo' in EXP:
        g.e("s_cmp_lg_u32 s2, 0")
        g.e(f"s_cbranch_scc1 {kname}_nodbg")
        srd(g, S_A, P_WS, 0x3C00000, 65536)
        for q in range(37):
            g.e(f"v_lshlrev_b32 v{w}, 2, v0")
            g.e(f"ds_read_b32 v{w+1}, v{w} offset:{q*1024}")
            g.e("s_waitcnt lgkmcnt(0)")
            g.e(f"buffer_store_dword v{w+1}, v{w}, s[{S_A}:{S_A+3}], 0 offen offset:0")
            g.e(f"s_add_u32 s{S_A}, s{S_A}, 1024")
            g.e(f"s_addc_u32 s{S_A+1}, s{S_A+1}, 0")
        g.lab(f"{kname}_nodbg")
    for x in rd(0, 0, 0):
        g.e(x)
    issued = NS
    for i in range(T):
        g.e("s_waitcnt lgkmcnt(0)")
        gm.phase(0, lambda mt: vAf, acc, rd(i, 1, 1))
        if i + 1 < T:
            young = (issued - 1 - (i + 1)) * gm.D + (5 if i + 1 <= NS - 1 else 0)
            g.e(f"s_waitcnt vmcnt({young}) lgkmcnt(0)")
        else:
            g.e("s_waitcnt lgkmcnt(0)")
        g.e("s_barrier")
        if issued < T:
            gm.issue(issued % NS)
            issued += 1
        gm.phase(1, lambda mt: vAf + 4, acc, rd(i + 1, 0, 0) if i + 1 < T else [])
    g.e("s_waitcnt vmcnt(0)")
    if 'stamp' in EXP:
        g.e("s_memrealtime s[94:95]")
    g.e("s_nop 7")
    vS = w + 10
    g.e(f"v_mov_b32 v{vS}, 0")
    g.e(f"v_mov_b32 v{vS+1}, 0")
    g.e(f"s_cmp_eq_u32 s{S_NH}, 1")
    g.e(f"s_cselect_b32 s{S_T}, 0, 1.0")
    for nt in range(5):
        a = vacc + 4 * nt
        for p_ in range(2):
            g.e(f"v_cvt_pk_bf16_f32 v{w}, v{a+2*p_}, v{a+2*p_+1}")
            unpack_lo(g, w + 1, w)
            unpack_hi(g, w + 2, w)
            unpack_lo(g, w + 3, vX + 2 * nt + p_)
            unpack_hi(g, w + 4, vX + 2 * nt + p_)
            g.e(f"v_add_f32 v{w+1}, v{w+1}, v{w+3}")
            g.e(f"v_add_f32 v{w+2}, v{w+2}, v{w+4}")
            g.e(f"v_cvt_pk_bf16_f32 v{vX+2*nt+p_}, v{w+1}, v{w+2}")
            unpack_lo(g, w + 1, vX + 2 * nt + p_)
            unpack_hi(g, w + 2, vX + 2 * nt + p_)
            if nt == 0:
                g.e(f"v_mul_f32 v{w+1}, s{S_T}, v{w+1}")
                g.e(f"v_mul_f32 v{w+2}, s{S_T}, v{w+2}")
            g.e(f"v_add_f32 v{vS}, v{vS}, v{w+1}")
            g.e(f"v_fmac_f32 v{vS+1}, v{w+1}, v{w+1}")
            g.e(f"v_add_f32 v{vS}, v{vS}, v{w+2}")
            g.e(f"v_fmac_f32 v{vS+1}, v{w+2}, v{w+2}")
        g.e(f"buffer_store_dwordx2 v[{vX+2*nt}:{vX+2*nt+1}], v{vXo}, s[{S_O}:{S_O+3}], 0 offen offset:{32*nt}")
    g.e(f"v_xor_b32 v{w+2}, 16, v1")
    g.e(f"v_lshlrev_b32 v{w+2}, 2, v{w+2}")
    g.e(f"v_xor_b32 v{w+3}, 32, v1")
    g.e(f"v_lshlrev_b32 v{w+3}, 2, v{w+3}")
    xor_reduce(g, [vS, vS + 1], w, w + 2, w + 3)
    g.e(f"s_lshl_b32 s{S_T}, s{S_CBI}, 1")
    g.e(f"s_add_u32 s{S_T}, s{S_T}, s{S_NH}")
    g.e(f"s_lshl_b32 s{S_T}, s{S_T}, 3")
    g.e(f"v_lshlrev_b32 v{w}, 6, v{w+9}")
    g.e(f"v_add_u32 v{w}, s{S_T}, v{w}")
    g.e("s_mov_b64 exec, 0xffff")
    g.e(f"buffer_store_dwordx2 v[{vS}:{vS+1}], v{w}, s[{S_F}:{S_F+3}], 0 offen")
    g.e("s_mov_b64 exec, -1")
    epilogue(g, kname)
    return g.text(), descriptor(kname, 256), 32 * OST + gm.lds_bytes


LOG2E = 1.4426950408889634


def retile_jobs(g):
    NTH = 49152
    g.e(f"s_mul_i32 s{S_T}, s2, 192")
    g.e(f"v_add_u32 v2, s{S_T}, v7")

    def map_tile(rowc, tilec, tilebytes, rowbytes):
        def f(vi):
            divmod_const(g, vi, rowc, 5, 7, S_T)
            divmod_const(g, 7, tilec, 6, 24, S_T)
            g.e(f"s_mov_b32 s{S_T}, {tilebytes}")
            g.e(f"v_mul_lo_u32 v6, v6, s{S_T}")
            g.e(f"v_mul_u32_u24 v5, {rowbytes}, v5")
            g.e("v_add_u32 v6, v6, v5")
            g.e("v_lshl_add_u32 v6, v24, 4, v6")
        return f
    jobs = [(P_WO, 576 * 1152, TWO_OFF, TWO_SZ, 576 * 72, map_tile(72, 18, 165888, 288), S_B, S_C),
            (P_WIN, 576 * 9216, TWIN_OFF, TWIN_SZ, 576 * 576, map_tile(576, 18, 165888, 288), 76, 80),
            (P_WOUT, 2304 * 1152, TWOUT_OFF, TWOUT_SZ, 2304 * 72, map_tile(72, 9, 368640, 160), 84, 88)]
    plan = []
    vi, vd = 28, 48
    for (ptr, ssz, doff, dsz, n, mp, ss, sd) in jobs:
        srd(g, ss, ptr, 0, ssz)
        srd(g, sd, P_WS, doff, dsz)
        nj = (n + NTH - 1) // NTH
        for j in range(nj):
            g.e(f"v_add_u32 v{vi}, {NTH*j}, v2")
            g.e(f"v_lshlrev_b32 v6, 4, v{vi}")
            g.e(f"buffer_load_dwordx4 v[{vd}:{vd+3}], v6, s[{ss}:{ss+3}], 0 offen")
            plan.append((vi, vd, sd, mp, n, (j + 1) * NTH > n))
            vi += 1
            vd += 4
    for (vi_, vd_, sd, mp, n, partial) in plan:
        mp(vi_)
        if partial:
            g.e(f"v_cmp_gt_u32 vcc, {n}, v{vi_}")
            g.e("v_mov_b32 v7, 0x40000000")
            g.e("s_nop 0")
            g.e("v_cndmask_b32 v6, v7, v6, vcc")
        g.e(f"v_mov_b32 v{vi_}, v6")
    nl = len(plan)
    for k_, (vi_, vd_, sd, mp, n, partial) in enumerate(plan):
        g.e(f"s_waitcnt vmcnt({nl-1})")
        g.e(f"buffer_store_dwordx4 v[{vd_}:{vd_+3}], v{vi_}, s[{sd}:{sd+3}], 0 offen")
    srd(g, S_A, P_WS, ST_OFF, ST2_SZ)
    for i in range(4):
        g.e(f"v_mov_b32 v{8+i}, 0")
    g.e("v_lshlrev_b32 v6, 4, v2")
    g.e(f"buffer_store_dwordx4 v[8:11], v6, s[{S_A}:{S_A+3}], 0 offen")


def k1_kernel():
    kname = "k1_kernel"
    g = G()
    MT, NT, BN, NS, T = 4, 5, 80, 3, 9
    prologue(g, kname, 256)
    wave_setup(g)
    S_H, S_RB = S_T + 5, S_T + 6
    g.e(f"s_and_b32 s{S_RB}, s2, 7")
    g.e(f"s_lshr_b32 s{S_H}, s2, 3")
    g.e(f"s_lshl_b32 s{S_M0}, s{S_RB}, 8")
    g.e("s_waitcnt lgkmcnt(0)")
    srd(g, S_A, P_X, 0, H_SZ)
    srd(g, S_B, P_WQKV, 0, 576 * 3456)
    srd(g, S_C, P_WPHI, 0, 32 * 648)
    srd(g, S_O, P_WS, PHIQ_OFF, PHIQ_SZ)
    srd(g, S_E, P_WS, KV3_OFF, KV3_SZ)
    srd(g, S_F, P_WS, ACC_OFF, ACC_SZ)
    vacc = 8
    vcs = vacc + 80
    vrs = vcs + 20
    vsq = vrs + 16
    vone = vsq + 16
    LB = 10496
    gm = Gemm(g, MT, NT, BN, NS, 3456, 'lds', vone + 4, lds_base=LB)
    assert gm.vend <= 256
    gm.rotw = 0
    S_WR, S_CB = S_T + 3, S_T + 4
    g.e(f"s_lshl_b32 s{S_WR}, s{S_WAVE}, 6")
    g.e(f"s_add_u32 s{S_WR}, s{S_WR}, s{S_M0}")
    g.e(f"s_mul_i32 s{S_CB}, s{S_H}, 36")

    def colmap(g, vc, t1, t3):
        g.e(f"v_cmp_eq_u32 vcc, 9, v{vc}")
        g.e("s_nop 1")
        g.e(f"v_cndmask_b32 v{vc}, v{vc}, 0, vcc")
        g.e(f"v_mul_u32_u24 v{t1}, 21846, v{vc}")
        g.e(f"v_lshrrev_b32 v{t1}, 16, v{t1}")
        g.e(f"v_mul_u32_u24 v{t3}, 3, v{t1}")
        g.e(f"v_sub_u32 v{vc}, v{vc}, v{t3}")
        g.e(f"v_lshlrev_b32 v{vc}, 4, v{vc}")
        g.e(f"v_mul_u32_u24 v{t1}, 1152, v{t1}")
        g.e(f"v_add_u32 v{vc}, v{vc}, v{t1}")
    for c in range(9):
        assert (c * 21846) >> 16 == c // 3
    gm.setup(1, 2, colmap=colmap, col0_sgpr=S_CB)
    gm.setup_a(1, 2, 1152, S_WR)
    RING = gm.lds_bytes
    QS = 136
    WB = 0
    lds_total = LB + RING
    g.e(f"s_cmp_eq_u32 s{S_ROLE}, 0")
    g.e(f"s_cbranch_scc1 {kname}_comp")
    def grp(i):
        g.e(f"s_mov_b32 s{S_KA}, {i*128}")
        g.e(f"s_mov_b32 s{S_KB}, {i*64*3456}")
        gm.issue(i % NS)
    for j in range(NS):
        grp(j)
    g.e(f"s_waitcnt vmcnt({(NS-1)*gm.G})")
    g.e("s_barrier")
    for i in range(T):
        last = min(i + NS - 1, T - 1)
        g.e(f"s_waitcnt vmcnt({max(last-(i+1),0)*gm.G})")
        g.e("s_barrier")
        if i + NS < T:
            grp(i + NS)
    g.e("s_barrier")
    g.e("v_and_b32 v7, 255, v0")
    g.e(f"s_cmp_eq_u32 s{S_WAVE}, 3")
    g.e(f"s_cbranch_scc1 {kname}_cs")
    retile_jobs(g)
    g.e(f"s_branch {kname}_end")
    g.lab(f"{kname}_cs")
    colsum_job(g, kname, 0)
    g.e(f"s_branch {kname}_end")
    g.lab(f"{kname}_comp")
    g.e(f"s_cmp_lg_u32 s{S_WAVE}, 0")
    g.e(f"s_cbranch_scc1 {kname}_now")
    g.e(f"s_mul_i32 s{S_T+1}, s{S_H}, 648")
    g.e("v_and_b32 v2, 15, v1")
    g.e("v_lshrrev_b32 v3, 4, v1")
    g.e("v_lshlrev_b32 v3, 2, v3")
    g.e("v_mov_b32 v7, 0x40000000")
    opn = 0
    for S_, base in ((0, 0), (1, 24)):
        for ch in range(2):
            tl = ch + S_
            for ft in range(2):
                for j in range(4):
                    r = vacc + opn * 4 + j
                    g.e(f"v_add_u32 v4, {16*tl + j - base}, v3")
                    g.e(f"v_add_u32 v5, {16*ft}, v2")
                    g.e(f"v_mul_u32_u24 v6, 18, v4")
                    g.e(f"v_add_u32 v6, v6, v5")
                    g.e(f"v_lshlrev_b32 v6, 1, v6")
                    g.e(f"v_cmp_gt_u32 vcc, 18, v4")
                    g.e(f"v_cmp_gt_u32 s[{S_T+8}:{S_T+9}], 18, v5")
                    g.e(f"s_and_b64 vcc, vcc, s[{S_T+8}:{S_T+9}]")
                    g.e(f"v_cndmask_b32 v6, v7, v6, vcc")
                    g.e(f"buffer_load_ushort v{r}, v6, s[{S_C}:{S_C+3}], s{S_T+1} offen")
                opn += 1
    g.e("s_waitcnt vmcnt(0)")
    g.e("v_lshlrev_b32 v2, 3, v1")
    for o_ in range(8):
        r = vacc + o_ * 4
        g.e(f"v_lshl_or_b32 v{r}, v{r+1}, 16, v{r}")
        g.e(f"v_lshl_or_b32 v{r+1}, v{r+3}, 16, v{r+2}")
        g.e(f"ds_write_b64 v2, v[{r}:{r+1}] offset:{o_*512}")
    for i in range(4):
        g.e(f"v_mov_b32 v{vacc+i}, 0")
    g.e("v_lshlrev_b32 v2, 4, v1")
    for i in range(7):
        g.e(f"ds_write_b128 v2, v[{vacc}:{vacc+3}] offset:{4096 + i*1024 if i < 6 else 4096 + 5376}")
    g.e("s_waitcnt lgkmcnt(0)")
    g.lab(f"{kname}_now")
    for i in range(80 + 20 + 32):
        g.e(f"v_mov_b32 v{vacc+i}, 0")
    for i in range(4):
        g.e(f"v_mov_b32 v{vone+i}, 0x3f803f80")
    acc = lambda mt, nt: f"v[{vacc+(mt*5+nt)*4}:{vacc+(mt*5+nt)*4+3}]"
    def extra(cur):
        for nt in range(5):
            b = gm.vB[cur] + nt * 4
            c = f"v[{vcs+4*nt}:{vcs+4*nt+3}]"
            g.e(f"v_mfma_f32_16x16x32_bf16 {c}, v[{b}:{b+3}], v[{vone}:{vone+3}], {c}")
        for mt in range(4):
            a = gm.vA[cur] + mt * 4
            c = f"v[{vrs+4*mt}:{vrs+4*mt+3}]"
            g.e(f"v_mfma_f32_16x16x32_bf16 {c}, v[{vone}:{vone+3}], v[{a}:{a+3}], {c}")
            c = f"v[{vsq+4*mt}:{vsq+4*mt+3}]"
            g.e(f"v_mfma_f32_16x16x32_bf16 {c}, v[{a}:{a+3}], v[{a}:{a+3}], {c}")
    g.e("s_barrier")
    for x in gm.reads(0, 0, 0):
        g.e(x)
    for i in range(T):
        s_ = i % NS
        g.e("s_waitcnt lgkmcnt(0)")
        gm.phase(0, lambda mt: gm.vA[0] + 4 * mt, acc, gm.reads(s_, 1, 1))
        extra(0)
        g.e(f"s_waitcnt lgkmcnt(0)")
        g.e("s_barrier")
        gm.phase(1, lambda mt: gm.vA[1] + 4 * mt, acc, gm.reads((s_ + 1) % NS, 0, 0) if i + 1 < T else [])
        extra(1)
    if 'stamp' in EXP:
        g.e("s_memrealtime s[92:93]")
    g.e("s_barrier")
    vt_ = gm.vB[0]
    g.e("v_and_b32 v2, 15, v1")
    g.e("v_lshrrev_b32 v3, 2, v2")
    g.e("v_lshl_add_u32 v3, v3, 4, v2")
    g.e("v_lshlrev_b32 v3, 2, v3")
    g.e("v_and_b32 v4, 3, v1")
    g.e("s_nop 4")
    for mt in range(4):
        q0 = vsq + 4 * mt
        g.e("v_cmp_eq_u32 vcc, 1, v4")
        g.e("s_nop 1")
        g.e(f"v_cndmask_b32 v{vt_+mt}, v{q0}, v{q0+1}, vcc")
        g.e("v_cmp_eq_u32 vcc, 2, v4")
        g.e("s_nop 1")
        g.e(f"v_cndmask_b32 v{vt_+mt}, v{vt_+mt}, v{q0+2}, vcc")
        g.e("v_cmp_eq_u32 vcc, 3, v4")
        g.e("s_nop 1")
        g.e(f"v_cndmask_b32 v{vt_+mt}, v{vt_+mt}, v{q0+3}, vcc")
    for mt in range(4):
        g.e(f"ds_bpermute_b32 v{vt_+4+mt}, v3, v{vt_+mt}")
    g.e("s_waitcnt lgkmcnt(0)")
    for mt in range(4):
        ln_from_sums(g, vrs + 4 * mt, vt_ + 4 + mt, 576, vt_ + 8 + 2 * mt, vt_ + 9 + 2 * mt, 5)
        g.e(f"v_sub_f32 v{vt_+8+2*mt}, 0, v{vt_+8+2*mt}")
    vmr = vt_ + 8
    for mt in range(4):
        for t in range(5):
            a = vacc + 4 * (mt * 5 + t)
            for r in (0, 2):
                g.e(f"v_pk_fma_f32 v[{a+r}:{a+r+1}], v[{vcs+4*t+r}:{vcs+4*t+r+1}], v[{vmr+2*mt}:{vmr+2*mt+1}], v[{a+r}:{a+r+1}] op_sel:[0,0,0] op_sel_hi:[1,0,1]")
            for r in (0, 2):
                g.e(f"v_pk_mul_f32 v[{a+r}:{a+r+1}], v[{a+r}:{a+r+1}], v[{vmr+2*mt}:{vmr+2*mt+1}] op_sel:[0,1] op_sel_hi:[1,1]")
            g.e(f"v_cvt_pk_bf16_f32 v{a}, v{a}, v{a+1}")
            g.e(f"v_cvt_pk_bf16_f32 v{a+1}, v{a+2}, v{a+3}")
    vWo = vcs
    g.e("v_lshlrev_b32 v2, 3, v1")
    for o_ in range(8):
        g.e(f"ds_read_b64 v[{vWo+2*o_}:{vWo+2*o_+1}], v2 offset:{o_*512}")
    g.e(f"s_mul_i32 s{S_T+2}, s{S_WAVE}, {64*160}")
    g.e(f"s_add_u32 s{S_T+2}, s{S_T+2}, {LB + 36864}")
    vz = vrs
    for i in range(4):
        g.e(f"v_mov_b32 v{vz+i}, 0")
    g.e("v_lshlrev_b32 v3, 4, v1")
    g.e(f"v_add_u32 v3, s{S_T+2}, v3")
    for i in range(10):
        g.e(f"ds_write_b128 v3, v[{vz}:{vz+3}] offset:{i*1024}")
    g.e("s_waitcnt lgkmcnt(0)")
    vPD = 144
    for mt in range(4):
        for S_ in range(2):
            for ft in range(2):
                d = vPD + ((mt * 2 + S_) * 2 + ft) * 4
                for ch in range(2):
                    tl = ch + S_
                    pa = vacc + 4 * (mt * 5 + tl)
                    wo = vWo + 2 * ((S_ * 2 + ch) * 2 + ft)
                    c = "0" if ch == 0 else f"v[{d}:{d+3}]"
                    g.e(f"v_mfma_f32_16x16x16_bf16 v[{d}:{d+3}], v[{wo}:{wo+1}], v[{pa}:{pa+1}], {c}")
    vMX = 208
    vTP = 224
    vL2 = 240
    vMask = 241
    vA16, vA32 = 242, 243
    g.e(f"v_mov_b32 v{vL2}, {fhex(LOG2E)}")
    g.e("v_cmp_gt_u32 vcc, 16, v1")
    g.e("s_nop 1")
    g.e(f"v_cndmask_b32 v{vMask}, 0, 1.0, vcc")
    g.e(f"v_xor_b32 v{vA16}, 16, v1")
    g.e(f"v_lshlrev_b32 v{vA16}, 2, v{vA16}")
    g.e(f"v_xor_b32 v{vA32}, 32, v1")
    g.e(f"v_lshlrev_b32 v{vA32}, 2, v{vA32}")
    g.e("s_nop 4")
    for st in range(8):
        d = vPD + st * 8
        for p_ in range(3):
            g.e(f"v_cvt_pk_bf16_f32 v{vTP}, v{d+2*p_}, v{d+2*p_+1}")
            unpack_lo(g, d + 2 * p_, vTP)
            unpack_hi(g, d + 2 * p_ + 1, vTP)
        g.e(f"v_cndmask_b32 v{d+4}, v{d}, v{d+4}, vcc")
        g.e(f"v_cndmask_b32 v{d+5}, v{d}, v{d+5}, vcc")
        g.e(f"v_max3_f32 v{vMX+2*st}, v{d}, v{d+1}, v{d+2}")
        g.e(f"v_max3_f32 v{vMX+2*st}, v{vMX+2*st}, v{d+3}, v{d+4}")
        g.e(f"v_max_f32 v{vMX+2*st}, v{vMX+2*st}, v{d+5}")
        g.e(f"v_min3_f32 v{vMX+2*st+1}, v{d}, v{d+1}, v{d+2}")
        g.e(f"v_min3_f32 v{vMX+2*st+1}, v{vMX+2*st+1}, v{d+3}, v{d+4}")
        g.e(f"v_min_f32 v{vMX+2*st+1}, v{vMX+2*st+1}, v{d+5}")
    for va in (vA16, vA32):
        for i in range(16):
            g.e(f"ds_bpermute_b32 v{vTP+i}, v{va}, v{vMX+i}")
        g.e("s_waitcnt lgkmcnt(0)")
        for st in range(8):
            g.e(f"v_max_f32 v{vMX+2*st}, v{vMX+2*st}, v{vTP+2*st}")
            g.e(f"v_min_f32 v{vMX+2*st+1}, v{vMX+2*st+1}, v{vTP+2*st+1}")
    vE2 = 88
    def e2reg(st, i):
        mt, S_ = st // 2, st % 2
        t = S_ * 3 + i // 2
        return None
    E2 = {}
    free = []
    for mt in range(4):
        for t in range(5):
            a = vacc + 4 * (mt * 5 + t)
            free += [a + 2, a + 3]
    free += list(range(vrs + 4, vrs + 16)) + list(range(vsq, vsq + 16))
    assert len(free) >= 48
    for st in range(8):
        for i in range(6):
            E2[(st, i)] = free[st * 6 + i]
    for st in range(8):
        d = vPD + st * 8
        g.e(f"v_mul_f32 v{vMX+2*st}, v{vMX+2*st}, v{vL2}")
        g.e(f"v_mul_f32 v{vMX+2*st+1}, v{vMX+2*st+1}, v{vL2}")
        for i in range(6):
            g.e(f"v_fma_f32 v{E2[(st,i)]}, -v{d+i}, v{vL2}, v{vMX+2*st+1}")
            g.e(f"v_fma_f32 v{d+i}, v{d+i}, v{vL2}, -v{vMX+2*st}")
        for i in range(6):
            g.e(f"v_exp_f32 v{E2[(st,i)]}, v{E2[(st,i)]}")
            g.e(f"v_exp_f32 v{d+i}, v{d+i}")
    g.e("s_nop 0")
    for st in range(8):
        d = vPD + st * 8
        for sg, R_ in ((0, [d + i for i in range(6)]), (1, [E2[(st, i)] for i in range(6)])):
            sreg = vMX + 2 * st + sg
            g.e(f"v_add_f32 v{sreg}, v{R_[4]}, v{R_[5]}")
            g.e(f"v_mul_f32 v{sreg}, v{sreg}, v{vMask}")
            for i in range(4):
                g.e(f"v_add_f32 v{sreg}, v{sreg}, v{R_[i]}")
    for va in (vA16, vA32):
        for i in range(16):
            g.e(f"ds_bpermute_b32 v{vTP+i}, v{va}, v{vMX+i}")
        g.e("s_waitcnt lgkmcnt(0)")
        for i in range(16):
            g.e(f"v_add_f32 v{vMX+i}, v{vMX+i}, v{vTP+i}")
    for i in range(16):
        g.e(f"v_rcp_f32 v{vMX+i}, v{vMX+i}")
    g.e("s_nop 0")
    g.e("v_lshlrev_b32 v4, 4, v1")
    g.e("v_and_b32 v5, 15, v1")
    g.e("v_lshlrev_b32 v5, 3, v5")
    g.e(f"s_lshl_b32 s{S_T}, s{S_RB}, 4")
    g.e(f"s_lshl_b32 s{S_T+1}, s{S_WAVE}, 2")
    g.e(f"s_add_u32 s{S_T}, s{S_T}, s{S_T+1}")
    g.e(f"s_lshl_b32 s{S_T}, s{S_T}, 5")
    g.e(f"s_add_u32 s{S_T}, s{S_T}, s{S_H}")
    g.e(f"s_mul_i32 s{S_T}, s{S_T}, 1152")
    g.e("v_and_b32 v6, 15, v1")
    g.e("v_mul_u32_u24 v6, 160, v6")
    g.e("v_lshrrev_b32 v7, 4, v1")
    g.e("v_lshl_add_u32 v6, v7, 3, v6")
    g.e(f"v_add_u32 v6, s{S_T+2}, v6")
    g.e(f"v_mov_b32 v{vL2}, 0x3f80")
    for st in range(8):
        mt, S_ = st // 2, st % 2
        d = vPD + st * 8
        for i in range(6):
            g.e(f"v_mul_f32 v{d+i}, v{d+i}, v{vMX+2*st}")
            g.e(f"v_mul_f32 v{E2[(st,i)]}, v{E2[(st,i)]}, v{vMX+2*st+1}")
        o = vTP + 8 * (st % 2)
        g.e(f"v_cvt_pk_bf16_f32 v{o}, v{d}, v{d+1}")
        g.e(f"v_cvt_pk_bf16_f32 v{o+1}, v{d+2}, v{d+3}")
        g.e(f"v_cvt_pk_bf16_f32 v{o+2}, v{E2[(st,0)]}, v{E2[(st,1)]}")
        g.e(f"v_cvt_pk_bf16_f32 v{o+3}, v{E2[(st,2)]}, v{E2[(st,3)]}")
        g.e(f"v_cvt_pk_bf16_f32 v{o+4}, v{d+4}, v{d+5}")
        g.e(f"v_cvt_pk_bf16_f32 v{o+5}, v{E2[(st,4)]}, v{E2[(st,5)]}")
        if S_ == 0:
            g.e(f"s_add_u32 s{S_T+1}, s{S_T}, {mt*32*1152}")
            g.e(f"buffer_store_dwordx4 v[{o}:{o+3}], v4, s[{S_O}:{S_O+3}], s{S_T+1} offen")
            g.e("s_mov_b64 exec, 0xffff")
            g.e(f"buffer_store_dwordx2 v[{o+4}:{o+5}], v5, s[{S_O}:{S_O+3}], s{S_T+1} offen offset:1024")
            g.e("s_mov_b64 exec, -1")
        else:
            ko = mt * 16 * 160
            g.e(f"ds_write_b64 v6, v[{o}:{o+1}] offset:{ko}")
            g.e(f"ds_write_b64 v6, v[{o+2}:{o+3}] offset:{ko+32}")
            pv = vacc + 4 * (mt * 5 + 3)
            g.e(f"ds_write_b64 v6, v[{pv}:{pv+1}] offset:{ko+96}")
            pv4 = vacc + 4 * (mt * 5 + 4)
            g.e(f"v_mov_b32 v{pv4+1}, v{vL2}")
            g.e("s_mov_b64 exec, 0xffff")
            g.e(f"ds_write_b64 v6, v[{o+4}:{o+5}] offset:{ko+64}")
            g.e(f"ds_write_b64 v6, v[{pv4}:{pv4+1}] offset:{ko+128}")
            g.e("s_mov_b64 exec, -1")
    g.e("v_lshrrev_b32 v2, 4, v1")
    g.e("v_lshlrev_b32 v2, 2, v2")
    g.e("v_bfe_u32 v3, v1, 2, 2")
    g.e("v_add_u32 v2, v2, v3")
    g.e("v_mul_u32_u24 v2, 160, v2")
    g.e("v_and_b32 v3, 3, v1")
    g.e("v_lshl_add_u32 v2, v3, 3, v2")
    g.e(f"v_add_u32 v2, s{S_T+2}, v2")
    g.e("s_waitcnt lgkmcnt(0)")
    vFr = 144
    for ks in range(2):
        for t in range(5):
            for half in range(2):
                r = vFr + (ks * 5 + t) * 4 + 2 * half
                g.e(f"ds_read_b64_tr_b16 v[{r}:{r+1}], v2 offset:{(32*ks+16*half)*160 + 32*t}")
    g.e("s_waitcnt lgkmcnt(0)")
    vKV = 8
    for ks in range(2):
        for mt in range(3):
            for nt in range(2):
                d = vKV + (mt * 2 + nt) * 4
                a = vFr + (ks * 5 + mt) * 4
                b = vFr + (ks * 5 + 3 + nt) * 4
                c = "0" if ks == 0 else f"v[{d}:{d+3}]"
                g.e(f"v_mfma_f32_16x16x32_bf16 v[{d}:{d+3}], v[{a}:{a+3}], v[{b}:{b+3}], {c}")
    if 'stamp' in EXP:
        g.e("s_memrealtime s[94:95]")
    RB2 = LB + 81920
    g.e(f"s_mul_i32 s{S_T+2}, s{S_WAVE}, 6144")
    g.e(f"s_add_u32 s{S_T+2}, s{S_T+2}, {RB2}")
    g.e("v_lshlrev_b32 v2, 4, v1")
    g.e(f"v_add_u32 v3, s{S_T+2}, v2")
    g.e("s_nop 6")
    for t in range(6):
        g.e(f"ds_write_b128 v3, v[{vKV+4*t}:{vKV+4*t+3}] offset:{t*1024}")
    g.e("s_waitcnt lgkmcnt(0)")
    g.e("v_mov_b32 v3, 0")
    g.e("v_mov_b32 v4, 1")
    g.e("s_mov_b64 exec, 1")
    g.e(f"ds_add_rtn_u32 v4, v3, v4 offset:{4096 + 6144}")
    g.e("s_waitcnt lgkmcnt(0)")
    g.e("s_mov_b64 exec, -1")
    g.e(f"v_readfirstlane_b32 s{S_T}, v4")
    g.e("s_nop 3")
    g.e(f"s_cmp_lg_u32 s{S_T}, 3")
    g.e(f"s_cbranch_scc1 {kname}_fin")
    g.e(f"v_add_u32 v3, {RB2}, v2")
    for wv in range(4):
        for t in range(6):
            r = 32 + (wv * 6 + t) * 4
            g.e(f"ds_read_b128 v[{r}:{r+3}], v3 offset:{wv*6144 + t*1024}")
    g.e("s_waitcnt lgkmcnt(0)")
    for i in range(24):
        g.e(f"v_add_f32 v{vKV+i}, v{32+i}, v{56+i}")
        g.e(f"v_add_f32 v{80+i}, v{80+i}, v{104+i}")
    for i in range(24):
        g.e(f"v_add_f32 v{vKV+i}, v{vKV+i}, v{80+i}")
    g.e(f"s_lshl_b32 s{S_T}, s{S_H}, 3")
    g.e(f"s_add_u32 s{S_T}, s{S_T}, s{S_RB}")
    g.e(f"s_mul_i32 s{S_T}, s{S_T}, 6144")
    for t in range(6):
        g.e(f"s_add_u32 s{S_T+1}, s{S_T}, {t*1024}")
        g.e(f"buffer_store_dwordx4 v[{vKV+4*t}:{vKV+4*t+3}], v2, s[{S_E}:{S_E+3}], s{S_T+1} offen sc1")
    g.e("s_waitcnt vmcnt(0)")
    srd(g, S_A, P_DBG, 0, 256)
    g.e(f"s_lshl_b32 s{S_T}, s{S_H}, 2")
    g.e(f"v_mov_b32 v3, s{S_T}")
    g.e("v_mov_b32 v4, 1")
    g.e("s_mov_b64 exec, 1")
    g.e(f"buffer_atomic_add v4, v3, s[{S_A}:{S_A+3}], 0 offen sc0")
    g.e("s_waitcnt vmcnt(0)")
    g.e("s_mov_b64 exec, -1")
    g.e(f"v_readfirstlane_b32 s{S_T}, v4")
    g.e("s_nop 3")
    g.e(f"s_cmp_lg_u32 s{S_T}, 7")
    g.e(f"s_cbranch_scc1 {kname}_fin")
    g.e(f"s_mul_i32 s{S_T}, s{S_H}, {8*6144}")
    for j in range(8):
        for t in range(6):
            r = 32 + (j * 6 + t) * 4
            g.e(f"s_add_u32 s{S_T+1}, s{S_T}, {j*6144 + t*1024}")
            g.e(f"buffer_load_dwordx4 v[{r}:{r+3}], v2, s[{S_E}:{S_E+3}], s{S_T+1} offen sc1")
    for j in range(8):
        g.e(f"s_waitcnt vmcnt({(7-j)*6})")
        for i in range(24):
            if j == 0:
                g.e(f"v_mov_b32 v{vKV+i}, v{32+i}")
            else:
                g.e(f"v_add_f32 v{vKV+i}, v{vKV+i}, v{32+j*24+i}")
    g.e(f"s_mul_i32 s{S_T}, s{S_H}, 3072")
    for pp in range(3):
        d = vKV + 8 * pp
        g.e(f"v_cvt_pk_bf16_f32 v{d}, v{d}, v{d+1}")
        g.e(f"v_cvt_pk_bf16_f32 v{d+1}, v{d+2}, v{d+3}")
        g.e(f"v_cvt_pk_bf16_f32 v{d+2}, v{d+4}, v{d+5}")
        g.e(f"v_cvt_pk_bf16_f32 v{d+3}, v{d+6}, v{d+7}")
        g.e(f"buffer_store_dwordx4 v[{d}:{d+3}], v2, s[{S_F}:{S_F+3}], s{S_T} offen offset:{pp*1024}")
    g.lab(f"{kname}_fin")
    epilogue(g, kname)
    return g.text(), descriptor(kname, 256), lds_total


def divmod_const(g, vx, d, vq, vr, st):
    magic = (2**32 + d - 1) // d
    g.e(f"s_mov_b32 s{st}, {magic}")
    g.e(f"v_mul_hi_u32 v{vq}, v{vx}, s{st}")
    g.e(f"v_mul_u32_u24 v{vr}, {d}, v{vq}")
    g.e(f"v_sub_u32 v{vr}, v{vx}, v{vr}")


def k0_kernel():
    kname = "k0_kernel"
    g = G()
    prologue(g, kname, 256)
    g.e("v_and_b32 v1, 63, v0")
    g.e("v_lshrrev_b32 v2, 6, v0")
    g.e("s_nop 0")
    g.e(f"v_readfirstlane_b32 s{S_WAVE}, v2")
    g.e(f"s_lshl_b32 s{S_T}, s2, 8")
    g.e(f"v_add_u32 v2, s{S_T}, v0")
    g.e("s_waitcnt lgkmcnt(0)")
    srd(g, S_A, P_X, 0, H_SZ)
    srd(g, S_O, P_WS, XN_OFF, H_SZ)
    g.e(f"s_lshl_b32 s{S_M0}, s2, 3")
    g.e(f"s_lshl_b32 s{S_T}, s{S_WAVE}, 1")
    g.e(f"s_add_u32 s{S_M0}, s{S_M0}, s{S_T}")
    g.e(f"s_mul_i32 s{S_M0}, s{S_M0}, 1152")
    g.e("v_lshlrev_b32 v3, 4, v1")
    g.e("v_add_u32 v4, 1024, v3")
    g.e("v_cmp_gt_u32 vcc, 8, v1")
    g.e("v_mov_b32 v5, 0x40000000")
    g.e("v_cndmask_b32 v4, v5, v4, vcc")
    for rr in range(2):
        g.e(f"s_add_u32 s{S_T}, s{S_M0}, {rr*1152}")
        g.e(f"buffer_load_dwordx4 v[{8+rr*8}:{11+rr*8}], v3, s[{S_A}:{S_A+3}], s{S_T} offen")
        g.e(f"buffer_load_dwordx4 v[{12+rr*8}:{15+rr*8}], v4, s[{S_A}:{S_A+3}], s{S_T} offen")

    def map_tile(rowc, tilec, tilebytes, rowbytes):
        def f(vi):
            divmod_const(g, vi, rowc, 5, 7, S_T)
            divmod_const(g, 7, tilec, 6, 24, S_T)
            g.e(f"s_mov_b32 s{S_T}, {tilebytes}")
            g.e(f"v_mul_lo_u32 v6, v6, s{S_T}")
            g.e(f"v_mul_u32_u24 v5, {rowbytes}, v5")
            g.e("v_add_u32 v6, v6, v5")
            g.e("v_lshl_add_u32 v6, v24, 4, v6")
        return f

    def map_qkv(vi):
        divmod_const(g, vi, 864, 5, 7, S_T)
        divmod_const(g, 7, 288, 25, 24, S_T)
        divmod_const(g, 24, 9, 6, 7, S_T)
        g.e(f"s_mov_b32 s{S_T}, 92160")
        g.e(f"v_mul_lo_u32 v6, v6, s{S_T}")
        g.e("v_mul_u32_u24 v5, 160, v5")
        g.e("v_add_u32 v6, v6, v5")
        g.e("v_mul_u32_u24 v25, 36, v25")
        g.e("v_add_u32 v6, v6, v25")
        g.e("v_lshl_add_u32 v6, v7, 2, v6")
    jobs = [(P_WIN, 576 * 9216, TWIN_OFF, TWIN_SZ, 576 * 576, map_tile(576, 18, 165888, 288), 4, 76, 80),
            (P_WOUT, 2304 * 1152, TWOUT_OFF, TWOUT_SZ, 2304 * 72, map_tile(72, 9, 368640, 160), 4, 84, 88),
            (P_WO, 576 * 1152, TWO_OFF, TWO_SZ, 576 * 72, map_tile(72, 18, 165888, 288), 4, S_B, S_C),
            (P_WQKV, 576 * 3456, TQKV_OFF, TQKV_SZ, 576 * 864, map_qkv, 1, S_E, S_F)]
    vi0, vd0 = 28, 48
    plan = []
    vi, vd = vi0, vd0
    for (ptr, ssz, doff, dsz, n, mp, wd, ss, sd) in jobs:
        srd(g, ss, ptr, 0, ssz)
        srd(g, sd, P_WS, doff, dsz)
        nj = (n + 65535) // 65536
        for j in range(nj):
            g.e(f"v_add_u32 v{vi}, {65536*j}, v2")
            g.e(f"v_lshlrev_b32 v6, {4 if wd == 4 else 2}, v{vi}")
            if wd == 4:
                g.e(f"buffer_load_dwordx4 v[{vd}:{vd+3}], v6, s[{ss}:{ss+3}], 0 offen")
            else:
                g.e(f"buffer_load_dword v{vd}, v6, s[{ss}:{ss+3}], 0 offen")
            plan.append((vi, vd, wd, sd, mp, n, (j + 1) * 65536 > n))
            vi += 1
            vd += wd
        vd = (vd + 3) // 4 * 4
    assert vi <= vd0 and vd <= 110
    nl = len(plan)
    for (vi_, vd_, wd, sd, mp, n, partial) in plan:
        mp(vi_)
        if partial:
            g.e(f"v_cmp_gt_u32 vcc, {n}, v{vi_}")
            g.e("v_mov_b32 v7, 0x40000000")
            g.e("s_nop 0")
            g.e("v_cndmask_b32 v6, v7, v6, vcc")
        g.e(f"v_mov_b32 v{vi_}, v6")
    g.e(f"s_waitcnt vmcnt({nl})")
    vs = 112
    g.e("v_mov_b32 v26, 0x3f803f80")
    for rr in range(2):
        g.e(f"v_mov_b32 v{vs+2*rr}, 0")
        g.e(f"v_mov_b32 v{vs+1+2*rr}, 0")
        for d in range(8):
            r = 8 + rr * 8 + d
            g.e(f"v_dot2_f32_bf16 v{vs+2*rr}, v{r}, v26, v{vs+2*rr}")
            g.e(f"v_dot2_f32_bf16 v{vs+1+2*rr}, v{r}, v{r}, v{vs+1+2*rr}")
    for sw in (0x041F, 0x081F, 0x101F, 0x201F, 0x401F):
        for i in range(4):
            g.e(f"ds_swizzle_b32 v{vs+4+i}, v{vs+i} offset:{sw}")
        g.e("s_waitcnt lgkmcnt(0)")
        for i in range(4):
            g.e(f"v_add_f32 v{vs+i}, v{vs+i}, v{vs+4+i}")
    g.e("v_xor_b32 v26, 32, v1")
    g.e("v_lshlrev_b32 v26, 2, v26")
    for i in range(4):
        g.e(f"ds_bpermute_b32 v{vs+4+i}, v26, v{vs+i}")
    g.e("s_waitcnt lgkmcnt(0)")
    for i in range(4):
        g.e(f"v_add_f32 v{vs+i}, v{vs+i}, v{vs+4+i}")
    for rr in range(2):
        ln_from_sums(g, vs + 2 * rr, vs + 1 + 2 * rr, 576, vs + 4 + 2 * rr, vs + 5 + 2 * rr, 26)
    for rr in range(2):
        vm, vr = vs + 4 + 2 * rr, vs + 5 + 2 * rr
        for d in range(8):
            r = 8 + rr * 8 + d
            unpack_lo(g, 26, r)
            unpack_hi(g, 27, r)
            g.e(f"v_sub_f32 v26, v26, v{vm}")
            g.e(f"v_sub_f32 v27, v27, v{vm}")
            g.e(f"v_cvt_pk_bf16_f32 v{r}, v26, v27")
            unpack_lo(g, 26, r)
            unpack_hi(g, 27, r)
            g.e(f"v_mul_f32 v26, v26, v{vr}")
            g.e(f"v_mul_f32 v27, v27, v{vr}")
            g.e(f"v_cvt_pk_bf16_f32 v{r}, v26, v27")
    for k_, (vi_, vd_, wd, sd, mp, n, partial) in enumerate(plan):
        g.e(f"s_waitcnt vmcnt({nl-1-k_})") if k_ == 0 else None
        if k_ == 0:
            g.e("s_waitcnt vmcnt(0)")
        if wd == 4:
            g.e(f"buffer_store_dwordx4 v[{vd_}:{vd_+3}], v{vi_}, s[{sd}:{sd+3}], 0 offen")
        else:
            g.e(f"buffer_store_dword v{vd_}, v{vi_}, s[{sd}:{sd+3}], 0 offen")
    for rr in range(2):
        g.e(f"s_add_u32 s{S_T}, s{S_M0}, {rr*1152}")
        g.e(f"buffer_store_dwordx4 v[{8+rr*8}:{11+rr*8}], v3, s[{S_O}:{S_O+3}], s{S_T} offen")
        g.e(f"buffer_store_dwordx4 v[{12+rr*8}:{15+rr*8}], v4, s[{S_O}:{S_O+3}], s{S_T} offen")
    srd(g, S_A, P_WS, ST_OFF, ST2_SZ)
    for i in range(4):
        g.e(f"v_mov_b32 v{vs+i}, 0")
    g.e("v_lshlrev_b32 v6, 4, v2")
    g.e(f"buffer_store_dwordx4 v[{vs}:{vs+3}], v6, s[{S_A}:{S_A+3}], 0 offen")
    epilogue(g, kname)
    return g.text(), descriptor(kname, 128), 0


def colsum_job(g, kname, first_wg):
    g.e(f"s_sub_u32 s{S_T}, s2, {first_wg}")
    g.e(f"s_cmp_ge_u32 s{S_T}, 144")
    g.e(f"s_cbranch_scc1 {kname}_end")
    srd(g, S_A, P_WIN, 0, 576 * 4608 * 2)
    srd(g, S_B, P_WS, CS_OFF, CS_SZ)
    g.e(f"s_lshl_b32 s{S_T}, s{S_T}, 6")
    g.e("v_lshrrev_b32 v2, 2, v1")
    g.e("v_mul_u32_u24 v2, 9216, v2")
    g.e("v_and_b32 v3, 3, v1")
    g.e("v_lshl_add_u32 v2, v3, 4, v2")
    g.e(f"v_add_u32 v2, s{S_T}, v2")
    for i in range(8):
        g.e(f"v_mov_b32 v{8+i}, 0")
    for q in range(36):
        g.e(f"s_mov_b32 s{S_T+1}, {q*16*9216}")
        g.e(f"buffer_load_dwordx4 v[{16+4*q}:{19+4*q}], v2, s[{S_A}:{S_A+3}], s{S_T+1} offen")
    for q in range(36):
        g.e(f"s_waitcnt vmcnt({35-q})")
        for d in range(4):
            unpack_lo(g, 4, 16 + 4 * q + d)
            unpack_hi(g, 5, 16 + 4 * q + d)
            g.e(f"v_add_f32 v{8+2*d}, v{8+2*d}, v4")
            g.e(f"v_add_f32 v{9+2*d}, v{9+2*d}, v5")
    for x in (4, 8, 16, 32):
        g.e(f"v_xor_b32 v4, {x}, v1")
        g.e("v_lshlrev_b32 v4, 2, v4")
        for i in range(8):
            g.e(f"ds_bpermute_b32 v{16+i}, v4, v{8+i}")
        g.e("s_waitcnt lgkmcnt(0)")
        for i in range(8):
            g.e(f"v_add_f32 v{8+i}, v{8+i}, v{16+i}")
    g.e(f"s_lshl_b32 s{S_T}, s{S_T}, 1")
    g.e("v_lshlrev_b32 v4, 5, v1")
    g.e(f"v_add_u32 v4, s{S_T}, v4")
    g.e("s_mov_b64 exec, 0xf")
    g.e(f"buffer_store_dwordx4 v[8:11], v4, s[{S_B}:{S_B+3}], 0 offen")
    g.e(f"buffer_store_dwordx4 v[12:15], v4, s[{S_B}:{S_B+3}], 0 offen offset:16")
    g.e("s_mov_b64 exec, -1")


HEADER = open(__file__.replace("dev/gen.py", "cdna_kernels/" + NAME + ".s.ref")).read().split("; Override launch")[0]


def build(which=None):
    kernels = []
    t, d, l = k1_kernel()
    kernels.append(("k1_kernel", 256, 512, l, t, d))
    t, d, l = k2_kernel()
    kernels.append(("k2_kernel", 256, 512, l, t, d))
    t, d, l = k3_kernel()
    kernels.append(("k3_kernel", 256, 512, l, t, d))
    t, d, l = kn_kernel()
    kernels.append(("kn_kernel", 256, 256, l, t, d))
    t, d, l = gemm_global_kernel("k4_kernel", 'k4')
    kernels.append(("k4_kernel", 256, 512, l, t, d))
    t, d, l = gemm_global_kernel("k5_kernel", 'k5')
    kernels.append(("k5_kernel", 256, 512, l, t, d))
    out = HEADER
    for (n, grid, blk, lds, t, d) in kernels:
        out += f"; @launch kernel={n} grid=({grid},1,1) block=({blk},1,1) lds={lds}\n"
    out += '.amdgcn_target "amdgcn-amd-amdhsa--gfx950"\n.text\n'
    for k in kernels:
        out += k[4]
    out += '.section .rodata,"a"\n'
    for k in kernels:
        out += k[5]
    return out


if __name__ == "__main__":
    path = sys.argv[1] if len(sys.argv) > 1 else f"cdna_kernels/{NAME}.s"
    txt = build()
    if os.environ.get('WT', 'sc1') != 'none':
        import re
        fl = os.environ.get('WT', 'sc1')
        txt = re.sub(r'(buffer_store_dwordx4 [^\n]*offen)((?: offset:\d+)?)\n', lambda m: m.group(1) + m.group(2) + ' ' + fl + '\n', txt)
    open(path, "w").write(txt)
    print("wrote", path)
```
